```python
import torch

def _softmax(x, axis=-1):
    return torch.softmax(x, dim=axis)
def _gelu(x):
    return torch.nn.functional.gelu(x, approximate="tanh")
def _silu(x):
    return torch.nn.functional.silu(x)
def _sigmoid(x):
    return torch.sigmoid(x)
def _layernorm(x, axis=-1, eps=1e-5):
    m = x.mean(dim=axis, keepdim=True)
    v = x.var(dim=axis, keepdim=True, unbiased=False)
    return (x - m) / torch.sqrt(v + eps)
def _scatter_add(tgt, idx, src, axis=0):
    return tgt.clone().index_add_(axis, idx, src)
def _segment_sum(src, seg, n):
    out = torch.zeros((n,) + src.shape[1:], dtype=src.dtype)
    return out.index_add_(0, seg, src)
def _pad(x, pw):
    flat = tuple(v for pair in reversed(pw) for v in pair)
    return torch.nn.functional.pad(x, flat)

kernel_name = 'interleave_layers__grouped_kv_mqa__dense_activation_silu__prompt'

def setup_inputs():

    _w = (lambda a: (lambda t: t.to(torch.bfloat16) if t.is_floating_point() else t)(torch.as_tensor(a)))
    def _A_setup():
        B, S, D, H = 1, 2048, 512, 32
        Dh = D // H
        return {
            "x": _w((lambda *s: torch.randn(*s, dtype=torch.bfloat16) * 0.05)(B, S, D)),
            "wq": _w((lambda *s: torch.randn(*s, dtype=torch.bfloat16) * 0.05)(D, H * Dh)),
            "wk": _w((lambda *s: torch.randn(*s, dtype=torch.bfloat16) * 0.05)(D, Dh)),
            "wv": _w((lambda *s: torch.randn(*s, dtype=torch.bfloat16) * 0.05)(D, Dh)),
            "wo": _w((lambda *s: torch.randn(*s, dtype=torch.bfloat16) * 0.05)(H * Dh, D)),
        }
    _A_in = _A_setup()

    def _B_setup():
        B, S, D, F = 1, 2048, 512, 1792
        return {
            "x": _w((lambda *s: torch.randn(*s, dtype=torch.bfloat16) * 0.05)(B, S, D)),
            "w1": _w((lambda *s: torch.randn(*s, dtype=torch.bfloat16) * 0.8)(D, F) * (D ** -0.5)),
            "w2": _w((lambda *s: torch.randn(*s, dtype=torch.bfloat16) * 0.8)(F, D) * (F ** -0.5)),
        }
    _B_in = _B_setup()

    return {
        "A_x": _A_in["x"],
        "A_wq": _A_in["wq"],
        "A_wk": _A_in["wk"],
        "A_wv": _A_in["wv"],
        "A_wo": _A_in["wo"],
        "B_x": _B_in["x"],
        "B_w1": _B_in["w1"],
        "B_w2": _B_in["w2"],
    }

def reference(A_x, A_wq, A_wk, A_wv, A_wo, B_x, B_w1, B_w2):
    def _A_ref(x, wq, wk, wv, wo):
        B, S, D = x.shape
        H = 32
        Dh = D // H
        q = (lambda x, *d: x.permute(*d))((x @ wq).reshape(B, S, H, Dh), 0, 2, 1, 3)
        k = x @ wk
        v = x @ wv
        scores = torch.einsum("bhqd,bkd->bhqk", q, k) * (Dh ** -0.5)
        p = _softmax(scores, axis=-1)
        o = torch.einsum("bhqk,bkd->bhqd", p, v)
        return (lambda x, *d: x.permute(*d))(o, 0, 2, 1, 3).reshape(B, S, H * Dh) @ wo

    def _B_ref(x, w1, w2):
        h = torch.einsum("bsd,df->bsf", x, w1)
        h = _silu(h)
        out = torch.einsum("bsf,fd->bsd", h, w2)
        return out

    x = A_x
    x = x + _A_ref(_layernorm(x, axis=-1), A_wq, A_wk, A_wv, A_wo)
    x = x + _B_ref(_layernorm(x, axis=-1), B_w1, B_w2)
    x = x + _A_ref(_layernorm(x, axis=-1), A_wq, A_wk, A_wv, A_wo)
    x = x + _B_ref(_layernorm(x, axis=-1), B_w1, B_w2)
    return x
```

```python
import re

TRANS = ("v_exp_f32","v_log_f32","v_rcp_f32","v_rsq_f32","v_sqrt_f32","v_sin_f32","v_cos_f32","v_exp_f16","v_rcp_iflag_f32")

def regs_of(tok):
    tok = tok.strip()
    tok = tok.lstrip('-')
    m = re.fullmatch(r"abs\((.*)\)", tok) or re.fullmatch(r"\|(.*)\|", tok)
    if m: tok = m.group(1)
    m = re.fullmatch(r"([vas])\[(\d+):(\d+)\]", tok)
    if m: return [m.group(1)+str(i) for i in range(int(m.group(2)), int(m.group(3))+1)]
    m = re.fullmatch(r"([vas])(\d+)", tok)
    if m: return [tok]
    if tok == "vcc": return ["vcc"]
    if tok in ("vcc_lo","vcc_hi"): return ["vcc"]
    if tok in ("exec","exec_lo","exec_hi"): return ["exec"]
    if tok == "m0": return ["m0"]
    return []

class Ins:
    def __init__(self, text):
        self.text = text
        t = text.split(";")[0].strip()
        self.label = t[:-1] if t.endswith(":") else None
        self.directive = t.startswith(".") and not self.label
        self.op = None; self.w=[]; self.r=[]; self.kind=None; self.passes=0
        self.srcab=[]; self.srcc=[]; self.dpp=False; self.lds_dma=False; self.wide_store=[]
        if self.label or self.directive or not t: return
        parts = t.split(None,1)
        self.op = op = parts[0]
        rest = parts[1] if len(parts)>1 else ""
        ops = [o.strip() for o in re.split(r",(?![^\[\(]*[\]\)])", rest)] if rest else []
        mods = ""
        if ops:
            lp = ops[-1].split(None,1)
            ops[-1] = lp[0]
            if len(lp)>1: mods = lp[1]
        self.ops = ops; self.mods = mods
        R = lambda i: regs_of(ops[i]) if i < len(ops) else []
        if op.startswith("v_mfma") or op.startswith("v_smfmac"):
            self.kind="mfma"
            self.passes = 8 if "32x32" in op else 4
            self.w = R(0); self.srcab = R(1)+R(2)
            if op.startswith("v_smfmac"):
                self.srcab += R(3); self.srcc = R(0)
            else: self.srcc = R(3)
            self.r = self.srcab+self.srcc
        elif op.startswith("v_"):
            self.kind="valu"
            self.trans = any(op.startswith(x) for x in TRANS)
            self.dpp = ("_dpp" in op) or ("row_" in mods) or ("quad_perm" in mods) or ("wave_" in mods)
            if op.startswith("v_permlane"):
                self.w = R(0)+R(1); self.r = R(0)+R(1); self.kind2="permlane"
            elif op.startswith("v_add_co") or op.startswith("v_addc_co") or op.startswith("v_sub_co") or op.startswith("v_subb_co"):
                self.w = R(0)+R(1); self.r = sum((R(i) for i in range(2,len(ops))),[])
            else:
                self.w = R(0); self.r = sum((R(i) for i in range(1,len(ops))),[])
                if op.startswith("v_fmac") or op.startswith("v_dot2c") or op.startswith("v_pk_fmac") or self.dpp or "UNUSED_PRESERVE" in mods or op.startswith("v_writelane"):
                    self.r += R(0)
                if op.startswith("v_cndmask") and len(ops)==3: self.r += ["vcc"]
                if op.startswith("v_cmpx"): self.w += ["exec"]
        elif op.startswith("buffer_") or op.startswith("global_"):
            self.kind="vmem"
            allr = sum((R(i) for i in range(len(ops))),[])
            if op in ("buffer_wbl2","buffer_inv"): return
            if re.search(r"\blds\b", mods) or "load_lds" in op:
                self.lds_dma=True; self.r = allr+["m0"]
            elif "load" in op:
                self.w = R(0); self.r = sum((R(i) for i in range(1,len(ops))),[])
                if "d16" in op: self.r += R(0)
            else:
                self.r = allr
                if "atomic" in op and "sc0" in mods: self.w = R(0)
                if op.endswith("x4") or op.endswith("x3"):
                    self.wide_store = R(0) if op.startswith("buffer_") else R(1)
        elif op.startswith("ds_"):
            self.kind="ds"
            if "read" in op or "permute" in op or "swizzle" in op or "rtn" in op:
                self.w = R(0); self.r = sum((R(i) for i in range(1,len(ops))),[])
            else:
                self.r = sum((R(i) for i in range(len(ops))),[])
        elif op.startswith("s_"):
            self.kind="salu"
            if op.startswith("s_cmp") or op.startswith("s_cbranch") or op in ("s_branch","s_waitcnt","s_barrier","s_nop","s_endpgm","s_setprio","s_sleep","s_bitcmp1_b32","s_bitcmp0_b32"):
                self.r = sum((R(i) for i in range(len(ops))),[])
            else:
                self.w = R(0); self.r = sum((R(i) for i in range(1,len(ops))),[])
                if "saveexec" in op: self.w += ["exec"]
        else:
            raise ValueError("unknown op "+text)

def need(state, ins):
    req = 0; why=None
    def upd(n, age, w):
        nonlocal req, why
        if n-age > req: req = n-age; why=w
    R=set(ins.r); W=set(ins.w)
    for (kind, regs, age, passes, extra) in state:
        if kind=="valu_w":
            vg = {x for x in regs if x[0] in "va" and x!="vcc"}
            sg = regs - vg - {"exec"}
            if ins.kind=="mfma" and vg & R: upd(2, age, "valu->mfma")
            if ins.kind=="valu":
                if ins.dpp and vg & R: upd(2, age, "valu->dpp")
                if ins.op.startswith("v_permlane") and vg & R: upd(2, age, "valu->permlane")
                if (ins.op.startswith("v_readfirstlane") or ins.op.startswith("v_readlane")) and vg & R: upd(1, age, "valu->readlane")
                if extra=="trans" and not ins.trans and vg & R: upd(1, age, "trans->valu")
                if sg & R:
                    upd(4 if ins.op.startswith("v_readlane") or ins.op.startswith("v_writelane") or ins.op.startswith("v_div_fmas") else 2, age, "valu sgpr->valu")
            if ins.kind=="vmem" and sg & R: upd(5, age, "valu sgpr->vmem")
            if ins.kind=="salu" and sg & R: upd(1, age, "valu sgpr->salu(pad)")
            if ins.kind=="salu" and ins.op.startswith("s_cbranch_vcc") and "vcc" in regs: upd(5, age, "vcc->branch(pad)")
            if "exec" in regs:
                if ins.kind in ("valu","mfma"): upd(5, age, "valu exec")
        elif kind=="mfma_w":
            n = 12 if passes==8 else 8
            if ins.kind=="mfma":
                if regs & set(ins.srcab): upd(n, age, "mfma->mfma AB")
                c = set(ins.srcc)
                if regs & c:
                    if c==regs and ins.passes==passes: pass
                    else: upd(10 if passes==8 else 6, age, "mfma->mfma C overlap")
                elif regs & W:
                    if ins.passes < passes: upd(n, age, "mfma waw")
            elif ins.kind in ("valu","vmem","ds"):
                if regs & (R|W): upd(n, age, "mfma->valu/mem")
        elif kind=="mfma_c":
            if ins.kind=="valu" and regs & W: upd(7 if passes==8 else 3, age, "mfma C war")
            if ins.kind in ("vmem","ds") and regs & W: upd(7 if passes==8 else 3, age, "mfma C war(mem)")
        elif kind=="dot_w":
            if ins.kind in ("valu","vmem","ds","mfma") and regs & (R|W):
                if ins.op==extra and not (regs & set(regs_of(ins.ops[1])+regs_of(ins.ops[2]))): pass
                else: upd(3, age, "dot->x")
        elif kind=="m0_w":
            if ins.lds_dma or (ins.kind=="ds" and "addtid" in ins.op): upd(1, age, "m0->dma")
        elif kind=="wide_st":
            if regs & W: upd(2, age, "store data war")
    return req, why

def events(ins):
    ev=[]
    if ins.kind=="valu": ev.append(("valu_w", set(ins.w), 0, 0, "trans" if ins.trans else None))
    if ins.kind=="valu" and ins.op.startswith("v_dot"): ev.append(("dot_w", set(ins.w), 0, 0, ins.op))
    if ins.kind=="mfma":
        ev.append(("mfma_w", set(ins.w), 0, ins.passes, None))
        if ins.srcc: ev.append(("mfma_c", set(ins.srcc), 0, ins.passes, None))
    if ins.kind=="salu" and "m0" in ins.w: ev.append(("m0_w", {"m0"}, 0,0,None))
    if ins.wide_store: ev.append(("wide_st", set(ins.wide_store),0,0,None))
    return ev

def age(state, n):
    return [(k,r,a+n,p,e) for (k,r,a,p,e) in state if a+n < 13]

def pad_hazards(lines, verbose=False):
    out=[]; state=[]; snaps={}; seen=set(); dead=False; nn=0
    for text in lines:
        ins = Ins(text)
        if ins.label:
            seen.add(ins.label)
            st = [] if dead else state
            state = st + snaps.pop(ins.label, [])
            dead=False
            out.append(text); continue
        if ins.op is None:
            out.append(text); continue
        n, why = need(state, ins)
        isbr = ins.op.startswith("s_cbranch") or ins.op=="s_branch"
        if isbr and ins.ops[0] in seen:
            rem = 0
            for (k,r,a,p,e) in state:
                lim = {"valu_w":5,"mfma_w":12 if p==8 else 8,"mfma_c":7,"m0_w":1,"dot_w":3,"wide_st":2}[k]
                rem = max(rem, lim-a-1)
            if rem>n: n=rem; why="loop flush"
        if n>0:
            out.append(f"    s_nop {n-1}")
            nn+=1
            state = age(state, n)
        out.append(text)
        step = 1
        if ins.op=="s_nop": step = int(ins.ops[0],0)+1
        state = age(state, step)
        state += events(ins)
        if isbr and ins.ops[0] not in seen:
            snaps.setdefault(ins.ops[0], []).extend(state)
        if ins.op in ("s_branch","s_endpgm"): dead=True
    return out

class Asm:
    def __init__(self):
        self.L=[]; self.uid=0
    def __call__(self, s):
        for ln in s.split("\n"):
            ln=ln.strip()
            if not ln: continue
            self.L.append(ln if ln.endswith(":") else "    "+ln)
    def label(self, base):
        self.uid+=1; return f"L{base}_{self.uid}"
    def text(self):
        return "\n".join(pad_hazards(self.L))+"\n"
def v(a,n=1): return f"v{a}" if n==1 else f"v[{a}:{a+n-1}]"
def s(a,n=1): return f"s{a}" if n==1 else f"s[{a}:{a+n-1}]"
```

```python
import sys, math
from asmlib import *

NAME = "interleave_layers__grouped_kv_mqa__dense_activation_silu__prompt"
KB=1024; MB=1024*1024
WQF=0; WKVF=512*KB; WOF=1*MB; W1F=2*MB; W2F=4*MB
CSQ=6*MB; CSKV=CSQ+2048; CS1=CSQ+4096
XF=[8*MB,10*MB,12*MB,14*MB]
ST=[16*MB+i*256*KB for i in range(4)]
QF=[18*MB,20*MB]; KVI=[17*MB,17*MB+256*KB]; OF=[22*MB,24*MB]; HF=[26*MB,34*MB]
WS_SIZE=0x10000000
KVT=2112; KVIMG=64*KVT
LOG2E=1.4426950408889634
def f2u(x):
    import struct; return struct.unpack("<I", struct.pack("<f", x))[0]
ONES=0x3F803F80

WSR="s[4:7]"; sW=16; sG=17; sM=18
vL16=1; vL4=2

def prologue(a, extra_ptrs=()):
    a(f"s_cmp_ge_u32 s2, 256\ns_cbranch_scc1 {a.endl}")
    a("s_load_dwordx2 s[4:5], s[0:1], 80")
    for off, sb, nb in extra_ptrs: a(f"s_load_dwordx2 s[{sb}:{sb+1}], s[0:1], {off}")
    a(f"""v_lshrrev_b32 v1, 6, v0
    v_readfirstlane_b32 s{sW}, v1
    v_and_b32 v0, 63, v0
    s_and_b32 s{sG}, s2, 7
    s_lshr_b32 s{sM}, s2, 3
    v_lshlrev_b32 v{vL16}, 4, v0
    v_lshlrev_b32 v{vL4}, 2, v0
    s_mov_b32 s6, {WS_SIZE}
    s_mov_b32 s7, 0x20000""")
    for off, sb, nb in extra_ptrs: a(f"s_mov_b32 s{sb+2}, {nb}\ns_mov_b32 s{sb+3}, 0x20000")
    a("s_waitcnt lgkmcnt(0)")

def mfma(a, d, A, B, c=None):
    c = v(d,16) if c is None else c
    a(f"v_mfma_f32_32x32x16_bf16 {v(d,16)}, {v(A,4)}, {v(B,4)}, {c}")

def load_stats(a, vS, soff):
    for i in range(16): a(f"buffer_load_dword v{vS+i}, v{vL4}, {WSR}, s{soff} offen offset:{i*256}")
def calc_stats(a, vS, vMean, vRstd):
    n=16
    while n>1:
        n//=2
        for i in range(n): a(f"v_add_f32 v{vS+i}, v{vS+i}, v{vS+i+n}")
    a(f"""v_mov_b32 v{vS+1}, v{vS}
    v_permlane32_swap_b32 v{vS}, v{vS+1}
    v_mul_f32 v{vMean}, {f2u(1/512):#x}, v{vS}
    v_mul_f32 v{vS+1}, {f2u(1/512):#x}, v{vS+1}
    v_fma_f32 v{vS+1}, -v{vMean}, v{vMean}, v{vS+1}
    v_max_f32 v{vS+1}, 0, v{vS+1}
    v_add_f32 v{vS+1}, {f2u(1e-5):#x}, v{vS+1}
    v_rsq_f32 v{vRstd}, v{vS+1}""")
def load_colsum(a, vC, vG16, soff, imm=0):
    for q in range(4): a(f"buffer_load_dwordx4 {v(vC+4*q,4)}, v{vG16}, {WSR}, s{soff} offen offset:{imm+q*32}")
def emit_stats(a, vP, vT, vOnes, soff, imm=0):
    a(f"v_mov_b32 v{vT}, 0\nv_mov_b32 v{vT+1}, 0")
    for i in range(8):
        a(f"v_dot2_f32_bf16 v{vT}, v{vP+i}, v{vOnes}, v{vT}")
        a(f"v_dot2_f32_bf16 v{vT+1}, v{vP+i}, v{vP+i}, v{vT+1}")
    a(f"""v_permlane32_swap_b32 v{vT}, v{vT+1}
    v_add_f32 v{vT}, v{vT}, v{vT+1}
    buffer_store_dword v{vT}, v{vL4}, {WSR}, s{soff} offen offset:{imm}""")

def k_prep(a):
    prologue(a, [(0,8,2*MB),(8,20,512*KB),(16,24,16*KB),(24,28,16*KB),(32,32,512*KB),(48,36,1792*KB),(56,40,1792*KB)])
    a(f"""s_lshl_b32 s44, s2, 3
    s_add_u32 s44, s44, s{sW}
    s_lshl_b32 s45, s44, 10
    buffer_load_dwordx4 v[4:7], v{vL16}, s[8:11], s45 offen
    v_mov_b32 v3, {ONES:#x}
    s_lshr_b32 s46, s44, 5
    s_and_b32 s47, s44, 31
    v_lshrrev_b32 v10, 5, v0
    v_lshlrev_b32 v10, 2, v10
    v_bfe_u32 v11, v0, 2, 2
    v_add_u32 v10, v10, v11          ; row = 4*(G/2) + i/4
    v_bfe_u32 v11, v0, 4, 1          ; G%2
    v_and_b32 v12, 3, v0             ; i%4
    s_lshl_b32 s48, s{sW}, 12
    """)
    Lw1=a.label("w1"); Lwq=a.label("wq"); Lkv=a.label("kv"); Lpl=a.label("pl"); Lx=a.label("x"); Lcs=a.label("cs"); Lgen=a.label("gen")
    a(f"""s_cmp_lt_u32 s2, 56
    s_cbranch_scc1 {Lw1}
    s_cmp_lt_u32 s2, 72
    s_cbranch_scc1 {Lwq}
    s_cmp_eq_u32 s2, 72
    s_cbranch_scc1 {Lkv}
    s_cmp_lt_u32 s2, 80
    s_cbranch_scc1 {Lx}
    s_cmp_lt_u32 s2, 224
    s_cbranch_scc1 {Lpl}
    s_branch {Lx}""")
    def colsum_job(srd, stride, cbreg, dstbase, csbase):
        a(f"""v_lshrrev_b32 v13, 2, v0
        s_mov_b32 s49, {stride}
        v_mul_lo_u32 v13, s49, v13
        v_lshl_add_u32 v13, v12, 4, v13
        s_mul_i32 s50, s{sW}, {64*stride}
        s_lshl_b32 s51, s{cbreg}, 6
        s_add_u32 s50, s50, s51""")
        for i in range(4):
            a(f"s_add_u32 m0, s48, {i*1024}\nbuffer_load_dwordx4 v13, {srd}, s50 offen lds\ns_add_u32 s50, s50, {16*stride}")
        a(f"""s_lshl_b32 s52, s{cbreg}, 15
        s_add_u32 s52, s52, {dstbase}
        s_lshl_b32 s53, s{cbreg}, 7
        s_add_u32 s53, s53, {csbase}
        s_branch {Lgen}""")
    a(f"{Lw1}:"); a("s_mov_b32 s54, s2"); colsum_job("s[36:39]", 3584, 54, W1F, CS1)
    a(f"{Lwq}:"); a("s_sub_u32 s54, s2, 56"); colsum_job("s[20:23]", 1024, 54, WQF, CSQ)
    a(f"{Lgen}:")
    a(f"""v_lshlrev_b32 v14, 6, v10
    v_lshl_add_u32 v14, v11, 5, v14
    v_lshl_add_u32 v14, v12, 3, v14
    v_add_u32 v14, s48, v14
    s_waitcnt vmcnt(0)""")
    for i in range(4):
        a(f"ds_read_b64_tr_b16 {v(16+4*i,2)}, v14 offset:{i*1024}\nds_read_b64_tr_b16 {v(18+4*i,2)}, v14 offset:{i*1024+512}")
    a(f"s_branch {Lcs}")
    a(f"{Lkv}:")
    a(f"""s_lshl_b32 s50, s{sW}, 11
    s_mov_b32 m0, s48
    buffer_load_dwordx4 v{vL16}, s[24:27], s50 offen lds
    buffer_load_dwordx4 v{vL16}, s[24:27], s50 offen offset:1024 lds
    s_add_u32 m0, s48, 2048
    buffer_load_dwordx4 v{vL16}, s[28:31], s50 offen lds
    buffer_load_dwordx4 v{vL16}, s[28:31], s50 offen offset:1024 lds
    v_lshlrev_b32 v14, 5, v10
    v_lshl_add_u32 v14, v11, 11, v14
    v_lshl_add_u32 v14, v12, 3, v14
    v_add_u32 v14, s48, v14
    s_mov_b32 s52, {WKVF}
    s_mov_b32 s53, {CSKV}
    s_waitcnt vmcnt(0)""")
    for i in range(4):
        a(f"ds_read_b64_tr_b16 {v(16+4*i,2)}, v14 offset:{i*512}\nds_read_b64_tr_b16 {v(18+4*i,2)}, v14 offset:{i*512+256}")
    a(f"{Lcs}:")
    a(f"""s_add_u32 s52, s52, s48
    v_mov_b32 v15, 0
    s_waitcnt lgkmcnt(0)""")
    for i in range(4): a(f"buffer_store_dwordx4 {v(16+4*i,4)}, v{vL16}, {WSR}, s52 offen offset:{i*1024}")
    for i in range(16): a(f"v_dot2_f32_bf16 v15, v{16+i}, v3, v15")
    a(f"""s_lshl_b32 s55, s{sW}, 8
    v_add_u32 v13, s55, v{vL4}
    ds_write_b32 v13, v15 offset:32768
    s_waitcnt lgkmcnt(0)
    s_barrier
    s_cmp_lg_u32 s{sW}, 0
    s_cbranch_scc1 {Lx}""")
    for i in range(8): a(f"ds_read_b32 v{32+i}, v{vL4} offset:{32768+i*256}")
    a("s_waitcnt lgkmcnt(0)")
    for i in range(1,8): a(f"v_add_f32 v32, v32, v{32+i}")
    a(f"""v_mov_b32 v33, v32
    v_permlane32_swap_b32 v32, v33
    v_add_f32 v32, v32, v33
    v_and_b32 v13, 127, v{vL4}
    buffer_store_dword v32, v13, {WSR}, s53 offen
    s_branch {Lx}""")
    Lw2=a.label("w2"); Lp2=a.label("p2")
    a(f"{Lpl}:")
    a(f"""v_lshrrev_b32 v13, 2, v0
    v_lshlrev_b32 v13, 10, v13
    v_lshl_add_u32 v13, v12, 4, v13
    s_sub_u32 s54, s2, 80
    s_lshl_b32 s51, s{sW}, 7
    s_mov_b32 m0, s48
    s_cmp_ge_u32 s54, 32
    s_cbranch_scc1 {Lw2}
    s_lshl_b32 s50, s54, 14
    s_add_u32 s50, s50, s51
    buffer_load_dwordx4 v13, s[32:35], s50 offen lds
    s_add_u32 m0, s48, 1024
    s_add_u32 s50, s50, 64
    buffer_load_dwordx4 v13, s[32:35], s50 offen lds
    s_lshl_b32 s52, s{sW}, 16
    s_lshl_b32 s54, s54, 10
    s_add_u32 s52, s52, s54
    s_add_u32 s52, s52, {WOF}
    s_add_u32 s53, s52, {32*KB}
    s_branch {Lp2}
    {Lw2}:
    s_sub_u32 s54, s54, 32
    s_lshl_b32 s50, s54, 14
    s_add_u32 s50, s50, s51
    buffer_load_dwordx4 v13, s[40:43], s50 offen lds
    s_add_u32 m0, s48, 1024
    s_add_u32 s50, s50, 64
    buffer_load_dwordx4 v13, s[40:43], s50 offen lds
    s_mul_i32 s52, s{sW}, {224*KB}
    s_lshl_b32 s54, s54, 10
    s_add_u32 s52, s52, s54
    s_add_u32 s52, s52, {W2F}
    s_add_u32 s53, s52, {112*KB}
    {Lp2}:
    v_lshlrev_b32 v14, 6, v10
    v_lshl_add_u32 v14, v11, 5, v14
    v_lshl_add_u32 v14, v12, 3, v14
    v_add_u32 v14, s48, v14
    s_waitcnt vmcnt(0)""")
    for i in range(2):
        a(f"ds_read_b64_tr_b16 {v(16+4*i,2)}, v14 offset:{i*1024}\nds_read_b64_tr_b16 {v(18+4*i,2)}, v14 offset:{i*1024+512}")
    a(f"""s_waitcnt lgkmcnt(0)
    buffer_store_dwordx4 v[16:19], v{vL16}, {WSR}, s52 offen
    buffer_store_dwordx4 v[20:23], v{vL16}, {WSR}, s53 offen""")
    a(f"{Lx}:")
    a(f"""s_waitcnt vmcnt(0)
    v_mov_b32 v40, 0
    v_mov_b32 v41, 0""")
    for i in range(4):
        a(f"v_dot2_f32_bf16 v40, v{4+i}, v3, v40\nv_dot2_f32_bf16 v41, v{4+i}, v{4+i}, v41")
    for qp in ("[1,0,3,2]","[2,3,0,1]"):
        a(f"v_add_f32_dpp v40, v40, v40 quad_perm:{qp} row_mask:0xf bank_mask:0xf\nv_add_f32_dpp v41, v41, v41 quad_perm:{qp} row_mask:0xf bank_mask:0xf")
    a(f"""v_lshrrev_b32 v42, 1, v0
    v_lshlrev_b32 v42, 10, v42
    v_and_b32 v43, 1, v0
    v_lshl_add_u32 v42, v43, 3, v42
    s_lshl_b32 s50, s46, 15
    s_lshl_b32 s51, s47, 4
    s_add_u32 s50, s50, s51
    s_add_u32 s50, s50, {XF[0]}
    buffer_store_dwordx2 v[4:5], v42, {WSR}, s50 offen
    buffer_store_dwordx2 v[6:7], v42, {WSR}, s50 offen offset:512
    v_cmp_eq_u32 vcc, 1, v43
    v_cndmask_b32 v40, v40, v41, vcc
    v_lshrrev_b32 v42, 2, v0
    v_lshlrev_b32 v42, 8, v42
    v_lshl_add_u32 v42, v43, 7, v42
    s_lshl_b32 s50, s46, 12
    s_lshl_b32 s51, s47, 2
    s_add_u32 s50, s50, s51
    s_add_u32 s50, s50, {ST[0]}
    buffer_store_dword v40, v42, {WSR}, s50 offen""")

def gemm64_dma(a, bsrc, asrc):
    a(f"""s_lshl_b32 s22, s20, 16
    s_add_u32 s22, s22, {bsrc}
    s_lshl_b32 s23, s21, 16
    s_add_u32 s23, s23, {asrc}
    s_lshl_b32 s24, s{sW}, 10
    s_add_u32 s22, s22, s24
    s_add_u32 s23, s23, s24""")
    for q in range(4):
        for (src, l0) in ((22,0),(23,65536)):
            for t in range(2):
                o = q*8192 + t*32768
                a(f"s_add_u32 m0, s24, {l0+o}\ns_add_u32 s25, s{src}, {o}\nbuffer_load_dwordx4 v{vL16}, {WSR}, s25 offen lds")
def gemm64_main(a, acc, vB, vA, after=0, areg=None):
    T=40
    for q in range(4):
        a(f"s_waitcnt vmcnt({12-4*q+after})\ns_barrier")
        if acc is None: continue
        for i in range(8):
            ks=8*q+i
            a(f"ds_read_b128 {v(T+8*i,4)}, v{vB} offset:{ks*1024}")
            if areg is None: a(f"ds_read_b128 {v(T+8*i+4,4)}, v{vA} offset:{ks*1024}")
        for i in range(8):
            n = (7-i)*(2 if areg is None else 1)
            a(f"s_waitcnt lgkmcnt({n})")
            mfma(a, acc, T+8*i+4 if areg is None else areg+4*(8*q+i), T+8*i)

def k_qkv(a, L):
    prologue(a)
    xf=XF[2*L]; st=ST[2*L]
    a(f"""s_lshr_b32 s20, s{sM}, 3
    s_lshl_b32 s19, s{sG}, 2
    s_add_u32 s20, s20, s19
    s_and_b32 s21, s{sM}, 7
    v_lshrrev_b32 v3, 5, v0
    v_lshlrev_b32 v3, 4, v3""")
    Lq=a.label("q"); Lkv=a.label("kv"); Lidle=a.label("idle")
    a(f"""s_cmp_lt_u32 s{sW}, 4
    s_cbranch_scc1 {Lq}
    s_cmp_lg_u32 s{sW}, 4
    s_cbranch_scc1 {Lidle}
    s_cmp_lt_u32 s21, 2
    s_cbranch_scc1 {Lkv}
    {Lidle}:""")
    gemm64_dma(a, xf, WQF); gemm64_main(a, None, 0, 0)
    a(f"s_branch {a.endl}")
    ACC=8; VS=24
    a(f"""{Lq}:
    s_and_b32 s26, s{sW}, 1
    s_lshr_b32 s27, s{sW}, 1
    s_lshl_b32 s28, s20, 1
    s_add_u32 s28, s28, s26          ; tb32
    s_lshl_b32 s29, s21, 1
    s_add_u32 s29, s29, s27          ; cb32
    s_lshl_b32 s30, s28, 12
    s_add_u32 s30, s30, {st}
    s_lshl_b32 s31, s29, 7
    s_add_u32 s31, s31, {CSQ}""")
    load_stats(a, VS, 30); load_colsum(a, ACC, 3, 31)
    gemm64_dma(a, xf, WQF)
    a(f"""s_lshl_b32 s26, s26, 15
    v_add_u32 v4, s26, v{vL16}
    s_lshl_b32 s27, s27, 15
    s_add_u32 s27, s27, 65536
    v_add_u32 v5, s27, v{vL16}
    s_waitcnt vmcnt(16)""")
    calc_stats(a, VS, 6, 7)
    for i in range(16): a(f"v_mul_f32 v{ACC+i}, -v6, v{ACC+i}".replace("v_mul_f32","v_mul_f32_e64"))
    a(f"v_mul_f32 v7, {f2u(0.25*LOG2E):#x}, v7")
    gemm64_main(a, ACC, 4, 5)
    for i in range(16): a(f"v_mul_f32 v{ACC+i}, v7, v{ACC+i}")
    for i in range(8): a(f"v_cvt_pk_bf16_f32 v{VS+i}, v{ACC+2*i}, v{ACC+2*i+1}")
    a(f"""s_lshl_b32 s30, s28, 15
    s_lshl_b32 s31, s29, 11
    s_add_u32 s30, s30, s31
    s_add_u32 s30, s30, {QF[L]}
    buffer_store_dwordx4 {v(VS,4)}, v{vL16}, {WSR}, s30 offen
    buffer_store_dwordx4 {v(VS+4,4)}, v{vL16}, {WSR}, s30 offen offset:1024
    s_branch {a.endl}""")
    AR=104
    a(f"""{Lkv}:
    s_lshl_b32 s28, s20, 1
    s_add_u32 s28, s28, s21          ; tb32
    s_lshl_b32 s30, s28, 12
    s_add_u32 s30, s30, {st}
    s_mov_b32 s31, {CSKV}""")
    load_stats(a, VS, 30); load_colsum(a, ACC, 3, 31)
    a(f"s_mov_b32 s31, {WKVF}")
    for ks in range(32):
        a(f"buffer_load_dwordx4 {v(AR+4*ks,4)}, v{vL16}, {WSR}, s31 offen offset:{(ks%4)*1024}")
        if ks%4==3: a("s_add_u32 s31, s31, 4096")
    a("s_waitcnt vmcnt(32)")
    gemm64_dma(a, xf, WQF)
    a(f"""s_lshl_b32 s26, s21, 15
    v_add_u32 v4, s26, v{vL16}""")
    calc_stats(a, VS, 6, 7)
    for i in range(16): a(f"v_mul_f32_e64 v{ACC+i}, -v6, v{ACC+i}")
    gemm64_main(a, ACC, 4, 5, areg=AR)
    for i in range(16): a(f"v_mul_f32 v{ACC+i}, v7, v{ACC+i}")
    for i in range(8): a(f"v_cvt_pk_bf16_f32 v{VS+i}, v{ACC+2*i}, v{ACC+2*i+1}")
    a(f"""s_mul_i32 s30, s28, {KVT}
    s_add_u32 s30, s30, {KVI[L]}
    buffer_store_dwordx4 {v(VS,4)}, v{vL16}, {WSR}, s30 offen
    v_bfe_u32 v4, v0, 3, 2
    v_mul_u32_u24 v4, 272, v4
    v_and_b32 v5, 7, v0
    v_lshl_add_u32 v5, v5, 1, v4
    v_lshl_add_u32 v5, v3, 2, v5""")
    for r in range(8):
        op = "buffer_store_short" if r%2==0 else "buffer_store_short_d16_hi"
        a(f"{op} v{VS+4+r//2}, v5, {WSR}, s30 offen offset:{1024+(8*(r//4)+r%4)*16}")
    for i in range(4): a(f"v_mov_b32 v{ACC+i}, {ONES:#x}")
    a(f"buffer_store_dwordx4 {v(ACC,4)}, v4, {WSR}, s30 offen offset:{1024+256}")

def k_oproj(a, L):
    prologue(a)
    xin=XF[2*L]; xout=XF[2*L+1]; st=ST[2*L+1]
    a(f"""s_lshr_b32 s20, s{sM}, 3
    s_lshl_b32 s19, s{sG}, 2
    s_add_u32 s20, s20, s19
    s_and_b32 s21, s{sM}, 7""")
    Lq=a.label("q")
    a(f"s_cmp_lt_u32 s{sW}, 4\ns_cbranch_scc1 {Lq}")
    gemm64_dma(a, OF[L], WOF); gemm64_main(a, None, 0, 0)
    a(f"s_branch {a.endl}")
    ACC=8; VS=24
    a(f"""{Lq}:
    s_and_b32 s26, s{sW}, 1
    s_lshr_b32 s27, s{sW}, 1
    s_lshl_b32 s28, s20, 1
    s_add_u32 s28, s28, s26          ; tb32
    s_lshl_b32 s29, s21, 1
    s_add_u32 s29, s29, s27          ; cb32
    s_lshl_b32 s30, s28, 15
    s_lshl_b32 s31, s29, 11
    s_add_u32 s30, s30, s31
    s_add_u32 s31, s30, {xin}
    s_add_u32 s30, s30, {xout}
    buffer_load_dwordx4 {v(VS,4)}, v{vL16}, {WSR}, s31 offen
    buffer_load_dwordx4 {v(VS+4,4)}, v{vL16}, {WSR}, s31 offen offset:1024""")
    gemm64_dma(a, OF[L], WOF)
    a(f"""s_lshl_b32 s26, s26, 15
    v_add_u32 v4, s26, v{vL16}
    s_lshl_b32 s27, s27, 15
    s_add_u32 s27, s27, 65536
    v_add_u32 v5, s27, v{vL16}
    v_mov_b32 v3, {ONES:#x}
    s_waitcnt vmcnt(16)""")
    for i in range(8):
        a(f"v_lshlrev_b32 v{ACC+2*i}, 16, v{VS+i}\nv_and_b32 v{ACC+2*i+1}, 0xffff0000, v{VS+i}")
    gemm64_main(a, ACC, 4, 5)
    for i in range(8): a(f"v_cvt_pk_bf16_f32 v{VS+i}, v{ACC+2*i}, v{ACC+2*i+1}")
    a(f"""buffer_store_dwordx4 {v(VS,4)}, v{vL16}, {WSR}, s30 offen
    buffer_store_dwordx4 {v(VS+4,4)}, v{vL16}, {WSR}, s30 offen offset:1024
    s_lshl_b32 s30, s28, 12
    s_lshl_b32 s31, s29, 8
    s_add_u32 s30, s30, s31
    s_add_u32 s30, s30, {st}""")
    emit_stats(a, VS, 6, 3, 30)

XCH=KVIMG+2048
def k_att(a, L):
    prologue(a)
    S0=8; S1=24; OA=40; OB=56; QA=72; QB=76; KR=[80,84]; VR=[88,96]; IDX=104; vK=[105,106]; vV=[107,108]; T=110
    a(f"""s_lshr_b32 s20, s{sM}, 3
    s_lshl_b32 s19, s{sG}, 2
    s_add_u32 s20, s20, s19          ; tb64
    s_and_b32 s21, s{sM}, 7          ; hq
    s_and_b32 s22, s{sW}, 3          ; p
    s_lshr_b32 s23, s{sW}, 2         ; kh
    s_lshl_b32 s24, s21, 2
    s_add_u32 s24, s24, s22          ; head
    s_lshl_b32 s25, s20, 16
    s_lshl_b32 s26, s24, 10
    s_add_u32 s25, s25, s26
    s_add_u32 s26, s25, {QF[L]}
    buffer_load_dwordx4 {v(QA,4)}, v{vL16}, {WSR}, s26 offen
    s_add_u32 s26, s26, 32768
    buffer_load_dwordx4 {v(QB,4)}, v{vL16}, {WSR}, s26 offen
    s_mul_i32 s27, s23, {KVIMG//2}
    s_lshl_b32 s28, s22, 10
    s_add_u32 s28, s28, s27
    s_add_u32 s29, s28, {KVI[L]}""")
    for i in range(17):
        a(f"s_add_u32 m0, s28, {i*4096}\nbuffer_load_dwordx4 v{vL16}, {WSR}, s29 offen lds\ns_add_u32 s29, s29, 4096")
    a(f"""v_add_u32 v{vK[0]}, s27, v{vL16}
    v_add_u32 v{vK[1]}, {16*KVT}, v{vK[0]}
    v_and_b32 v3, 31, v0
    v_min_u32 v3, 16, v3
    v_lshlrev_b32 v3, 4, v3
    v_lshrrev_b32 v4, 5, v0
    v_mul_u32_u24 v4, 272, v4
    v_add3_u32 v{vV[0]}, v3, v4, s27
    v_add_u32 v{vV[1]}, {16*KVT}, v{vV[0]}
    v_mov_b32 v{IDX}, 0xdddddddd""")
    for i in range(32): a(f"v_mov_b32 v{OA+i}, 0")
    def rdK(kt): a(f"ds_read_b128 {v(KR[kt%2],4)}, v{vK[kt//16]} offset:{(kt%16)*KVT}")
    def rdV(kt,u): a(f"ds_read_b128 {v(VR[kt%2]+4*u,4)}, v{vV[kt//16]} offset:{(kt%16)*KVT+1024+u*544}")
    def smf(O,Vr,P): a(f"v_smfmac_f32_32x32x32_bf16 {v(O,16)}, {v(Vr,4)}, {v(P,8)}, v{IDX}")
    def ex(r): a(f"v_exp_f32 v{r}, v{r}")
    ready = {0:2, 2:6, 10:17}
    a(f"s_waitcnt vmcnt(15)\ns_barrier")
    rdK(0); rdV(0,0); rdV(0,1)
    a("s_waitcnt lgkmcnt(2)")
    mfma(a, S0, KR[0], QA, "0")
    S=[S0,S1]; O=[OA,OB]; Q=[QA,QB]
    NS=64
    for i in range(NS):
        kt=i//2; t=i%2
        Sa=S[i%2]; Sb=S[(i+1)%2]
        if t==0:
            if kt+1==3: a("s_waitcnt vmcnt(11)\ns_barrier")
            if kt+1==11: a("s_waitcnt vmcnt(0)\ns_barrier")
        ex(Sa); ex(Sa+1)
        if i>0: smf(O[(i-1)%2], VR[((i-1)//2)%2]+4, Sb+8)
        if t==0 and kt+1<32: rdK(kt+1)
        ex(Sa+2); ex(Sa+3)
        if i+1<NS:
            if t==1: a("s_waitcnt lgkmcnt(2)")
            mfma(a, Sb, KR[((i+1)//2)%2], Q[(i+1)%2], "0")
        if t==0 and kt+1<32: rdV(kt+1,0)
        for r in range(4,10): ex(Sa+r)
        if t==0: a(f"s_waitcnt lgkmcnt({2 if kt+1<32 else 0})")
        smf(O[t], VR[kt%2], Sa)
        if t==0 and kt+1<32: rdV(kt+1,1)
        for r in range(10,16): ex(Sa+r)
    smf(O[1], VR[1]+4, S[1]+8)
    Lfin=a.label("fin"); Lk1=a.label("k1"); Lk2=a.label("k2")
    a(f"""{Lfin}:
    s_mul_i32 s30, s{sW}, 2304
    s_xor_b32 s31, s{sW}, 4
    s_mul_i32 s31, s31, 2304
    v_add_u32 v3, s30, v{vL16}
    v_add_u32 v4, s30, v{vL4}
    v_add_u32 v5, s31, v{vL16}
    v_add_u32 v6, s31, v{vL4}
    v_add_u32 v3, {XCH}, v3
    v_add_u32 v4, {XCH}, v4
    v_add_u32 v5, {XCH}, v5
    v_add_u32 v6, {XCH}, v6
    s_cmp_eq_u32 s23, 0
    s_cbranch_scc1 {Lk1}""")
    a(f"ds_write_b128 v3, {v(OA,4)}\nds_write_b128 v3, {v(OA+4,4)} offset:1024\nds_write_b32 v4, v{OA+8} offset:2048")
    for i in range(9): a(f"v_mov_b32 v{S0+i}, v{OB+i}")
    a(f"s_branch {Lk2}\n{Lk1}:")
    a(f"ds_write_b128 v3, {v(OB,4)}\nds_write_b128 v3, {v(OB+4,4)} offset:1024\nds_write_b32 v4, v{OB+8} offset:2048")
    for i in range(9): a(f"v_mov_b32 v{S0+i}, v{OA+i}")
    a(f"""{Lk2}:
    s_waitcnt lgkmcnt(0)
    s_barrier
    ds_read_b128 {v(S1,4)}, v5
    ds_read_b128 {v(S1+4,4)}, v5 offset:1024
    ds_read_b32 v{S1+8}, v6 offset:2048
    s_waitcnt lgkmcnt(0)""")
    for i in range(9): a(f"v_add_f32 v{S0+i}, v{S0+i}, v{S1+i}")
    a(f"v_rcp_f32 v{S1}, v{S0+8}")
    for i in range(8): a(f"v_mul_f32 v{S0+i}, v{S1}, v{S0+i}")
    for i in range(4): a(f"v_cvt_pk_bf16_f32 v{S1+4+i}, v{S0+2*i}, v{S0+2*i+1}")
    a(f"""s_lshl_b32 s26, s23, 15
    s_add_u32 s26, s26, s25
    s_add_u32 s26, s26, {OF[L]}
    buffer_store_dwordx4 {v(S1+4,4)}, v{vL16}, {WSR}, s26 offen""")

def k_ffn1(a, L):
    prologue(a)
    xf=XF[2*L+1]; st=ST[2*L+1]
    a(f"""s_cmp_ge_u32 s{sM}, 28
    s_cbranch_scc1 {a.endl}
    s_cmp_ge_u32 s{sM}, 14
    s_cselect_b32 s20, 1, 0          ; tb128
    s_mul_i32 s21, s20, 14
    s_sub_u32 s21, s{sM}, s21        ; cs""")
    La=a.label("a")
    a(f"s_cmp_lt_u32 s{sW}, 4\ns_cbranch_scc1 {La}")
    a(f"""s_sub_u32 s22, s{sW}, 4
    s_lshl_b32 s22, s22, 15
    s_lshl_b32 s23, s21, 17
    s_add_u32 s23, s23, s22
    s_add_u32 s23, s23, {W1F}""")
    for ks in range(32):
        if ks%4==0: a(f"s_add_u32 m0, s22, {ks*1024}")
        a(f"buffer_load_dwordx4 v{vL16}, {WSR}, s23 offen offset:{(ks%4)*1024} lds")
        if ks%4==3: a("s_add_u32 s23, s23, 4096")
    for q in range(4): a(f"s_waitcnt vmcnt({24-8*q})\ns_barrier")
    a(f"s_branch {a.endl}")
    ACC=8; VS=72; X=104; T=232
    a(f"""{La}:
    s_lshl_b32 s22, s{sG}, 3
    s_lshl_b32 s23, s20, 2
    s_add_u32 s22, s22, s23
    s_add_u32 s22, s22, s{sW}        ; tb32
    s_lshl_b32 s24, s22, 12
    s_add_u32 s24, s24, {st}
    s_lshl_b32 s25, s21, 9
    s_add_u32 s25, s25, {CS1}
    v_lshrrev_b32 v3, 5, v0
    v_lshlrev_b32 v3, 4, v3""")
    load_stats(a, VS, 24)
    for c in range(4): load_colsum(a, ACC+16*c, 3, 25, c*128)
    a(f"s_lshl_b32 s26, s22, 15\ns_add_u32 s26, s26, {xf}")
    a("s_waitcnt vmcnt(0)")
    for ks in range(32):
        a(f"buffer_load_dwordx4 {v(X+4*ks,4)}, v{vL16}, {WSR}, s26 offen offset:{(ks%4)*1024}")
        if ks%4==3: a("s_add_u32 s26, s26, 4096")
    calc_stats(a, VS, 6, 7)
    for i in range(64): a(f"v_mul_f32_e64 v{ACC+i}, -v6, v{ACC+i}")
    a(f"v_mul_f32 v7, {f2u(-LOG2E):#x}, v7\nv_add_u32 v4, 65536, v{vL16}")
    W=[VS, VS+16]
    def rdW(ks):
        for c in range(4): a(f"ds_read_b128 {v(W[ks%2]+4*c,4)}, v{vL16 if c<2 else 4} offset:{(c%2)*32768+ks*1024}")
    for ks in range(32):
        if ks%8==0:
            a("s_barrier"); rdW(ks)
        if (ks+1)%8!=0: rdW(ks+1)
        a(f"s_waitcnt vmcnt({31-ks})")
        for c in range(4):
            a(f"s_waitcnt lgkmcnt({(3-c)+(4 if (ks+1)%8!=0 else 0)})")
            mfma(a, ACC+16*c, W[ks%2]+4*c, X+4*ks)
    a(f"""s_mul_i32 s26, s22, {112*KB}
    s_lshl_b32 s27, s21, 13
    s_add_u32 s26, s26, s27
    s_add_u32 s26, s26, {HF[L]}""")
    for c in range(4):
        A=ACC+16*c; E=X+32*(c%2)
        for i in range(16): a(f"v_mul_f32 v{E+i}, v7, v{A+i}")
        for i in range(16): a(f"v_exp_f32 v{E+i}, v{E+i}")
        for i in range(16): a(f"v_add_f32 v{E+i}, 1.0, v{E+i}")
        for i in range(16): a(f"v_rcp_f32 v{E+i}, v{E+i}")
        for i in range(16): a(f"v_mul_f32 v{E+i}, v{A+i}, v{E+i}")
        for i in range(8): a(f"v_cvt_pk_bf16_f32 v{E+16+i}, v{E+2*i}, v{E+2*i+1}")
        if c==2: a("s_add_u32 s26, s26, 4096")
        a(f"buffer_store_dwordx4 {v(E+16,4)}, v{vL16}, {WSR}, s26 offen offset:{(c%2)*2048}")
        a(f"buffer_store_dwordx4 {v(E+20,4)}, v{vL16}, {WSR}, s26 offen offset:{(c%2)*2048+1024}")

def k_ffn2(a, L):
    prologue(a, [(64,12,2*MB)])
    xin=XF[2*L+1]; stin=ST[2*L+1]
    ACC=8; R=72; VS=200; XR=216
    a(f"""s_lshr_b32 s20, s{sM}, 3
    s_lshl_b32 s19, s{sG}, 2
    s_add_u32 s20, s20, s19          ; tb64
    s_and_b32 s21, s{sM}, 7          ; cb64
    s_and_b32 s26, s{sW}, 1
    s_bfe_u32 s27, s{sW}, 0x10001
    s_lshl_b32 s28, s20, 1
    s_add_u32 s28, s28, s26
    s_lshl_b32 s29, s21, 1
    s_add_u32 s29, s29, s27          ; cb32
    s_lshl_b32 s30, s28, 12
    s_add_u32 s30, s30, {stin}
    s_lshl_b32 s34, s28, 15
    s_lshl_b32 s31, s29, 11
    s_add_u32 s34, s34, s31
    s_add_u32 s31, s34, {xin}""")
    load_stats(a, VS, 30)
    a(f"""buffer_load_dwordx4 {v(XR,4)}, v{vL16}, {WSR}, s31 offen
    buffer_load_dwordx4 {v(XR+4,4)}, v{vL16}, {WSR}, s31 offen offset:1024
    s_mul_i32 s22, s{sW}, {14*KB}
    s_mul_i32 s23, s20, {224*KB}
    s_add_u32 s23, s23, s22
    s_add_u32 s23, s23, {HF[L]}      ; h t0
    s_add_u32 s24, s23, {112*KB}     ; h t1
    s_mul_i32 s25, s21, {224*KB}
    s_add_u32 s25, s25, s22
    s_add_u32 s25, s25, {W2F}        ; w c0
    s_add_u32 s22, s25, {112*KB}     ; w c1""")
    NB=8
    def ld(ks):
        b=R+16*(ks%NB)
        for j,sr in enumerate((23,24,25,22)):
            a(f"buffer_load_dwordx4 {v(b+4*j,4)}, v{vL16}, {WSR}, s{sr} offen offset:{(ks%4)*1024}")
        if ks%4==3:
            for sr in (23,24,25,22): a(f"s_add_u32 s{sr}, s{sr}, 4096")
    for ks in range(NB): ld(ks)
    for ks in range(14):
        out = min(14, ks+NB) - (ks+1)
        a(f"s_waitcnt vmcnt({4*out})")
        b=R+16*(ks%NB)
        for c in range(2):
            for t in range(2):
                mfma(a, ACC+16*(2*c+t), b+8+4*c, b+4*t, "0" if ks==0 else None)
        if ks+NB<14: ld(ks+NB)
    a(f"s_lshl_b32 s22, s{sW}, 14\nv_add_u32 v4, s22, v{vL16}")
    for i in range(16): a(f"ds_write_b128 v4, {v(ACC+4*i,4)} offset:{i*1024}")
    a(f"""s_waitcnt lgkmcnt(0)
    s_barrier
    s_cmp_ge_u32 s{sW}, 4
    s_cbranch_scc1 {a.endl}
    s_lshl_b32 s22, s{sW}, 12
    v_add_u32 v4, s22, v{vL16}
    v_add_u32 v5, 65536, v4""")
    for p in range(8):
        for q in range(4): a(f"ds_read_b128 {v(R+16*p+4*q,4)}, v{4 if p<4 else 5} offset:{(p%4)*16384+q*1024}")
        if p%2==1: a("s_waitcnt lgkmcnt(4)" if p<7 else "s_waitcnt lgkmcnt(0)")
    calc_stats(a, VS, 6, 7)
    for p in range(1,8):
        for i in range(16): a(f"v_add_f32 v{R+i}, v{R+i}, v{R+16*p+i}")
    for i in range(8):
        a(f"v_lshlrev_b32 v{ACC+2*i}, 16, v{XR+i}\nv_and_b32 v{ACC+2*i+1}, 0xffff0000, v{XR+i}")
    for i in range(16): a(f"v_fma_f32 v{ACC+i}, v7, v{R+i}, v{ACC+i}")
    for i in range(8): a(f"v_cvt_pk_bf16_f32 v{XR+i}, v{ACC+2*i}, v{ACC+2*i+1}")
    if L==0:
        a(f"""s_add_u32 s34, s34, {XF[2]}
        buffer_store_dwordx4 {v(XR,4)}, v{vL16}, {WSR}, s34 offen
        buffer_store_dwordx4 {v(XR+4,4)}, v{vL16}, {WSR}, s34 offen offset:1024
        v_mov_b32 v3, {ONES:#x}
        s_lshl_b32 s30, s28, 12
        s_lshl_b32 s31, s29, 8
        s_add_u32 s30, s30, s31
        s_add_u32 s30, s30, {ST[2]}""")
        emit_stats(a, XR, 6, 3, 30)
    else:
        a(f"""v_permlane32_swap_b32 v{XR}, v{XR+2}
        v_permlane32_swap_b32 v{XR+1}, v{XR+3}
        v_permlane32_swap_b32 v{XR+4}, v{XR+6}
        v_permlane32_swap_b32 v{XR+5}, v{XR+7}
        v_and_b32 v4, 31, v0
        v_lshlrev_b32 v4, 10, v4
        v_lshrrev_b32 v5, 5, v0
        v_lshl_add_u32 v4, v5, 4, v4
        s_lshl_b32 s30, s28, 15
        s_lshl_b32 s31, s29, 6
        s_add_u32 s30, s30, s31
        buffer_store_dwordx4 {v(XR,4)}, v4, s[12:15], s30 offen
        buffer_store_dwordx4 {v(XR+4,4)}, v4, s[12:15], s30 offen offset:32""")

KERNELS = [("prep_kernel", k_prep, (), 36864)]
for L in range(2):
    KERNELS += [(f"qkv{L}_kernel", k_qkv, (L,), 131072), (f"att{L}_kernel", k_att, (L,), XCH+8*2304),
                (f"opr{L}_kernel", k_oproj, (L,), 131072), (f"ffa{L}_kernel", k_ffn1, (L,), 131072), (f"ffb{L}_kernel", k_ffn2, (L,), 131072)]

def build(kernels=KERNELS):
    hdr = open("cdna_kernels/"+NAME+".s.ref").read().split("; Override launch")[0]
    out = hdr
    for name,_,_,lds in kernels: out += f"; @launch kernel={name} grid=(256,1,1) block=(512,1,1) lds={lds}\n"
    out += '.amdgcn_target "amdgcn-amd-amdhsa--gfx950"\n.text\n'
    done=set(); uid=0
    for name,fn,args,lds in kernels:
        if name in done: continue
        done.add(name)
        a = Asm(); a.uid=uid; a.endl = a.label("end")
        fn(a,*args)
        a(f"{a.endl}:\ns_endpgm")
        uid=a.uid
        out += f".globl {name}\n.p2align 8\n.type {name},@function\n{name}:\n" + a.text()
    out += '.section .rodata,"a"\n'
    for name in dict.fromkeys(k[0] for k in kernels):
        out += f""".p2align 6
.amdhsa_kernel {name}
  .amdhsa_next_free_vgpr 256
  .amdhsa_next_free_sgpr 102
  .amdhsa_accum_offset 256
  .amdhsa_group_segment_fixed_size 0
  .amdhsa_kernarg_size 88
  .amdhsa_user_sgpr_count 2
  .amdhsa_user_sgpr_kernarg_segment_ptr 1
  .amdhsa_system_sgpr_workgroup_id_x 1
.end_amdhsa_kernel
"""
    return out
if __name__=="__main__":
    p = sys.argv[1] if len(sys.argv)>1 else "cdna_kernels/"+NAME+".s"
    open(p,"w").write(build())
```

```python
from gen import *
def k_nop(a):
    a("s_nop 0")
K2 = list(KERNELS) + [("nop_kernel", k_nop, (), 0)]*10
open("t_nop10.s","w").write(build(K2))
K3 = [("nop_kernel", k_nop, (), 0)]*10 + list(KERNELS)
open("t_nop10b.s","w").write(build(K3))
K4 = list(KERNELS[:3]) + [KERNELS[2]]*4 + list(KERNELS[3:])
open("t_att4.s","w").write(build(K4))
K5 = list(KERNELS[:1])*5 + list(KERNELS[1:])
open("t_prep4.s","w").write(build(K5))
K6 = list(KERNELS[:5]) + [KERNELS[4]]*4 + list(KERNELS[5:])
open("t_ffa4.s","w").write(build(K6))
K7 = list(KERNELS[:6]) + [KERNELS[5]]*4 + list(KERNELS[6:])
open("t_ffb4.s","w").write(build(K7))
```

```python
import re

TRANS = ("v_exp_f32","v_log_f32","v_rcp_f32","v_rsq_f32","v_sqrt_f32","v_sin_f32","v_cos_f32","v_exp_f16","v_rcp_iflag_f32")

def regs_of(tok):
    tok = tok.strip()
    tok = tok.lstrip('-')
    m = re.fullmatch(r"abs\((.*)\)", tok) or re.fullmatch(r"\|(.*)\|", tok)
    if m: tok = m.group(1)
    m = re.fullmatch(r"([vas])\[(\d+):(\d+)\]", tok)
    if m: return [m.group(1)+str(i) for i in range(int(m.group(2)), int(m.group(3))+1)]
    m = re.fullmatch(r"([vas])(\d+)", tok)
    if m: return [tok]
    if tok == "vcc": return ["vcc"]
    if tok in ("vcc_lo","vcc_hi"): return ["vcc"]
    if tok in ("exec","exec_lo","exec_hi"): return ["exec"]
    if tok == "m0": return ["m0"]
    return []

class Ins:
    def __init__(self, text):
        self.text = text
        t = text.split(";")[0].strip()
        self.label = t[:-1] if t.endswith(":") else None
        self.directive = t.startswith(".") and not self.label
        self.op = None; self.w=[]; self.r=[]; self.kind=None; self.passes=0
        self.srcab=[]; self.srcc=[]; self.dpp=False; self.lds_dma=False; self.wide_store=[]
        if self.label or self.directive or not t: return
        parts = t.split(None,1)
        self.op = op = parts[0]
        rest = parts[1] if len(parts)>1 else ""
        ops = [o.strip() for o in re.split(r",(?![^\[\(]*[\]\)])", rest)] if rest else []
        mods = ""
        if ops:
            lp = ops[-1].split(None,1)
            ops[-1] = lp[0]
            if len(lp)>1: mods = lp[1]
        self.ops = ops; self.mods = mods
        R = lambda i: regs_of(ops[i]) if i < len(ops) else []
        if op.startswith("v_mfma") or op.startswith("v_smfmac"):
            self.kind="mfma"
            self.passes = 8 if "32x32" in op else 4
            self.w = R(0); self.srcab = R(1)+R(2)
            if op.startswith("v_smfmac"):
                self.srcab += R(3); self.srcc = R(0)
            else: self.srcc = R(3)
            self.r = self.srcab+self.srcc
        elif op.startswith("v_"):
            self.kind="valu"
            self.trans = any(op.startswith(x) for x in TRANS)
            self.dpp = ("_dpp" in op) or ("row_" in mods) or ("quad_perm" in mods) or ("wave_" in mods)
            if op.startswith("v_permlane"):
                self.w = R(0)+R(1); self.r = R(0)+R(1); self.kind2="permlane"
            elif op.startswith("v_add_co") or op.startswith("v_addc_co") or op.startswith("v_sub_co") or op.startswith("v_subb_co"):
                self.w = R(0)+R(1); self.r = sum((R(i) for i in range(2,len(ops))),[])
            else:
                self.w = R(0); self.r = sum((R(i) for i in range(1,len(ops))),[])
                if op.startswith("v_fmac") or op.startswith("v_dot2c") or op.startswith("v_pk_fmac") or self.dpp or "UNUSED_PRESERVE" in mods or op.startswith("v_writelane"):
                    self.r += R(0)
                if op.startswith("v_cndmask") and len(ops)==3: self.r += ["vcc"]
                if op.startswith("v_cmpx"): self.w += ["exec"]
        elif op.startswith("buffer_") or op.startswith("global_"):
            self.kind="vmem"
            allr = sum((R(i) for i in range(len(ops))),[])
            if op in ("buffer_wbl2","buffer_inv"): return
            if re.search(r"\blds\b", mods) or "load_lds" in op:
                self.lds_dma=True; self.r = allr+["m0"]
            elif "load" in op:
                self.w = R(0); self.r = sum((R(i) for i in range(1,len(ops))),[])
                if "d16" in op: self.r += R(0)
            else:
                self.r = allr
                if "atomic" in op and "sc0" in mods: self.w = R(0)
                if op.endswith("x4") or op.endswith("x3"):
                    self.wide_store = R(0) if op.startswith("buffer_") else R(1)
        elif op.startswith("ds_"):
            self.kind="ds"
            if "read" in op or "permute" in op or "swizzle" in op or "rtn" in op:
                self.w = R(0); self.r = sum((R(i) for i in range(1,len(ops))),[])
            else:
                self.r = sum((R(i) for i in range(len(ops))),[])
        elif op.startswith("s_"):
            self.kind="salu"
            if op.startswith("s_cmp") or op.startswith("s_cbranch") or op in ("s_branch","s_waitcnt","s_barrier","s_nop","s_endpgm","s_setprio","s_sleep","s_bitcmp1_b32","s_bitcmp0_b32"):
                self.r = sum((R(i) for i in range(len(ops))),[])
            else:
                self.w = R(0); self.r = sum((R(i) for i in range(1,len(ops))),[])
                if "saveexec" in op: self.w += ["exec"]
        else:
            raise ValueError("unknown op "+text)

def need(state, ins):
    req = 0; why=None
    def upd(n, age, w):
        nonlocal req, why
        if n-age > req: req = n-age; why=w
    R=set(ins.r); W=set(ins.w)
    for (kind, regs, age, passes, extra) in state:
        if kind=="valu_w":
            vg = {x for x in regs if x[0] in "va" and x!="vcc"}
            sg = regs - vg - {"exec"}
            if ins.kind=="mfma" and vg & R: upd(2, age, "valu->mfma")
            if ins.kind=="valu":
                if ins.dpp and vg & R: upd(2, age, "valu->dpp")
                if ins.op.startswith("v_permlane") and vg & R: upd(2, age, "valu->permlane")
                if (ins.op.startswith("v_readfirstlane") or ins.op.startswith("v_readlane")) and vg & R: upd(1, age, "valu->readlane")
                if extra=="trans" and not ins.trans and vg & R: upd(1, age, "trans->valu")
                if sg & R:
                    upd(4 if ins.op.startswith("v_readlane") or ins.op.startswith("v_writelane") or ins.op.startswith("v_div_fmas") else 2, age, "valu sgpr->valu")
            if ins.kind=="vmem" and sg & R: upd(5, age, "valu sgpr->vmem")
            if ins.kind=="salu" and sg & R: upd(1, age, "valu sgpr->salu(pad)")
            if ins.kind=="salu" and ins.op.startswith("s_cbranch_vcc") and "vcc" in regs: upd(5, age, "vcc->branch(pad)")
            if "exec" in regs:
                if ins.kind in ("valu","mfma"): upd(5, age, "valu exec")
        elif kind=="mfma_w":
            n = 12 if passes==8 else 8
            if ins.kind=="mfma":
                if regs & set(ins.srcab): upd(n, age, "mfma->mfma AB")
                c = set(ins.srcc)
                if regs & c:
                    if c==regs and ins.passes==passes: pass
                    else: upd(10 if passes==8 else 6, age, "mfma->mfma C overlap")
                elif regs & W:
                    if ins.passes < passes: upd(n, age, "mfma waw")
            elif ins.kind in ("valu","vmem","ds"):
                if regs & (R|W): upd(n, age, "mfma->valu/mem")
        elif kind=="mfma_c":
            if ins.kind=="valu" and regs & W: upd(7 if passes==8 else 3, age, "mfma C war")
            if ins.kind in ("vmem","ds") and regs & W: upd(7 if passes==8 else 3, age, "mfma C war(mem)")
        elif kind=="dot_w":
            if ins.kind in ("valu","vmem","ds","mfma") and regs & (R|W):
                if ins.op==extra and not (regs & set(regs_of(ins.ops[1])+regs_of(ins.ops[2]))): pass
                else: upd(3, age, "dot->x")
        elif kind=="m0_w":
            if ins.lds_dma or (ins.kind=="ds" and "addtid" in ins.op): upd(1, age, "m0->dma")
        elif kind=="wide_st":
            if regs & W: upd(2, age, "store data war")
    return req, why

def events(ins):
    ev=[]
    if ins.kind=="valu": ev.append(("valu_w", set(ins.w), 0, 0, "trans" if ins.trans else None))
    if ins.kind=="valu" and ins.op.startswith("v_dot"): ev.append(("dot_w", set(ins.w), 0, 0, ins.op))
    if ins.kind=="mfma":
        ev.append(("mfma_w", set(ins.w), 0, ins.passes, None))
        if ins.srcc: ev.append(("mfma_c", set(ins.srcc), 0, ins.passes, None))
    if ins.kind=="salu" and "m0" in ins.w: ev.append(("m0_w", {"m0"}, 0,0,None))
    if ins.wide_store: ev.append(("wide_st", set(ins.wide_store),0,0,None))
    return ev

def age(state, n):
    return [(k,r,a+n,p,e) for (k,r,a,p,e) in state if a+n < 13]

def pad_hazards(lines, verbose=False):
    out=[]; state=[]; snaps={}; seen=set(); dead=False; nn=0
    for text in lines:
        ins = Ins(text)
        if ins.label:
            seen.add(ins.label)
            st = [] if dead else state
            state = st + snaps.pop(ins.label, [])
            dead=False
            out.append(text); continue
        if ins.op is None:
            out.append(text); continue
        n, why = need(state, ins)
        isbr = ins.op.startswith("s_cbranch") or ins.op=="s_branch"
        if isbr and ins.ops[0] in seen:
            rem = 0
            for (k,r,a,p,e) in state:
                lim = {"valu_w":5,"mfma_w":12 if p==8 else 8,"mfma_c":7,"m0_w":1,"dot_w":3,"wide_st":2}[k]
                rem = max(rem, lim-a-1)
            if rem>n: n=rem; why="loop flush"
        if n>0:
            out.append(f"    s_nop {n-1}")
            nn+=1
            state = age(state, n)
        out.append(text)
        step = 1
        if ins.op=="s_nop": step = int(ins.ops[0],0)+1
        state = age(state, step)
        state += events(ins)
        if isbr and ins.ops[0] not in seen:
            snaps.setdefault(ins.ops[0], []).extend(state)
        if ins.op in ("s_branch","s_endpgm"): dead=True
    return out

def resolve_waits(lines):
    out=[]; st={"vm":[0,0],"lg":[0,0]}
    tags={}; stack=[]
    for text in lines:
        t=text.strip()
        if t.startswith("@optb"):
            stack.append(({k:list(x) for k,x in st.items()}, dict(tags))); continue
        if t.startswith("@opte"):
            st, tags = stack.pop(); continue
        if t.startswith("@wvm") or t.startswith("@wlg"):
            k=t[2:4]; names=t.split()[1:]
            seq=max(tags[n][1] for n in names)
            for n in names: assert tags[n][0]==k, (t, n)
            if seq<=st[k][1]: continue
            n=st[k][0]-seq
            cap=63 if k=="vm" else 15
            if n>cap: n=cap
            st[k][1]=st[k][0]-n
            out.append(f"    s_waitcnt {'vmcnt' if k=='vm' else 'lgkmcnt'}({n})")
            continue
        code=t.split(";")[0].strip()
        op=code.split()[0] if code else ""
        k=None
        if op.startswith("buffer_") or op.startswith("global_"): k="vm"
        elif op.startswith("ds_"): k="lg"
        if k:
            st[k][0]+=1
            m=re.search(r";@(\S+)", t)
            if m: tags[m.group(1)]=(k, st[k][0])
        if op=="s_waitcnt":
            for kk,nm in (("vm","vmcnt"),("lg","lgkmcnt")):
                m=re.search(nm+r"\((\d+)\)", code)
                if m: st[kk][1]=max(st[kk][1], st[kk][0]-int(m.group(1)))
        out.append(text)
    return out

def weave(slots, side, start=0, end=None):
    if end is None: end=len(slots)
    n=end-start
    for i,it in enumerate(side):
        k=start+(i*n)//len(side)
        slots[k].extend(it if isinstance(it,list) else [it])

class Asm:
    def __init__(self):
        self.L=[]; self.uid=0
    def __call__(self, s):
        if isinstance(s,list):
            for x in s: self(x)
            return
        for ln in s.split("\n"):
            ln=ln.strip()
            if not ln: continue
            self.L.append(ln if ln.endswith(":") else "    "+ln)
    def label(self, base):
        self.uid+=1; return f"L{base}_{self.uid}"
    def text(self):
        return "\n".join(pad_hazards(resolve_waits(self.L)))+"\n"
def v(a,n=1): return f"v{a}" if n==1 else f"v[{a}:{a+n-1}]"
def s(a,n=1): return f"s{a}" if n==1 else f"s[{a}:{a+n-1}]"
```

```python
import sys, struct
from asmlib import *
NAME = "interleave_layers__grouped_kv_mqa__dense_activation_silu__prompt"
KB=1024; MB=1024*1024
WQF=0; WOF=512*KB; W1F=1*MB; W2F=W1F+1792*KB; WKVF=W2F+1792*KB
CSQ=WKVF+32*KB; CSKV=CSQ+16*512; CS1=CSKV+512
KVT=2112; KVH=32*KVT
KVI=WKVF+128*KB
KVF=KVI+4*KVH+((-4*KVH)%4096)
GBASE=6*MB; LOFF=512*KB
O_=0; X1_=64*KB; XA_=128*KB; H_=192*KB; S1_=416*KB; SA_=432*KB; FL_=448*KB; XID_=FL_+2048; DUM_=480*KB
WS_SIZE=0x10000000
LOG2E=1.4426950408889634
def f2u(x): return struct.unpack("<I", struct.pack("<f", x))[0]
ONES=0x3F803F80
WSR="s[4:7]"
LP=0; LR=KVH; LC=2*KVH; CST=7168; LDS_TOTAL=163840
STAMP=False; TS=200*MB
STAG=6
def R(n,c=4):
    if n>=256: return f"a{n-256}" if c==1 else f"a[{n-256}:{n-256+c-1}]"
    return v(n,c)
def mf(d,A,B,c=None):
    return f"v_mfma_f32_32x32x16_bf16 {R(d,16)}, {R(A)}, {R(B)}, {R(d,16) if c is None else c}"

def k_prep(a):
    sW=16; vL16=1; vL4=2
    a(f"s_cmp_ge_u32 s2, 256\ns_cbranch_scc1 {a.endl}")
    a("s_load_dwordx2 s[4:5], s[0:1], 80")
    ptrs=[(0,8,2*MB),(8,20,512*KB),(16,24,16*KB),(24,28,16*KB),(32,32,512*KB),(48,36,1792*KB),(56,40,1792*KB)]
    for off, sb, nb in ptrs: a(f"s_load_dwordx2 s[{sb}:{sb+1}], s[0:1], {off}")
    a(f"""v_lshlrev_b32 v44, 4, v0
    v_lshrrev_b32 v1, 6, v0
    v_readfirstlane_b32 s{sW}, v1
    v_and_b32 v0, 63, v0
    v_lshlrev_b32 v{vL16}, 4, v0
    v_lshlrev_b32 v{vL4}, 2, v0
    s_mov_b32 s6, {WS_SIZE}
    s_mov_b32 s7, 0x20000""")
    for off, sb, nb in ptrs: a(f"s_mov_b32 s{sb+2}, {nb}\ns_mov_b32 s{sb+3}, 0x20000")
    a("s_waitcnt lgkmcnt(0)")
    a(f"""s_lshl_b32 s44, s2, 3
    s_add_u32 s44, s44, s{sW}
    s_lshl_b32 s45, s44, 10
    buffer_load_dwordx4 v[4:7], v{vL16}, s[8:11], s45 offen
    v_mov_b32 v3, {ONES:#x}
    s_lshr_b32 s46, s44, 5
    s_and_b32 s47, s44, 31
    v_lshrrev_b32 v10, 5, v0
    v_lshlrev_b32 v10, 2, v10
    v_bfe_u32 v11, v0, 2, 2
    v_add_u32 v10, v10, v11
    v_bfe_u32 v11, v0, 4, 1
    v_and_b32 v12, 3, v0
    s_lshl_b32 s48, s{sW}, 12
    """)
    Lw1=a.label("w1"); Lwq=a.label("wq"); Lkv=a.label("kv"); Lpl=a.label("pl"); Lx=a.label("x"); Lcs=a.label("cs"); Lgen=a.label("gen"); Lz=a.label("z"); Lz2=a.label("z2")
    a(f"""s_cmp_lt_u32 s2, 56
    s_cbranch_scc1 {Lw1}
    s_cmp_lt_u32 s2, 72
    s_cbranch_scc1 {Lwq}
    s_cmp_eq_u32 s2, 72
    s_cbranch_scc1 {Lkv}
    s_cmp_lt_u32 s2, 77
    s_cbranch_scc1 {Lz2}
    s_cmp_lt_u32 s2, 80
    s_cbranch_scc1 {Lx}
    s_cmp_lt_u32 s2, 224
    s_cbranch_scc1 {Lpl}
    v_mov_b32 v16, 0
    v_mov_b32 v17, 0
    v_mov_b32 v18, 0
    v_mov_b32 v19, 0
    s_sub_u32 s50, s2, 224
    s_lshl_b32 s50, s50, 20
    s_lshr_b32 s51, s{sW}, 2
    s_lshl_b32 s51, s51, 19
    s_add_u32 s50, s50, s51
    s_and_b32 s51, s{sW}, 3
    s_lshl_b32 s51, s51, 10
    s_add_u32 s50, s50, s51
    s_add_u32 s50, s50, {GBASE+FL_}
    buffer_store_dwordx4 v[16:19], v{vL16}, {WSR}, s50 offen
    s_branch {Lx}
    {Lz2}:
    v_mov_b32 v16, 0
    v_mov_b32 v17, 0
    v_mov_b32 v18, 0
    v_mov_b32 v19, 0
    s_sub_u32 s50, s2, 73
    s_lshl_b32 s50, s50, 13
    s_add_u32 s50, s50, {KVF}
    buffer_store_dwordx4 v[16:19], v44, {WSR}, s50 offen
    s_branch {Lx}""")
    def colsum_job(srd, stride, cbreg, dstbase, csbase):
        a(f"""v_lshrrev_b32 v13, 2, v0
        s_mov_b32 s49, {stride}
        v_mul_lo_u32 v13, s49, v13
        v_lshl_add_u32 v13, v12, 4, v13
        s_mul_i32 s50, s{sW}, {64*stride}
        s_lshl_b32 s51, s{cbreg}, 6
        s_add_u32 s50, s50, s51""")
        for i in range(4):
            a(f"s_add_u32 m0, s48, {i*1024}\nbuffer_load_dwordx4 v13, {srd}, s50 offen lds\ns_add_u32 s50, s50, {16*stride}")
        a(f"""s_lshl_b32 s52, s{cbreg}, 15
        s_add_u32 s52, s52, {dstbase}
        s_lshl_b32 s53, s{cbreg}, 9
        s_add_u32 s53, s53, {csbase}
        s_branch {Lgen}""")
    a(f"{Lw1}:"); a("s_mov_b32 s54, s2"); colsum_job("s[36:39]", 3584, 54, W1F, CS1)
    a(f"{Lwq}:"); a("s_sub_u32 s54, s2, 56"); colsum_job("s[20:23]", 1024, 54, WQF, CSQ)
    a(f"{Lgen}:")
    a(f"""v_lshlrev_b32 v14, 6, v10
    v_lshl_add_u32 v14, v11, 5, v14
    v_lshl_add_u32 v14, v12, 3, v14
    v_add_u32 v14, s48, v14
    s_waitcnt vmcnt(0)""")
    for i in range(4):
        a(f"ds_read_b64_tr_b16 {v(16+4*i,2)}, v14 offset:{i*1024}\nds_read_b64_tr_b16 {v(18+4*i,2)}, v14 offset:{i*1024+512}")
    a(f"s_branch {Lcs}")
    a(f"{Lkv}:")
    a(f"""s_lshl_b32 s50, s{sW}, 11
    s_mov_b32 m0, s48
    buffer_load_dwordx4 v{vL16}, s[24:27], s50 offen lds
    buffer_load_dwordx4 v{vL16}, s[24:27], s50 offen offset:1024 lds
    s_add_u32 m0, s48, 2048
    buffer_load_dwordx4 v{vL16}, s[28:31], s50 offen lds
    buffer_load_dwordx4 v{vL16}, s[28:31], s50 offen offset:1024 lds
    v_lshlrev_b32 v14, 5, v10
    v_lshl_add_u32 v14, v11, 11, v14
    v_lshl_add_u32 v14, v12, 3, v14
    v_add_u32 v14, s48, v14
    s_mov_b32 s52, {WKVF}
    s_mov_b32 s53, {CSKV}
    s_waitcnt vmcnt(0)""")
    for i in range(4):
        a(f"ds_read_b64_tr_b16 {v(16+4*i,2)}, v14 offset:{i*512}\nds_read_b64_tr_b16 {v(18+4*i,2)}, v14 offset:{i*512+256}")
    a(f"{Lcs}:")
    a(f"""s_add_u32 s52, s52, s48
    v_mov_b32 v15, 0
    s_waitcnt lgkmcnt(0)""")
    for i in range(4): a(f"buffer_store_dwordx4 {v(16+4*i,4)}, v{vL16}, {WSR}, s52 offen offset:{i*1024}")
    for i in range(16): a(f"v_dot2_f32_bf16 v15, v{16+i}, v3, v15")
    a(f"""s_lshl_b32 s55, s{sW}, 8
    v_add_u32 v13, s55, v{vL4}
    ds_write_b32 v13, v15 offset:32768
    s_waitcnt lgkmcnt(0)
    s_barrier
    s_cmp_lg_u32 s{sW}, 0
    s_cbranch_scc1 {Lx}""")
    for i in range(8): a(f"ds_read_b32 v{32+i}, v{vL4} offset:{32768+i*256}")
    a("s_waitcnt lgkmcnt(0)")
    for i in range(1,8): a(f"v_add_f32 v32, v32, v{32+i}")
    a(f"""v_mov_b32 v33, v32
    v_permlane32_swap_b32 v32, v33
    v_add_f32 v32, v32, v33
    v_cvt_pk_bf16_f32 v33, v32, v32
    v_and_b32 v33, 0xffff0000, v33
    v_sub_f32 v33, v32, v33
    v_cvt_pk_bf16_f32 v32, v32, v33
    v_cmp_gt_u32 vcc, 32, v0
    v_cndmask_b32 v32, 0, v32, vcc
    v_mov_b32 v33, v32
    v_lshlrev_b32 v13, 3, v0
    buffer_store_dwordx2 v[32:33], v13, {WSR}, s53 offen
    s_branch {Lx}""")
    Lw2=a.label("w2"); Lp2=a.label("p2")
    a(f"{Lpl}:")
    a(f"""v_lshrrev_b32 v13, 2, v0
    v_lshlrev_b32 v13, 10, v13
    v_lshl_add_u32 v13, v12, 4, v13
    s_sub_u32 s54, s2, 80
    s_lshl_b32 s51, s{sW}, 7
    s_mov_b32 m0, s48
    s_cmp_ge_u32 s54, 32
    s_cbranch_scc1 {Lw2}
    s_lshl_b32 s50, s54, 14
    s_add_u32 s50, s50, s51
    buffer_load_dwordx4 v13, s[32:35], s50 offen lds
    s_add_u32 m0, s48, 1024
    s_add_u32 s50, s50, 64
    buffer_load_dwordx4 v13, s[32:35], s50 offen lds
    s_lshl_b32 s52, s{sW}, 16
    s_lshl_b32 s54, s54, 10
    s_add_u32 s52, s52, s54
    s_add_u32 s52, s52, {WOF}
    s_add_u32 s53, s52, {32*KB}
    s_branch {Lp2}
    {Lw2}:
    s_sub_u32 s54, s54, 32
    s_lshl_b32 s50, s54, 14
    s_add_u32 s50, s50, s51
    buffer_load_dwordx4 v13, s[40:43], s50 offen lds
    s_add_u32 m0, s48, 1024
    s_add_u32 s50, s50, 64
    buffer_load_dwordx4 v13, s[40:43], s50 offen lds
    s_mul_i32 s52, s{sW}, {224*KB}
    s_lshl_b32 s54, s54, 10
    s_add_u32 s52, s52, s54
    s_add_u32 s52, s52, {W2F}
    s_add_u32 s53, s52, {112*KB}
    {Lp2}:
    v_lshlrev_b32 v14, 6, v10
    v_lshl_add_u32 v14, v11, 5, v14
    v_lshl_add_u32 v14, v12, 3, v14
    v_add_u32 v14, s48, v14
    s_waitcnt vmcnt(0)""")
    for i in range(2):
        a(f"ds_read_b64_tr_b16 {v(16+4*i,2)}, v14 offset:{i*1024}\nds_read_b64_tr_b16 {v(18+4*i,2)}, v14 offset:{i*1024+512}")
    a(f"""s_waitcnt lgkmcnt(0)
    buffer_store_dwordx4 v[16:19], v{vL16}, {WSR}, s52 offen
    buffer_store_dwordx4 v[20:23], v{vL16}, {WSR}, s53 offen""")
    a(f"{Lx}:")
    a(f"""s_waitcnt vmcnt(0)
    v_mov_b32 v40, 0
    v_mov_b32 v41, 0""")
    for i in range(4):
        a(f"v_dot2_f32_bf16 v40, v{4+i}, v3, v40\nv_dot2_f32_bf16 v41, v{4+i}, v{4+i}, v41")
    a(f"v_add_f32_dpp v40, v40, v40 quad_perm:[1,0,3,2] row_mask:0xf bank_mask:0xf\nv_add_f32_dpp v41, v41, v41 quad_perm:[1,0,3,2] row_mask:0xf bank_mask:0xf")
    a(f"""v_lshrrev_b32 v42, 1, v0
    v_lshlrev_b32 v42, 10, v42
    v_and_b32 v43, 1, v0
    v_lshl_add_u32 v42, v43, 3, v42
    s_lshr_b32 s49, s46, 1
    s_lshl_b32 s49, s49, 20
    s_and_b32 s46, s46, 1
    s_lshl_b32 s51, s47, 4
    s_add_u32 s49, s49, s51
    s_lshl_b32 s50, s46, 15
    s_add_u32 s50, s50, s49
    s_add_u32 s50, s50, {GBASE+XA_}
    buffer_store_dwordx2 v[4:5], v42, {WSR}, s50 offen
    buffer_store_dwordx2 v[6:7], v42, {WSR}, s50 offen offset:512
    v_cmp_eq_u32 vcc, 1, v43
    v_cndmask_b32 v40, v40, v41, vcc
    v_lshrrev_b32 v42, 3, v0
    v_lshlrev_b32 v42, 10, v42
    v_lshl_add_u32 v42, v43, 9, v42
    v_bfe_u32 v43, v0, 1, 2
    v_lshl_add_u32 v42, v43, 2, v42
    s_lshl_b32 s50, s46, 13
    s_add_u32 s50, s50, s49
    s_add_u32 s50, s50, {GBASE+SA_}
    buffer_store_dword v40, v42, {WSR}, s50 offen""")

sW=16; sG=17; sJ=18
sOwn=20; sQtr=21; sFlS=22; sFlP=23; sStS=24; sStL=25; sHs=[26,27]; sHl=28; sPure=29; sBud=30
sONE=32; s7=34; s16=38; sWQ=[42,43]; sW2=[44,45]; sW1=[46,47]; sKVd=48; sKVl=49
vL16=1; vL16x=2; vL4=3; vOnes=4; vOne=5; vRs=[6,7]; vBX=8; vP=14; XR=[16,20]; Q=[24,28]
ACC=[32,64]; T=96; CS1R=120; vA=124
A0=256
def W1R(c,ks): return A0+128*c+4*ks
def W2R(i):
    if i<32: return 128+4*i
    i-=32; return A0+128*(i%2)+4*(i//2)
def WQR(c,ks): return A0+64+128*c+4*ks
def WKR(ks): return A0+48+4*ks if ks<4 else A0+176+4*(ks-4)
def HWR(i):
    i%=16; return A0+96+4*i if i<8 else A0+224+4*(i-8)
BQ=[128,160]; SQ=[192,200]; CSK=208; CSQR=210; OB=224

class M:
    def __init__(s,a): s.a=a; s.ool=[]; s.nst=0; s.stl=0
    def stamp(s,L,name):
        if STAMP and L==s.stl and s.nst<17:
            s.nst+=1; s.a.stamps.append(name)
            return [f"s_memtime s[{62+2*s.nst}:{63+2*s.nst}]"]
        return []
    def loads(s, regs, voff, sb, const, st, tag, fl="", w=4):
        out=[]
        for i,r in enumerate(regs):
            it=[]
            if i%4==0: it.append(f"s_add_u32 s{st}, s{sb}, {const+i*1024}")
            it.append(f"buffer_load_dwordx4 {R(r)}, v{voff}, {WSR}, s{st} offen offset:{(i%4)*1024} {fl} ;@{tag}{i}")
            out.append(it)
        return out
    def dmas(s, n, voff, sb, const, sl, lconst, st, tag, fl=""):
        out=[]
        for i in range(n):
            it=[]
            if i%4==0: it+= [f"s_add_u32 m0, s{sl}, {lconst+i*1024}", f"s_add_u32 s{st}, s{sb}, {const+i*1024}"]
            it.append(f"buffer_load_dwordx4 v{voff}, {WSR}, s{st} offen offset:{(i%4)*1024} {fl} lds ;@{tag}{i}")
            out.append(it)
        return out
    def pub(s, stores, one=False):
        Ls=s.a.label("slow"); Lb=s.a.label("back")
        s.ool += [f"{Ls}:"] + (["s_mov_b64 exec, 1"] if one else []) + [x.replace("{F}","sc1").split(";@")[0] for x in stores] + (["s_mov_b64 exec, -1"] if one else []) + [f"s_branch {Lb}"]
        return [f"s_cmp_eq_u32 s{sPure}, 0", f"s_cbranch_scc1 {Ls}"]+[x.replace("{F}","") for x in stores]+[f"{Lb}:"]
    def flag(s, L, step, *tags):
        return [f"@wvm {' '.join(tags)}", f"s_add_u32 s50, s{sFlS}, {L*LOFF}"] + s.pub([f"buffer_store_byte v{vOne}, off, {WSR}, s50 offset:{step*128} {{F}}"], one=True)
    def poll_i(s, L, step):
        return [f"s_add_u32 s51, s{sFlP}, {L*LOFF}", f"buffer_load_dwordx2 {v(vP,2)}, off, {WSR}, s51 offset:{step*128} sc1 ;@poll"]
    def poll_c(s, L, step):
        Lr=s.a.label("retry"); Lb=s.a.label("back")
        chk=[f"v_and_b32 v{vP}, v{vP}, v{vP+1}", f"v_readfirstlane_b32 s52, v{vP}", "s_cmp_eq_u32 s52, 0x01010101"]
        s.ool += [f"{Lr}:", f"s_sub_u32 s{sBud}, s{sBud}, 1", f"s_cmp_lt_i32 s{sBud}, 0", f"s_cbranch_scc1 {Lb}",
                  f"buffer_load_dwordx2 {v(vP,2)}, off, {WSR}, s51 offset:{step*128} sc1", "s_waitcnt vmcnt(0)"]+chk+[f"s_cbranch_scc1 {Lb}", f"s_branch {Lr}"]
        return ["@wvm poll"]+chk+[f"s_cbranch_scc0 {Lr}", f"{Lb}:"]
    def kvpoll_i(s, L, t):
        return [f"v_lshlrev_b32 v{vP+1}, 7, v0", f"s_mov_b32 s51, {KVF+(2*L+t)*8192}", f"buffer_load_dword v{vP}, v{vP+1}, {WSR}, s51 offen sc1 ;@poll"]
    def kvpoll_c(s):
        Lr=s.a.label("retry"); Lb=s.a.label("back")
        s.ool += [f"{Lr}:", f"s_sub_u32 s{sBud}, s{sBud}, 1", f"s_cmp_lt_i32 s{sBud}, 0", f"s_cbranch_scc1 {Lb}",
                  f"buffer_load_dword v{vP}, v{vP+1}, {WSR}, s51 offen sc1", "s_waitcnt vmcnt(0)", f"v_cmp_ne_u32 vcc, 1, v{vP}", f"s_cbranch_vccz {Lb}", f"s_branch {Lr}"]
        return ["@wvm poll", f"v_cmp_ne_u32 vcc, 1, v{vP}", f"s_cbranch_vccnz {Lr}", f"{Lb}:"]
    def red_addr(s, buf):
        if buf=="C": return [f"v_add_u32 v{vA+i}, s{s7+i}, v{vL16}" for i in range(4)]
        if buf=="P": return [f"v_add_u32 v{vA+i}, s{s16+i}, v{vL16}" for i in range(4)]
        o=[]
        for i in range(4): o+=[f"s_add_u32 s53, s{s16+i}, {LR}", f"v_add_u32 v{vA+i}, s53, v{vL16}"]
        return o
    def red_write(s, acc):
        return [f"ds_write_b128 v{vA}, {v(acc+8+4*i,4)} offset:{i*1024} ;@rw" for i in range(6)]
    def red_read(s):
        return [f"ds_read_b128 {v(T+4*i,4)}, v{vA+1+i//2} offset:{i*1024} ;@rr{i}" for i in range(6)]
    def red_add(s, acc):
        o=[]
        for i in range(6):
            o.append(f"@wlg rr{i}")
            for h in range(2): o.append(f"v_pk_add_f32 {v(acc+4*(i%2)+2*h,2)}, {v(acc+4*(i%2)+2*h,2)}, {v(T+4*i+2*h,2)}")
        return o
    def sum8(s, r):
        return [f"v_pk_add_f32 {v(r,2)}, {v(r,2)}, {v(r+4,2)}", f"v_pk_add_f32 {v(r+2,2)}, {v(r+2,2)}, {v(r+6,2)}", f"v_pk_add_f32 {v(r,2)}, {v(r,2)}, {v(r+2,2)}", f"v_add_f32 v{r}, v{r}, v{r+1}"]
    def bext(s, p, t):
        return [f"v_mul_f32 v{t}, {f2u(-1/512):#x}, v{p}", f"v_cvt_pk_bf16_f32 v{vBX+2}, v{t}, v{t}", f"v_and_b32 v{vBX+3}, 0xffff0000, v{vBX+2}",
                f"v_sub_f32 v{t}, v{t}, v{vBX+3}", f"v_cvt_pk_bf16_f32 v{vBX+3}, v{t}, v{t}"]
    def stat_rd(s, r, slot, tag):
        return [f"v_add_u32 v{r+3}, {LC}, v{vL4}"]+[f"ds_read_b32 v{r+i}, v{r+3} offset:{i*CST+6144+256*slot} ;@{tag}" for i in range(4)]
    def stat_wr(s, p, t, slot):
        return [f"v_add_u32 v{t}, s{s7}, v{vL4}", f"ds_write_b32 v{t}, v{p} offset:{6144+256*slot} ;@rw"]
    def rstd(s, r, dst):
        return [f"v_pk_add_f32 {v(r,2)}, {v(r,2)}, {v(r+2,2)}", f"v_add_f32 v{r}, v{r}, v{r+1}", f"v_mov_b32 v{r+1}, v{r}",
                f"v_permlane32_swap_b32 v{r}, v{r+1}", f"v_mul_f32 v{r+2}, {f2u(1/512):#x}, v{r}", f"v_mul_f32 v{r+1}, {f2u(1/512):#x}, v{r+1}",
                f"v_fma_f32 v{r+1}, -v{r+2}, v{r+2}, v{r+1}", f"v_max_f32 v{r+1}, 0, v{r+1}", f"v_add_f32 v{r+1}, {f2u(1e-5):#x}, v{r+1}", f"v_rsq_f32 v{dst}, v{r+1}"]
    def emit_x(s, acc, t, xoff, soff, tmp):
        o=[f"v_cvt_pk_bf16_f32 v{XR[t]+i}, v{acc+2*i}, v{acc+2*i+1}" for i in range(4)]
        o+=[f"s_add_u32 s53, s{sOwn}, {xoff+t*32*KB}", f"s_add_u32 s54, s{sStS}, {soff+t*8*KB}"]
        for i in range(4):
            o+=[f"v_dot2_f32_bf16 v{tmp}, v{XR[t]+i}, v{vOnes}, {'0' if i==0 else v(tmp)}", f"v_dot2_f32_bf16 v{tmp+1}, v{XR[t]+i}, v{XR[t]+i}, {'0' if i==0 else v(tmp+1)}"]
        o+=[f"v_permlane32_swap_b32 v{tmp}, v{tmp+1}", f"v_add_f32 v{tmp}, v{tmp}, v{tmp+1}"]
        o+=s.pub([f"buffer_store_dwordx4 {v(XR[t],4)}, v{vL16}, {WSR}, s53 offen {{F}}", f"buffer_store_dword v{tmp}, v{vL16}, {WSR}, s54 offen {{F}} ;@xst"])
        return o
    def qkv_loads(s, L, t):
        return s.loads([SQ[t],SQ[t]+4], vL16, sStL, L*LOFF+SA_+t*8*KB, 55, f"sq{t}_", "sc1") + s.loads([BQ[t]+4*i for i in range(8)], vL16, sQtr, L*LOFF+XA_+t*32*KB, 55, f"bq{t}_", "sc1")
    def cs_loads(s):
        return [[f"v_lshrrev_b32 v{vA+3}, 1, v{vL16x}", f"s_lshr_b32 s55, s{sWQ[0]}, 15", f"s_lshl_b32 s55, s55, 9", f"s_add_u32 s55, s55, {CSQ}",
                f"buffer_load_dwordx2 {v(CSQR,2)}, v{vA+3}, {WSR}, s55 offen", "s_xor_b32 s55, s55, 512", f"buffer_load_dwordx2 {v(CSQR+2,2)}, v{vA+3}, {WSR}, s55 offen",
                f"v_lshrrev_b32 v{vA+3}, 1, v{vL16}", f"s_mov_b32 s55, {CSKV}", f"buffer_load_dwordx2 {v(CSK,2)}, v{vA+3}, {WSR}, s55 offen ;@csq"]]
    def wkv_loads(s):
        Lk=s.a.label("nokv")
        o=[f"s_cmp_ge_u32 s{sJ}, 2", f"s_cbranch_scc1 {Lk}", "@optb", f"s_lshl_b32 s56, s{sW}, 13"]
        for it in s.loads([WKR(k) for k in range(8)], vL16, 56, WKVF, 55, "wk"): o+=it
        return o+["@opte", f"{Lk}:"]

    def qkv(s, L, t):
        a=s.a; acc=ACC[t]; kacc=ACC[1-t]; sq=SQ[t]
        a(f"@wvm sq{t}_1"); a(s.sum8(sq)); a(s.stat_wr(sq, sq+1, 2+t)); a(s.bext(sq, sq+1))
        Ln=a.label("nkv"); Lv=a.label("v");
        a(f"s_mov_b32 s15, 0\ns_cmp_lg_u32 s{sJ}, {t}\ns_cbranch_scc1 {Ln}\n@optb")
        for ks in range(8):
            a(f"@wvm bq{t}_{ks}"); a(mf(kacc, WKR(ks), BQ[t]+4*ks, "0" if ks==0 else None))
        a(mf(kacc, CSK, vBX+2))
        a(f"v_add_u32 v{vA}, s{s16}, v{vL16}\ns_lshl_b32 s53, s{sW}, 11\nv_add_u32 v{vA+1}, s53, v{vL16}")
        for i in range(4): a(f"ds_write_b128 v{vA}, {v(kacc+4*i,4)} offset:{8192+i*1024}")
        if t==0 and L>0: a(s.flag(L-1, 7, "xst"))
        a(f"s_waitcnt lgkmcnt(0)\ns_barrier\ns_cmp_ge_u32 s{sW}, 2\ns_cbranch_scc1 {Ln}")
        a(s.stat_rd(T, 2+t, "st"))
        for i in range(8): a(f"ds_read_b128 {v(OB+4*i,4)}, v{vA+1} offset:{(i//2)*16384+8192+(i%2)*1024} ;@kr{i}")
        a("@wlg st"); a(s.rstd(T, T+4)); a(f"v_mov_b32 v{T+5}, v{T+4}")
        for i in range(2,8):
            a(f"@wlg kr{i}")
            for h in range(2): a(f"v_pk_add_f32 {v(OB+4*(i%2)+2*h,2)}, {v(OB+4*(i%2)+2*h,2)}, {v(OB+4*i+2*h,2)}")
        for i in range(4): a(f"v_pk_mul_f32 {v(OB+2*i,2)}, {v(OB+2*i,2)}, {v(T+4,2)}")
        for i in range(4): a(f"v_cvt_pk_bf16_f32 v{OB+8+i}, v{OB+2*i}, v{OB+2*i+1}")
        a(f"""s_mul_i32 s53, s{sG}, {KVT}
        s_add_u32 s53, s53, {KVI+(2*L+t)*KVH}
        s_lshl_b32 s15, s{sG}, 8
        s_add_u32 s15, s15, {KVF+(2*L+t)*8192}
        s_cmp_eq_u32 s{sW}, 1
        s_cbranch_scc1 {Lv}
        buffer_store_dwordx4 {v(OB+8,4)}, v{vL16}, {WSR}, s53 offen sc1
        s_branch {Ln}
        {Lv}:
        v_bfe_u32 v{T}, v0, 3, 2
        v_mul_u32_u24 v{T}, 272, v{T}
        v_and_b32 v{T+1}, 7, v0
        v_lshl_add_u32 v{T+1}, v{T+1}, 1, v{T}
        v_lshrrev_b32 v{T+2}, 5, v0
        v_lshl_add_u32 v{T+1}, v{T+2}, 6, v{T+1}""")
        VI=16384+12288
        for r in range(8):
            a(f"{'ds_write_b16' if r%2==0 else 'ds_write_b16_d16_hi'} v{T+1}, v{OB+8+r//2} offset:{VI+(8*(r//4)+r%4)*16}")
        for i in range(4): a(f"v_mov_b32 v{OB+i}, v{vOnes}")
        a(f"""ds_write_b128 v{T}, {v(OB,4)} offset:{VI+256}
        s_waitcnt lgkmcnt(0)
        ds_read_b128 {v(OB+12,4)}, v{vL16} offset:{VI}
        ds_read_b128 {v(OB+16,4)}, v{vL16} offset:{VI+1024}
        s_waitcnt lgkmcnt(0)
        buffer_store_dwordx4 {v(OB+12,4)}, v{vL16}, {WSR}, s53 offen offset:1024 sc1
        s_mov_b64 exec, 15
        buffer_store_dwordx4 {v(OB+16,4)}, v{vL16}, {WSR}, s53 offen offset:2048 sc1
        s_mov_b64 exec, -1
        s_add_u32 s15, s15, 128
        @opte
        {Ln}:""")
        a(s.red_addr("C" if t==0 else "P"))
        for ks in range(8):
            a(f"@wvm bq{t}_{ks}")
            for c in range(2): a(mf(acc+16*c, WQR(c,ks), BQ[t]+4*ks, "0" if ks==0 else None))
            if t==0 and L>0 and ks==2: a(s.flag(L-1, 7, "xst"))
        a(mf(acc, CSQR, vBX+2)); a(mf(acc+16, CSQR, vBX))
        if t==0 and L>0: a(s.poll_i(L-1, 7))
        if t==1: a(s.kvpoll_i(L,0))
        a(s.red_write(acc)); a("@wlg rw\ns_barrier")
        a(s.stat_rd(sq+4, 2+t, "st")); a(s.red_read())
        Lk=a.label("nkf")
        a(f"""s_cmp_eq_u32 s15, 0
        s_cbranch_scc1 {Lk}
        @optb
        s_waitcnt vmcnt({0 if (t==0 and L==0) else 1})
        s_mov_b64 exec, 1
        buffer_store_dword v{vOne}, off, {WSR}, s15 sc1
        s_mov_b64 exec, -1
        @opte
        {Lk}:""")
        if t==0 and L>0:
            a(s.poll_c(L-1, 7)); a(s.qkv_loads(L,1))
        a("@wlg st"); a(s.rstd(sq+4, sq)); a(f"v_mul_f32 v{sq}, {f2u(0.25*LOG2E):#x}, v{sq}\nv_mov_b32 v{sq+1}, v{sq}")
        a(s.red_add(acc))
        for i in range(4): a(f"v_pk_mul_f32 {v(acc+2*i,2)}, {v(acc+2*i,2)}, {v(sq,2)}")
        for i in range(4): a(f"v_cvt_pk_bf16_f32 v{Q[t]+i}, v{acc+2*i}, v{acc+2*i+1}")
        a(s.stamp(L,f"qkv{t}"))

    def att_fin(s, L, t, O, W):
        a=s.a; Lf=a.label("fb"); Lb=a.label("fbback"); L1=a.label("p1"); L2=a.label("p2")
        sc=[f"v_rcp_f32 v{O+10}, v{O+8}", f"v_mov_b32 v{O+11}, v{O+10}"]+[f"v_pk_mul_f32 {v(O+2*i,2)}, {v(O+2*i,2)}, {v(O+10,2)}" for i in range(4)]
        o=sc+[f"v_subrev_u32 v{O+9}, {f2u(2.0**-60):#x}, v{O+8}",
           f"v_pk_add_f32 {v(O+12,2)}, {v(O,2)}, {v(O+2,2)}", f"v_pk_add_f32 {v(O+14,2)}, {v(O+4,2)}, {v(O+6,2)}", f"v_pk_add_f32 {v(O+12,2)}, {v(O+12,2)}, {v(O+14,2)}",
           f"v_cmp_lt_u32 vcc, {f2u(2.0**100)-f2u(2.0**-60):#x}, v{O+9}", f"v_add_f32 v{O+12}, v{O+12}, v{O+13}", f"s_mov_b32 s53, 0x207",
           f"v_cmp_class_f32 s[54:55], v{O+12}, s53", "s_or_b64 vcc, vcc, s[54:55]", f"s_cbranch_vccnz {Lf}", f"{Lb}:"]
        o+=[f"v_cvt_pk_bf16_f32 v{O+12+i}, v{O+2*i}, v{O+2*i+1}" for i in range(4)]
        o+=[f"s_add_u32 s53, s{sOwn}, {L*LOFF+O_+t*32*KB}"]+s.pub([f"buffer_store_dwordx4 {v(O+12,4)}, v{vL16}, {WSR}, s53 offen {{F}} ;@ost{t}"])
        S=W; K=W+16; V=W+20; m=W+28; va=W+29
        f=[f"{Lf}:", f"v_mov_b32 v{m}, 0xff800000", f"s_mov_b32 s53, {KVI+2*L*KVH}", "s_mov_b32 s54, 64", f"{L1}:",
           f"buffer_load_dwordx4 {v(K,4)}, v{vL16}, {WSR}, s53 offen sc1", "s_waitcnt vmcnt(0)", mf(S,K,Q[t],"0")]
        f+=[f"v_max_f32 v{m}, v{m}, v{S+i}" for i in range(16)]
        f+=[f"s_add_u32 s53, s53, {KVT}", "s_sub_u32 s54, s54, 1", "s_cmp_lg_u32 s54, 0", f"s_cbranch_scc1 {L1}",
            f"v_mov_b32 v{va}, v{m}", f"v_permlane32_swap_b32 v{m}, v{va}", f"v_max_f32 v{m}, v{m}, v{va}",
            f"v_and_b32 v{va}, 31, v0", f"v_min_u32 v{va}, 16, v{va}", f"v_lshlrev_b32 v{va}, 4, v{va}", f"v_lshrrev_b32 v{va+1}, 5, v0", f"v_mul_u32_u24 v{va+1}, 272, v{va+1}", f"v_add_u32 v{va}, v{va}, v{va+1}"]
        f+=[f"v_mov_b32 v{O+i}, 0" for i in range(16)]
        f+=[f"s_mov_b32 s53, {KVI+2*L*KVH}", "s_mov_b32 s54, 64", f"{L2}:",
            f"buffer_load_dwordx4 {v(K,4)}, v{vL16}, {WSR}, s53 offen sc1", f"buffer_load_dwordx4 {v(V,4)}, v{va}, {WSR}, s53 offen offset:1024 sc1",
            f"buffer_load_dwordx4 {v(V+4,4)}, v{va}, {WSR}, s53 offen offset:{1024+544} sc1", "s_waitcnt vmcnt(0)", mf(S,K,Q[t],"0")]
        f+=[f"v_sub_f32 v{S+i}, v{S+i}, v{m}" for i in range(16)]+[f"v_exp_f32 v{S+i}, v{S+i}" for i in range(16)]
        f+=[f"v_smfmac_f32_32x32x32_bf16 {v(O,16)}, {v(V+4*u,4)}, {v(S+8*u,8)}, v{vA}" for u in range(2)]
        f+=[f"s_add_u32 s53, s53, {KVT}", "s_sub_u32 s54, s54, 1", "s_cmp_lg_u32 s54, 0", f"s_cbranch_scc1 {L2}"]+sc+[f"s_branch {Lb}"]
        s.ool+=f
        return o
    def kv_dma(s, L, t):
        lb = LR if t==0 else LP
        out=[]
        for r in range(4): out+=s.dmas(4, vL16, sKVd, KVI+(2*L+t)*KVH+r*16384, sKVd, lb+r*16384, 57, f"kv{t}_{r}_", "sc1")
        out+=s.dmas(1, vL16, sKVl, KVI+(2*L+t)*KVH+65536, sKVl, lb+65536, 57, f"kv{t}_4_", "sc1")
        return out
    def att(s, L):
        a=s.a
        S=[32,48]; O=[64,80]; KR=[96,100]; VR=[104,112]; IDX=vA; vK=vA+1; vV=vA+2
        jobs=[(t,k) for k in range(32) for t in range(2)]+[(0,k) for k in range(32,32+STAG)]+[(t,k) for k in range(32+STAG,64) for t in range(2)]+[(1,k) for k in range(32,32+STAG)]
        N=len(jobs)
        kap=[0]
        for i in range(1,N): kap.append(kap[-1]+(jobs[i][1]!=jobs[i-1][1]))
        def laddr(k): return (LR+k*KVT) if k<32 else (LP+(k-32)*KVT)
        base={"K":LR,"V":LR}
        def rd(kind, i, u=0):
            ad=laddr(jobs[i][1])+(0 if kind=="K" else 1024+u*544); o=[]
            reg=vK if kind=="K" else vV
            if not (0<=ad-base[kind]<65536):
                nb=laddr(jobs[i][1]); o.append(f"v_add_u32 v{reg}, {(nb-base[kind])&0xffffffff:#x}, v{reg}"); base[kind]=nb
            dst=KR[kap[i]%2] if kind=="K" else VR[kap[i]%2]+4*u
            return o+[f"ds_read_b128 {v(dst,4)}, v{reg} offset:{ad-base[kind]} ;@{kind}{kap[i]}_{u}"]
        def smf(i,u): return [f"@wlg V{kap[i]}_{u}", f"v_smfmac_f32_32x32x32_bf16 {v(O[jobs[i][0]],16)}, {v(VR[kap[i]%2]+4*u,4)}, {v(S[i%2]+8*u,8)}, v{IDX}"]
        def qk(i): return [f"@wlg K{kap[i]}_0", mf(S[i%2], KR[kap[i]%2], Q[jobs[i][0]], "0")]
        def ex(r0,r1): return [f"v_exp_f32 v{r}, v{r}" for r in range(r0,r1)]
        d0=s.kv_dma(L,0); d1=s.kv_dma(L,1)
        a(s.kvpoll_c()); a(s.stamp(L,"kvp"))
        a(d0[:8])
        a(f"""v_mov_b32 v{IDX}, 0xdddddddd
        v_add_u32 v{vK}, {LR}, v{vL16}
        v_and_b32 v{vV}, 31, v0
        v_min_u32 v{vV}, 16, v{vV}
        v_lshlrev_b32 v{vV}, 4, v{vV}
        v_lshrrev_b32 v{vA+3}, 5, v0
        v_mul_u32_u24 v{vA+3}, 272, v{vA+3}
        v_add_u32 v{vV}, v{vV}, v{vA+3}
        v_add_u32 v{vV}, {LR}, v{vV}""")
        for i in range(32): a(f"v_mov_b32 v{O[0]+i}, 0")
        a("@wvm kv0_0_3\ns_barrier"); a(s.stamp(L,"kv0"))
        a(rd("K",0)+rd("V",0,0)+rd("V",0,1)+qk(0))
        sl=[]
        for i in range(N):
            Sa=S[i%2]
            p0=ex(Sa,Sa+2)+(smf(i-1,1) if i>0 else [])+ex(Sa+2,Sa+4)
            p1=(qk(i+1) if i+1<N else [])
            if i+2<N and kap[i+2]!=kap[i+1]: p1+=rd("K",i+2)
            nv = i+1<N and kap[i+1]!=kap[i]
            if nv: p1+=rd("V",i+1,0)
            p1+=ex(Sa+4,Sa+7)
            p2=(rd("V",i+1,1) if nv else [])+ex(Sa+7,Sa+10)+smf(i,0)+ex(Sa+10,Sa+13)
            p3=ex(Sa+13,Sa+16)
            sl+=[p0,p1,p2,p3]
        J=lambda j:4*j
        weave(sl, d0[8:], J(0), J(5))
        sl[J(11)]+=["@wvm kv0_4_0","s_barrier"]
        sl[J(12)]+=s.kvpoll_i(L,1)
        sl[J(16)]+=s.kvpoll_c()
        weave(sl, d1, J(16)+1, J(30))
        if L==0:
            Lr=a.label("retry"); Lb=a.label("back")
            ldx=f"buffer_load_dword v{vP}, v{vP+1}, {WSR}, s51 offen sc1"
            s.ool+=[f"{Lr}:", f"s_sub_u32 s{sBud}, s{sBud}, 1", f"s_cmp_lt_i32 s{sBud}, 0", f"s_cbranch_scc1 {Lb}", ldx, "s_waitcnt vmcnt(0)", f"v_cmp_eq_u32 vcc, 0, v{vP}", f"s_cbranch_vccz {Lb}", f"s_branch {Lr}"]
            sl[J(30)]+=[f"v_and_b32 v{vP+1}, 7, v0", f"v_lshlrev_b32 v{vP+1}, 7, v{vP+1}", f"s_lshl_b32 s51, s{sG}, 20", f"s_add_u32 s51, s51, {GBASE+XID_}", ldx+" ;@poll"]
            sl[J(36)]+=["@wvm poll", f"v_cmp_eq_u32 vcc, 0, v{vP}", f"s_cbranch_vccnz {Lr}", f"{Lb}:", f"v_cmp_ne_u32 vcc, s31, v{vP}", "s_cmp_eq_u64 vcc, 0", f"s_cselect_b32 s{sPure}, 1, 0"]
        w1=[]
        for c in range(2): w1+=s.loads([W1R(c,k) for k in range(32)], vL16, sW1[c], 0, 58, f"w1{c}_")
        weave(sl, w1, J(37), J(80))
        sl[J(60)]+=["@wvm kv1_4_0","s_barrier"]
        sl[J(66)]+=["s_barrier"]
        wo=[]
        for c in range(2): wo+=s.dmas(8, vL16x, sWQ[c], WOF, s16, LR+c*8192, 57, f"wo{c}_")
        weave(sl, wo, J(80), J(92))
        w2=[]
        for c in range(2): w2+=s.loads([W2R(2*k+c) for k in range(12)], vL16x, sW2[c], 0, 58, f"w2{c}_")
        weave(sl, w2, J(92), J(108))
        e0=N-STAG
        sl[J(e0-1)+2]+=s.stamp(L,"a0")+s.att_fin(L,0,O[0],OB)
        sl[J(e0+2)]+=s.flag(L,0,"ost0")
        sl[J(e0+3)]+=s.poll_i(L,0)
        sl[J(N-1)+2]+=s.poll_c(L,0)+sum(s.loads([OB+4*i for i in range(8)], vL16, sQtr, L*LOFF+O_, 55, "ob", "sc1"),[])
        a(sl); a(smf(N-1,1)); a(s.stamp(L,"a1"))
        a(f"s_add_u32 s53, s{s16}, {LR}\nv_add_u32 v6, s53, v{vL16}\n@wvm wo1_7")
        a(s.op_rd(0,6))
        a(s.att_fin(L,1,O[1],32))

    def op_rd(s, i0, i1):
        return [f"ds_read_b128 {v(T+4*(i%6),4)}, v6 offset:{(i%2)*8192+(i//2)*1024} ;@oa{i}" for i in range(i0,i1)]
    def x_fetch(s, L, t):
        return s.loads([OB,OB+4], vL16, sStL, L*LOFF+S1_+t*8*KB, 55, "s1_", "sc1") + s.dmas(8, vL16, sQtr, L*LOFF+X1_+t*32*KB, 19, LP+t*32*KB, 55, f"xd{t}_", "sc1")
    def op(s, L, t):
        a=s.a; acc=ACC[t]
        for i in range(4): a(f"v_lshlrev_b32 v{acc+2*i}, 16, v{XR[t]+i}\nv_and_b32 v{acc+2*i+1}, 0xffff0000, v{XR[t]+i}")
        for i in range(8): a(f"v_mov_b32 v{acc+8+i}, 0")
        a(s.red_addr("C" if t==0 else "R"))
        for i in range(16):
            ks,c=i//2,i%2
            a(f"@wvm ob{ks}\n@wlg oa{i}")
            a(mf(acc+16*c, T+4*(i%6), OB+4*ks, "0" if i==1 else None))
            if i+6<16: a(s.op_rd(i+6,i+7))
            if i==6: a(s.flag(L,1,"ost1") if t==0 else s.flag(L,2,"xst"))
        a(s.poll_i(L,1 if t==0 else 2))
        a(s.red_write(acc)); a("@wlg rw\ns_barrier"); a(s.red_read())
        a(s.poll_c(L,1 if t==0 else 2))
        if t==0: a(s.loads([OB+4*i for i in range(8)], vL16, sQtr, L*LOFF+O_+32*KB, 55, "ob", "sc1"))
        else: a(s.x_fetch(L,0))
        a(s.red_add(acc))
        if t==0: a(s.op_rd(0,6))
        a(s.emit_x(acc, t, L*LOFF+X1_, L*LOFF+S1_, acc+8))
        a(s.stamp(L,f"op{t}"))

    def silu(s, L, t):
        acc=ACC[t]; E=T+16; sc=vA+2*t; out=[]
        for c in range(2):
            for h in range(2):
                b=acc+16*c+8*h
                out+=[f"v_pk_mul_f32 {v(E+2*i,2)}, {v(b+2*i,2)}, {v(sc,2)}" for i in range(4)]
                out+=[f"v_exp_f32 v{E+i}, v{E+i}" for i in range(8)]
                out+=[f"v_pk_add_f32 {v(E+2*i,2)}, {v(E+2*i,2)}, s[{sONE}:{sONE+1}]" for i in range(4)]
                out+=[f"v_rcp_f32 v{E+i}, v{E+i}" for i in range(8)]
                out+=[f"v_pk_mul_f32 {v(E+2*i,2)}, {v(b+2*i,2)}, {v(E+2*i,2)}" for i in range(4)]
                out+=[f"v_cvt_pk_bf16_f32 v{b+i}, v{E+2*i}, v{E+2*i+1}" for i in range(4)]
                out.append([f"s_add_u32 s53, s{sHs[c]}, {L*LOFF+t*112*KB+h*1024}"]+s.pub([f"buffer_store_dwordx4 {v(b,4)}, v{vL16}, {WSR}, s53 offen {{F}} ;@hst{t}"]))
        return out
    def f1_sync(s, t):
        return ["@wvm s1_1"]+s.sum8(OB)+s.stat_wr(OB,OB+1,t)+[f"@wvm xd{t}_7","@wlg rw","s_barrier"]
    def f1(s, L):
        a=s.a
        for t in range(2):
            acc=ACC[t]
            def rd(ks): return [f"ds_read_b128 {v(T+4*(ks%4),4)}, v{vL16} offset:{LP+t*32*KB+ks*1024} ;@xb{ks}"]
            if t==0: a(s.f1_sync(0))
            a(s.stamp(L,f"f1s{t}"))
            st=use=OB+4 if t==0 else OB+4
            a(rd(0)+rd(1)+rd(2))
            sl=[]
            for ks in range(32):
                p=(rd(ks+3) if ks+3<32 else [])+[f"@wlg xb{ks}"]
                if t==0: p.append(f"@wvm w10_{ks} w11_{ks}")
                sl.append(p+[mf(acc, W1R(0,ks), T+4*(ks%4), "0" if ks==0 else None)])
                sl.append([mf(acc+16, W1R(1,ks), T+4*(ks%4), "0" if ks==0 else None)])
            X=s.ftmp[t]
            stat=[s.stat_rd(X,t,"st")]+[["@wlg st"]+s.rstd(X,vRs[t])[:2]]+s.rstd(X,vRs[t])[2:]+s.bext(X,X+1)+[f"v_mul_f32 v{vA+2*t}, {f2u(-LOG2E):#x}, v{vRs[t]}", f"v_mov_b32 v{vA+2*t+1}, v{vA+2*t}"]
            if t==0:
                weave(sl, stat, 0, 10)
                sl[2]+=s.flag(L,3,"xst")
                sl[10]+=s.poll_i(L,3)
                sl[24]+=s.poll_c(L,3)
                weave(sl, s.x_fetch(L,1), 25, 30)
                if L==0:
                    wq=[]
                    for c in range(2): wq+=s.dmas(8, vL16x, sWQ[c], WQF, s16, LR+c*8192, 57, f"wq{c}_")
                    weave(sl, wq, 30, 48)
                sl[56]+=s.f1_sync(1)
                w2=[]
                for c in range(2): w2+=s.loads([W2R(2*k+c) for k in range(12,16)], vL16x, sW2[c], 12*KB, 58, f"w2b{c}_")
                weave(sl, w2, 57, 64)
            else:
                weave(sl, s.silu(L,0), 1, 44)
                weave(sl, stat, 44, 60)
                for k in range(12):
                    for c in range(2):
                        it=s.loads([W2R(32+2*kk+c) for kk in range(12)], vL16x, sW2[c], 16*KB, 58+c, f"w2c{c}_")[k]
                        sl[2*(k+1)+c+1]+=it
                if L==0: sl[36]+=s.wkv_loads()
                sl[56]+=s.flag(L,4,"hst0")
            a(sl)
            a(mf(acc, CS1R, vBX+2)); a(mf(acc+16, CS1R, vBX))
        a(s.stamp(L,"f1e"))
    def f2(s, L):
        a=s.a
        hl=[s.loads([HWR(28*t+k) for k in range(28)], vL16, sHl, L*LOFF+t*112*KB, 55, f"h{t}_", "sc1") for t in range(2)]
        sl=[[x] if isinstance(x,str) else x for x in s.silu(L,1)]
        n=len(sl)
        sl[0]=s.poll_i(L,4)+sl[0]
        sl[n//2]+=s.poll_c(L,4)
        weave(sl, hl[0][:16], n//2+1, n)
        if L==0:
            cp=[[f"s_add_u32 s53, s{s16}, {LR}", f"v_add_u32 v{vA}, s53, v{vL16}", "@wvm wq1_7"]]+[f"ds_read_b128 {R(WQR(c,k))}, v{vA} offset:{c*8192+k*1024} ;@wqr" for c in range(2) for k in range(8)]
            weave(sl, cp, 1, n//2)
        a(sl); a(s.stamp(L,"sil1"))
        for t in range(2):
            acc=ACC[t]; sl=[]
            for ks in range(28):
                w=[f"h{t}_{ks}"]
                if t==0: w+= [f"w2{c}_{ks}" if ks<12 else (f"w2b{c}_{ks-12}" if ks<16 else f"w2c{c}_{ks-16}") for c in range(2)]
                sl.append([f"@wvm {' '.join(w)}", mf(acc, W2R(2*ks), HWR(28*t+ks), "0" if ks==0 else None)])
                sl.append([mf(acc+16, W2R(2*ks+1), HWR(28*t+ks), "0" if ks==0 else None)]+(hl[t][ks+16] if ks+16<28 else []))
            if t==0:
                sl[8]+=s.flag(L,5,"hst1")
                sl[30]+=s.poll_i(L,5)
                sl[44]+=s.poll_c(L,5)
                weave(sl, hl[1][:10], 45, 56)
            elif L==0:
                sl[6]+=s.flag(L,6,"xst")
                sl[30]+=s.poll_i(L,6)
                sl[44]+=s.poll_c(L,6)
                weave(sl, s.cs_loads()+s.qkv_loads(1,0), 45, 56)
            sl[50]+=s.red_addr("C" if t==0 else "P") if not (t==1 and L==0) else []
            a(sl)
            if t==1 and L==0: a(s.red_addr("P"))
            if t==0: a(hl[1][10:16])
            a(s.red_write(acc)); a("@wlg rw\ns_barrier"); a(s.red_read())
            for i in range(4): a(f"v_lshlrev_b32 v{acc+8+2*i}, 16, v{XR[t]+i}\nv_and_b32 v{acc+8+2*i+1}, 0xffff0000, v{XR[t]+i}")
            a(s.red_add(acc))
            for i in range(8): a(f"v_fma_f32 v{acc+i}, v{vRs[t]}, v{acc+i}, v{acc+8+i}")
            if L==0: a(s.emit_x(acc, t, LOFF+XA_, LOFF+SA_, acc+8))
            else:
                x=XR[t]
                for i in range(4): a(f"v_cvt_pk_bf16_f32 v{x+i}, v{acc+2*i}, v{acc+2*i+1}")
                a(f"""v_and_b32 v{acc}, 31, v0
                v_lshlrev_b32 v{acc}, 10, v{acc}
                v_lshrrev_b32 v{acc+1}, 5, v0
                v_lshl_add_u32 v{acc}, v{acc+1}, 4, v{acc}
                v_permlane32_swap_b32 v{x}, v{x+2}
                v_permlane32_swap_b32 v{x+1}, v{x+3}
                s_lshl_b32 s53, s{sJ}, 2
                s_add_u32 s53, s53, s{sW}
                s_lshl_b32 s53, s53, 5
                s_lshl_b32 s54, s{sG}, 16
                s_add_u32 s53, s53, s54
                s_add_u32 s53, s53, {t*32*KB}
                buffer_store_dwordx4 {v(x,4)}, v{acc}, s[8:11], s53 offen""")
            a(s.stamp(L,f"f2{t}"))

def k_main(a):
    s=M(a); s.stl=STL; s.ftmp=[OB+4, T+16]
    a(f"s_cmp_ge_u32 s2, 256\ns_cbranch_scc1 {a.endl}")
    if STAMP:
        for j in range(1,18): a(f"s_mov_b32 s{62+2*j}, 0")
        a("s_memrealtime s[60:61]\ns_memtime s[62:63]")
    a(f"""s_load_dwordx2 s[4:5], s[0:1], 80
    s_load_dwordx2 s[8:9], s[0:1], 64
    v_lshrrev_b32 v1, 6, v0
    v_readfirstlane_b32 s{sW}, v1
    v_and_b32 v0, 63, v0
    s_and_b32 s{sG}, s2, 31
    s_lshr_b32 s{sJ}, s2, 5
    s_mov_b32 s6, {WS_SIZE}
    s_mov_b32 s7, 0x20000
    s_mov_b32 s10, {2*MB}
    s_mov_b32 s11, 0x20000
    v_lshlrev_b32 v{vL16}, 4, v0
    v_lshlrev_b32 v{vL4}, 2, v0
    s_and_b32 s50, s{sW}, 1
    s_lshl_b32 s{sKVl}, s50, 10
    s_lshl_b32 s50, s50, 8
    v_xor_b32 v{vL16x}, s50, v{vL16}
    s_lshl_b32 s51, s{sG}, 20
    s_add_u32 s51, s51, {GBASE}             ; GR
    s_lshl_b32 s52, s{sJ}, 2
    s_add_u32 s52, s52, s{sW}               ; 4j+w
    s_lshl_b32 s{sOwn}, s52, 10
    s_add_u32 s{sOwn}, s{sOwn}, s51
    s_lshl_b32 s19, s{sW}, 13
    s_add_u32 s{sQtr}, s19, s51
    s_lshl_b32 s{sStL}, s{sW}, 11
    s_add_u32 s{sStL}, s{sStL}, s51
    s_lshr_b32 s53, s{sW}, 1
    s_lshl_b32 s54, s{sJ}, 1
    s_add_u32 s53, s53, s54
    s_lshl_b32 s{sWQ[0]}, s53, 15
    s_add_u32 s{sWQ[0]}, s{sWQ[0]}, s19
    s_xor_b32 s{sWQ[1]}, s{sWQ[0]}, {32*KB}
    s_waitcnt lgkmcnt(0)""")
    a(s.qkv_loads(0,0))
    for c in range(2): a(s.loads([WQR(c,k) for k in range(8)], vL16x, sWQ[c], WQF, 55, f"wqd{c}_"))
    a(s.wkv_loads()); a(s.cs_loads()); a(s.qkv_loads(0,1))
    a(f"""s_add_u32 s{sFlS}, s52, s51
    s_add_u32 s{sFlS}, s{sFlS}, {FL_}
    s_lshl_b32 s{sFlP}, s{sW}, 3
    s_add_u32 s{sFlP}, s{sFlP}, s51
    s_add_u32 s{sFlP}, s{sFlP}, {FL_}
    s_lshl_b32 s{sStS}, s{sJ}, 10
    s_lshl_b32 s54, s{sW}, 2
    s_add_u32 s{sStS}, s{sStS}, s54
    s_add_u32 s{sStS}, s{sStS}, s51
    s_mul_i32 s54, s{sJ}, 7
    s_lshl_b32 s55, s{sW}, 1
    s_add_u32 s54, s54, s55                 ; F1 cb0 = 7j+2w
    s_lshl_b32 s{sHs[0]}, s54, 11
    s_add_u32 s{sHs[0]}, s{sHs[0]}, s51
    s_add_u32 s{sHs[0]}, s{sHs[0]}, {H_}
    s_add_u32 s{sHs[1]}, s{sHs[0]}, 2048
    s_lshl_b32 s{sW1[0]}, s54, 15
    s_add_u32 s{sW1[0]}, s{sW1[0]}, {W1F}
    s_add_u32 s{sW1[1]}, s{sW1[0]}, {32*KB}
    s_lshl_b32 s56, s54, 9
    s_add_u32 s56, s56, {CS1}
    s_add_u32 s57, s56, 512
    s_cmp_eq_u32 s{sW}, 3
    s_cselect_b32 s{sHs[1]}, s{sHs[0]}, s{sHs[1]}
    s_cselect_b32 s{sW1[1]}, s{sW1[0]}, s{sW1[1]}
    s_cselect_b32 s57, s56, s57
    v_lshrrev_b32 v{vA}, 1, v{vL16}
    buffer_load_dwordx2 {v(CS1R,2)}, v{vA}, {WSR}, s56 offen
    buffer_load_dwordx2 {v(CS1R+2,2)}, v{vA}, {WSR}, s57 offen
    s_add_u32 s55, s{sOwn}, {XA_}
    buffer_load_dwordx4 {v(XR[0],4)}, v{vL16}, {WSR}, s55 offen
    s_add_u32 s55, s{sOwn}, {XA_+32*KB}
    buffer_load_dwordx4 {v(XR[1],4)}, v{vL16}, {WSR}, s55 offen
    s_mul_i32 s{sHl}, s{sW}, {28*KB}
    s_mul_i32 s{sW2[0]}, s53, {112*KB}
    s_xor_b32 s53, s53, 1
    s_mul_i32 s{sW2[1]}, s53, {112*KB}
    s_add_u32 s54, s{sHl}, {W2F}
    s_add_u32 s{sW2[0]}, s{sW2[0]}, s54
    s_add_u32 s{sW2[1]}, s{sW2[1]}, s54
    s_add_u32 s{sHl}, s{sHl}, s51
    s_add_u32 s{sHl}, s{sHl}, {H_}
    s_lshl_b32 s{sKVd}, s{sW}, 12
    s_mov_b32 s{sPure}, 0
    s_mov_b32 s{sBud}, 100000
    s_mov_b32 s{sONE}, 1.0
    s_mov_b32 s{sONE+1}, 1.0
    s_getreg_b32 s31, hwreg(HW_REG_XCC_ID)
    s_add_u32 s31, s31, 1
    v_mov_b32 v{vP}, s31
    s_lshl_b32 s54, s{sJ}, 7
    s_add_u32 s54, s54, s51
    s_add_u32 s54, s54, {XID_}
    s_mov_b64 exec, 1
    buffer_store_dword v{vP}, off, {WSR}, s54 sc1
    s_mov_b64 exec, -1
    v_mov_b32 v{vOnes}, {ONES:#x}
    v_mov_b32 v{vOne}, 1""")
    for i in (0,1,4,5): a(f"v_mov_b32 v{vBX+i}, 0")
    for i in range(4): a(f"s_xor_b32 s50, s{sW}, {i}\ns_lshl_b32 s{s16+i}, s50, 14\ns_mul_i32 s50, s50, {CST}\ns_add_u32 s{s7+i}, s50, {LC}")
    a("@wvm csq")
    for L in range(2):
        if L==1: a("@wvm csq\n@wlg wqr")
        s.qkv(L,0); s.qkv(L,1); s.att(L); s.op(L,0); s.op(L,1); s.f1(L); s.f2(L)
    if STAMP:
        a("s_memtime s[98:99]\ns_memrealtime s[100:101]\ns_waitcnt lgkmcnt(0)\nv_mov_b32 v4, 0x57a3")
        for j in range(21): a(f"v_writelane_b32 v4, s{60+2*j}, {j}")
        a(f"""v_writelane_b32 v4, s{sBud}, 21
        v_writelane_b32 v4, s{sPure}, 22
        s_lshl_b32 s50, s2, 2
        s_add_u32 s50, s50, s{sW}
        s_lshl_b32 s50, s50, 7
        s_add_u32 s50, s50, {TS}
        s_mov_b64 exec, 0xffffffff
        buffer_store_dword v4, v{vL4}, {WSR}, s50 offen""")
    a(f"s_endpgm\n@optb"); a(s.ool); a("@opte")

KERNELS=[("prep_kernel",k_prep,512,36864,256),("main_kernel",k_main,256,LDS_TOTAL,512)]
def build():
    out = open("cdna_kernels/"+NAME+".s.ref").read().split("; Override launch")[0]
    for name,_,blk,lds,_v in KERNELS: out += f"; @launch kernel={name} grid=(256,1,1) block=({blk},1,1) lds={lds}\n"
    body='.amdgcn_target "amdgcn-amd-amdhsa--gfx950"\n.text\n'
    uid=0
    for name,fn,blk,lds,_v in KERNELS:
        a = Asm(); a.uid=uid; a.endl = a.label("end"); a.stamps=[]
        fn(a); a(f"{a.endl}:\ns_endpgm"); uid=a.uid
        body += f".globl {name}\n.p2align 8\n.type {name},@function\n{name}:\n" + a.text()
        if a.stamps: out+="; stamps: "+" ".join(a.stamps)+"\n"
    out+=body+'.section .rodata,"a"\n'
    for name,fn,blk,lds,nv in KERNELS:
        out += f""".p2align 6
.amdhsa_kernel {name}
  .amdhsa_next_free_vgpr {nv}
  .amdhsa_next_free_sgpr 102
  .amdhsa_accum_offset 256
  .amdhsa_group_segment_fixed_size 0
  .amdhsa_kernarg_size 88
  .amdhsa_user_sgpr_count 2
  .amdhsa_user_sgpr_kernarg_segment_ptr 1
  .amdhsa_system_sgpr_workgroup_id_x 1
.end_amdhsa_kernel
"""
    return out
STL=0
if __name__=="__main__":
    for x in sys.argv[2:]:
        if x.startswith("stamp"): STAMP=True; STL=int(x[5:] or 0)
        elif "=" in x:
            k,val=x.split("="); globals()[k]=int(val)
    p = sys.argv[1] if len(sys.argv)>1 and sys.argv[1]!="-" else "cdna_kernels/"+NAME+".s"
    open(p,"w").write(build())
```

```python
import sys
import gen2
from gen2 import *
sPure=12; sBud=13; sXcc=14; sKF=15; sW=16; sG=17; sJ=18; sW8=19
sOwn=20; sFlS=21; sFlP=22; sStS=23; sHs=[24,25]; s7=26; s16=30; sONE=34; sKVd=36; sKVl=37
pQtr=38; pStL=40; pHl=42; pWQ=[44,46]; pW2=[48,50]; pW1=[52,54]; pKVd=56; pKVl=58
t0_,t1_,t2_,t3_=60,61,62,63; P0,P1,P2=64,66,68
vL16=1; vL16x=2; vL4=3; vOnes=4; vOne=5; vRs=[6,7]; vBX=8; vP=14; XR=[16,20]; Q=[24,28]
ACC=[32,64]; T=96; CS1R=120; vA=124
A0=256
def W1R(c,ks): return A0+128*c+4*ks
def W2R(i): return 128+4*i if i<32 else A0+4*(i-32)
def HWR(i): return A0+96+4*(i%16)
def WKR(ks): return A0+160+4*ks
def WQR(c,ks): return A0+192+32*c+4*ks
BQ=[32,160]; SQ=[24,200]; QACC=[64,32]; KACC=128; CSK=208; CSQR=210; OB=224; SX=24; sLast=3
XID_=FL_+3072; gen2.XID_=XID_
STAMP=False; STL=0; STO=0; STAG=8; TOUCH=1; ATS=0
def flat(x):
    o=[]
    for y in x: o+= flat(y) if isinstance(y,list) else [y]
    return o

class M:
    def __init__(s,a): s.a=a; s.ool=[]; s.nst=0; s.cnt=0
    def stamp(s,L,name):
        if STAMP and L==STL:
            s.cnt+=1
            if s.cnt>STO and s.nst<12:
                s.nst+=1; s.a.stamps.append(name)
                return [f"s_memtime s[{72+2*s.nst}:{73+2*s.nst}]"]
        return []
    def base(s, pt, pb, c): return [f"s_add_u32 s{pt}, s{pb}, {c}", f"s_addc_u32 s{pt+1}, s{pb+1}, 0"]
    def loads(s, regs, voff, pb, const, pt, tag, fl=""):
        out=[]
        for i,r in enumerate(regs):
            it=s.base(pt,pb,const+i*1024+4096) if i%8==0 else []
            out.append(it+[f"global_load_dwordx4 {R(r)}, v{voff}, s[{pt}:{pt+1}] offset:{(i%8)*1024-4096} {fl} ;@{tag}{i}"])
        return out
    def dmas(s, n, voff, pb, const, sl, lconst, pt, tag, fl=""):
        out=[]
        for i in range(n):
            it=[f"s_add_u32 m0, s{sl}, {lconst+i*1024}"]+s.base(pt,pb,const+i*1024) if i%4==0 else []
            out.append(it+[f"global_load_lds_dwordx4 v{voff}, s[{pt}:{pt+1}] offset:{(i%4)*1024} {fl} ;@{tag}{i}"])
        return out
    def pub(s, stores, one=False):
        Ls=s.a.label("slow"); Lb=s.a.label("back")
        s.ool += [f"{Ls}:"] + (["s_mov_b64 exec, 1"] if one else []) + [x.replace("{F}","sc1").split(";@")[0] for x in stores] + (["s_mov_b64 exec, -1"] if one else []) + [f"s_branch {Lb}"]
        return [f"s_cmp_eq_u32 s{sPure}, 0", f"s_cbranch_scc1 {Ls}"]+[x.replace("{F}","") for x in stores]+[f"{Lb}:"]
    def flag(s, L, step, *tags):
        return [f"@wvm {' '.join(tags)}"] + s.pub([f"buffer_store_byte v{vOne}, off, {WSR}, s{sFlS} offset:{(8*L+step)*128} {{F}}"], one=True)
    def poll_i(s, L, step):
        return [f"buffer_load_dwordx2 {v(vP,2)}, off, {WSR}, s{sFlP} offset:{(8*L+step)*128} sc1 ;@poll"]
    def retry(s, ld, chk, okbr):
        Lr=s.a.label("retry"); Lb=s.a.label("back")
        s.ool += [f"{Lr}:", f"s_sub_u32 s{sBud}, s{sBud}, 1", f"s_cmp_lt_i32 s{sBud}, 0", f"s_cbranch_scc1 {Lb}", ld.split(";@")[0], "s_waitcnt vmcnt(0)"]+chk+[f"{okbr[0]} {Lb}", f"s_branch {Lr}"]
        return ["@wvm poll"]+chk+[f"{okbr[1]} {Lr}", f"{Lb}:"]
    def poll_c(s, L, step):
        return s.retry(s.poll_i(L,step)[0], [f"v_and_b32 v{vP}, v{vP}, v{vP+1}", f"v_readfirstlane_b32 s{t0_}, v{vP}", f"s_cmp_eq_u32 s{t0_}, 0x01010101"], ("s_cbranch_scc1","s_cbranch_scc0"))
    def block(s, L, step, allcu=False):
        Lr=s.a.label("blk"); Le=s.a.label("blke"); Lp=s.a.label("blkp"); off=(8*L+step)*128
        o=["s_waitcnt vmcnt(0)", f"s_cmp_eq_u32 s{sPure}, 0", f"s_cbranch_scc1 {Lp}", f"buffer_store_byte v{vOne}, off, {WSR}, s{sFlS} offset:{off}", f"s_branch {Lr}",
           f"{Lp}:", "s_mov_b64 exec, 1", f"buffer_store_byte v{vOne}, off, {WSR}, s{sFlS} offset:{off} sc1", "s_mov_b64 exec, -1",
           f"{Lr}:", f"s_sub_u32 s{sBud}, s{sBud}, 1", f"s_cmp_lt_i32 s{sBud}, 0", f"s_cbranch_scc1 {Le}"]
        if allcu:
            o+=[f"s_and_b32 s{t0_}, s{sFlP}, 0xffffffe0", f"v_and_b32 v{vP+1}, 28, v{vL4}", f"buffer_load_dword v{vP}, v{vP+1}, {WSR}, s{t0_} offen offset:{off} sc1", "s_waitcnt vmcnt(0)",
                f"v_cmp_ne_u32 vcc, 0x01010101, v{vP}", f"s_cbranch_vccnz {Lr}"]
        else:
            o+=[f"buffer_load_dwordx2 {v(vP,2)}, off, {WSR}, s{sFlP} offset:{off} sc1", "s_waitcnt vmcnt(0)", f"v_and_b32 v{vP}, v{vP}, v{vP+1}", f"v_readfirstlane_b32 s{t0_}, v{vP}",
                f"s_cmp_eq_u32 s{t0_}, 0x01010101", f"s_cbranch_scc0 {Lr}"]
        return o+[f"{Le}:"]
    def gate(s, L, step):
        Lg=s.a.label("gate"); Lb=s.a.label("back")
        s.ool+=[f"{Lg}:"]+s.block(L,step)+[f"s_branch {Lb}"]
        return [f"s_cmp_eq_u32 s{sPure}, 0", f"s_cbranch_scc1 {Lg}", f"{Lb}:"]
    def check(s, L, step, reg, reload, start, allcu=False, idn=None):
        Lr=s.a.label("redo"); Lb=s.a.label("back"); idn=8*L+step+1 if idn is None else idn
        s.ool+=[f"{Lr}:", f"s_cmp_eq_u32 s{sLast}, {idn}", f"s_cbranch_scc1 {Lb}", f"s_mov_b32 s{sLast}, {idn}"]
        if STAMP: s.ool+=[f"s_bitset1_b32 s0, {idn}"]
        s.ool+=s.block(L,step,allcu)+[x.split(";@")[0] for x in flat(reload)]+["s_waitcnt vmcnt(0) lgkmcnt(0)", f"s_branch {start}"]
        return [f"v_cmp_u_f32 vcc, v{reg}, v{reg}"], [f"s_cbranch_vccnz {Lr}", f"{Lb}:"]
    def kvpoll_i(s, L, t):
        return [f"v_lshlrev_b32 v{vP+1}, 7, v0", f"s_mov_b32 s{t3_}, {KVF+(2*L+t)*8192}", f"buffer_load_dword v{vP}, v{vP+1}, {WSR}, s{t3_} offen sc1 ;@poll"]
    def kvpoll_c(s):
        return s.retry(s.kvpoll_i(0,0)[2], [f"v_cmp_ne_u32 vcc, 1, v{vP}"], ("s_cbranch_vccz","s_cbranch_vccnz"))
    def red_addr(s, buf):
        if buf=="C": return [f"v_add_u32 v{vA+i}, s{s7+i}, v{vL16}" for i in range(4)]
        if buf=="P": return [f"v_add_u32 v{vA+i}, s{s16+i}, v{vL16}" for i in range(4)]
        return [[f"s_add_u32 s{t1_}, s{s16+i}, {LR}", f"v_add_u32 v{vA+i}, s{t1_}, v{vL16}"] for i in range(4)]
    def red_write(s, acc):
        return [f"ds_write_b128 v{vA}, {v(acc+8+4*i,4)} offset:{i*1024} ;@rw" for i in range(6)]
    def red_read(s):
        return [f"ds_read_b128 {v(T+4*i,4)}, v{vA+1+i//2} offset:{i*1024} ;@rr{i}" for i in (2,3,4,5,0,1)]
    def red_add(s, acc):
        o=[]
        for i in (2,3,4,5,0,1):
            o.append(f"@wlg rr{i}")
            for h in range(2): o.append(f"v_pk_add_f32 {v(acc+4*(i%2)+2*h,2)}, {v(acc+4*(i%2)+2*h,2)}, {v(T+4*i+2*h,2)}")
        return o
    def sum8(s, r):
        return [f"v_add_f32 v{r+i}, v{r+i}, v{r+i+4}" for i in range(4)]+[f"v_add_f32 v{r}, v{r}, v{r+2}", f"v_add_f32 v{r+1}, v{r+1}, v{r+3}", f"v_add_f32 v{r}, v{r}, v{r+1}"]
    def bext(s, p, t):
        return [f"v_mul_f32 v{t}, {f2u(-1/512):#x}, v{p}", f"v_cvt_pk_bf16_f32 v{vBX+2}, v{t}, v{t}", f"v_and_b32 v{vBX+3}, 0xffff0000, v{vBX+2}",
                f"v_sub_f32 v{t}, v{t}, v{vBX+3}", f"v_cvt_pk_bf16_f32 v{vBX+3}, v{t}, v{t}"]
    def stat_rd(s, r, slot, tag):
        return [f"v_add_u32 v{r+3}, {LC}, v{vL4}"]+[f"ds_read_b32 v{r+i}, v{r+3} offset:{i*CST+6144+256*slot} ;@{tag}" for i in range(4)]
    def stat_wr(s, p, t, slot):
        return [f"v_add_u32 v{t}, s{s7}, v{vL4}", f"ds_write_b32 v{t}, v{p} offset:{6144+256*slot} ;@rw"]
    def rstd(s, r, dst):
        return [f"v_add_f32 v{r}, v{r}, v{r+2}", f"v_add_f32 v{r+1}, v{r+1}, v{r+3}", f"v_add_f32 v{r}, v{r}, v{r+1}", f"v_mov_b32 v{r+1}, v{r}",
                f"v_permlane32_swap_b32 v{r}, v{r+1}", f"v_mul_f32 v{r+2}, {f2u(1/512):#x}, v{r}", f"v_mul_f32 v{r+1}, {f2u(1/512):#x}, v{r+1}",
                f"v_fma_f32 v{r+1}, -v{r+2}, v{r+2}, v{r+1}", f"v_max_f32 v{r+1}, 0, v{r+1}", f"v_add_f32 v{r+1}, {f2u(1e-5):#x}, v{r+1}", f"v_rsq_f32 v{dst}, v{r+1}"]
    def emit_x(s, acc, t, xoff, soff, tmp):
        o=[f"s_add_u32 s{t1_}, s{sOwn}, {xoff+t*32*KB}", f"s_add_u32 s{t2_}, s{sStS}, {soff+t*8*KB}"]
        o+=[f"v_cvt_pk_bf16_f32 v{XR[t]+i}, v{acc+2*i}, v{acc+2*i+1}" for i in range(4)]
        for i in range(4):
            o+=[f"v_dot2_f32_bf16 v{tmp}, v{XR[t]+i}, v{vOnes}, {'0' if i==0 else v(tmp)}", f"v_dot2_f32_bf16 v{tmp+1}, v{XR[t]+i}, v{XR[t]+i}, {'0' if i==0 else v(tmp+1)}"]
        o+=[f"v_permlane32_swap_b32 v{tmp}, v{tmp+1}", f"v_add_f32 v{tmp}, v{tmp}, v{tmp+1}"]
        o+=s.pub([f"buffer_store_dwordx4 {v(XR[t],4)}, v{vL16}, {WSR}, s{t1_} offen {{F}}", f"buffer_store_dword v{tmp}, v{vL16}, {WSR}, s{t2_} offen {{F}} ;@xst"])
        return o
    def qkv_loads(s, L, t):
        return s.loads([SQ[t],SQ[t]+4], vL16, pStL, L*LOFF+SA_+t*8*KB, P0, f"sq{t}_", "sc1") + s.loads([BQ[t]+4*i for i in range(8)], vL16, pQtr, L*LOFF+XA_+t*32*KB, P0, f"bq{t}_", "sc1")
    def cs_loads(s):
        return [[f"v_lshrrev_b32 v{vA+3}, 1, v{vL16x}", f"s_lshr_b32 s{t1_}, s{sW}, 1", f"s_lshl_b32 s{t2_}, s{sJ}, 1", f"s_add_u32 s{t1_}, s{t1_}, s{t2_}", f"s_lshl_b32 s{t1_}, s{t1_}, 9", f"s_add_u32 s{t1_}, s{t1_}, {CSQ}",
                f"buffer_load_dwordx2 {v(CSQR,2)}, v{vA+3}, {WSR}, s{t1_} offen", f"s_xor_b32 s{t1_}, s{t1_}, 512", f"buffer_load_dwordx2 {v(CSQR+2,2)}, v{vA+3}, {WSR}, s{t1_} offen",
                f"v_lshrrev_b32 v{vA+3}, 1, v{vL16}", f"s_mov_b32 s{t1_}, {CSKV}", f"buffer_load_dwordx2 {v(CSK,2)}, v{vA+3}, {WSR}, s{t1_} offen ;@csq"]]
    def wkv_loads(s):
        Lk=s.a.label("nokv")
        o=[f"s_cmp_ge_u32 s{sJ}, 2", f"s_cbranch_scc1 {Lk}", "@optb", f"s_add_u32 s{P2}, s4, s{sW8}", f"s_addc_u32 s{P2+1}, s5, 0"]
        return o+flat(s.loads([WKR(k) for k in range(8)], vL16, P2, WKVF, P2, "wk"))+["@opte", f"{Lk}:"]
    def ksplit(s, acc, Areg, Breg, btag, ext, pre=None, post=None, c0init="0", chk=None):
        sl=[]
        for i in range(16):
            c,ks=1-i//8,i%8
            p=([f"@wvm {btag}{ks}"] if c==1 else [])+(pre(i) if pre else [])
            p.append(mf(acc+16*c, Areg(c,ks), Breg(ks), ("0" if c==1 else c0init) if ks==0 else None))
            p+=(post(i) if post else [])
            if ext and ks==7: sl.append(p); p=[mf(acc+16*c, CSQR, vBX+2-2*c)]
            sl.append(p)
        w=s.red_write(acc); n=len(sl)
        if chk: sl[n-6]+=chk[0]; sl[n-5]+=chk[1]
        for k in range(4): sl[n-4+k if chk else n-5+k]+=[w[2+k]]
        sl.append([]); sl.append(w[:2]+["@wlg rw","s_barrier"])
        return sl

    def qkv(s, L, t):
        a=s.a; acc=QACC[t]; kacc=KACC; sq=SQ[t]
        Ls=a.label("qst"); ck=(lambda r: s.check(L-1,6+t,r,s.qkv_loads(L,t),Ls)) if L>0 else (lambda r:([],[]))
        a(s.red_addr("C" if t==0 else "P"))
        a(f"{Ls}:\n@wvm sq{t}_1"); a(s.sum8(sq)); c=ck(sq); a(c[0]); a(s.stat_wr(sq, sq+1, 2+t)); a(s.bext(sq, sq+1)); a(c[1])
        Ln=a.label("nkv"); Lv=a.label("v"); X=sq+2
        a(f"s_mov_b32 s{sKF}, 0\ns_cmp_lg_u32 s{sJ}, {t}\ns_cbranch_scc1 {Ln}\n@optb")
        a(f"v_add_u32 v{X}, s{s16}, v{vL16}\ns_lshl_b32 s{t1_}, s{sW}, 11\nv_add_u32 v{X+1}, s{t1_}, v{vL16}")
        for ks in range(8):
            a(f"@wvm bq{t}_{ks}"); a(mf(kacc, WKR(ks), BQ[t]+4*ks, "0" if ks==0 else None))
        a("@wvm csq"); a(mf(kacc, CSK, vBX+2))
        c=ck(kacc); a(c[0]+c[1])
        if L>0: a(f"s_mov_b32 s{sLast}, {8*(L-1)+6+t+1}")
        for i in range(4): a(f"ds_write_b128 v{X}, {v(kacc+4*i,4)} offset:{8192+i*1024}")
        a(f"s_waitcnt lgkmcnt(0)\ns_barrier\ns_cmp_ge_u32 s{sW}, 2\ns_cbranch_scc1 {Ln}")
        a(s.stat_rd(T, 2+t, "st"))
        for i in range(8): a(f"ds_read_b128 {v(OB+4*i,4)}, v{X+1} offset:{(i//2)*16384+8192+(i%2)*1024} ;@kr{i}")
        a(f"""s_mul_i32 s{t1_}, s{sG}, {KVT}
        s_add_u32 s{t1_}, s{t1_}, {KVI+(2*L+t)*KVH}
        s_lshl_b32 s{sKF}, s{sG}, 8
        s_add_u32 s{sKF}, s{sKF}, {KVF+(2*L+t)*8192}""")
        a("@wlg st"); a(s.rstd(T, T+4)); a(f"v_mov_b32 v{T+5}, v{T+4}")
        for i in range(2,8):
            a(f"@wlg kr{i}")
            for h in range(2): a(f"v_pk_add_f32 {v(OB+4*(i%2)+2*h,2)}, {v(OB+4*(i%2)+2*h,2)}, {v(OB+4*i+2*h,2)}")
        for i in range(4): a(f"v_pk_mul_f32 {v(OB+2*i,2)}, {v(OB+2*i,2)}, {v(T+4,2)}")
        for i in range(4): a(f"v_cvt_pk_bf16_f32 v{OB+8+i}, v{OB+2*i}, v{OB+2*i+1}")
        a(f"""s_cmp_eq_u32 s{sW}, 1
        s_cbranch_scc1 {Lv}
        buffer_store_dwordx4 {v(OB+8,4)}, v{vL16}, {WSR}, s{t1_} offen sc1
        s_branch {Ln}
        {Lv}:
        v_bfe_u32 v{T}, v0, 3, 2
        v_mul_u32_u24 v{T}, 272, v{T}
        v_and_b32 v{T+1}, 7, v0
        v_lshl_add_u32 v{T+1}, v{T+1}, 1, v{T}
        v_lshrrev_b32 v{T+2}, 5, v0
        v_lshl_add_u32 v{T+1}, v{T+2}, 6, v{T+1}""")
        VI=16384+12288
        for r in range(8):
            a(f"{'ds_write_b16' if r%2==0 else 'ds_write_b16_d16_hi'} v{T+1}, v{OB+8+r//2} offset:{VI+(8*(r//4)+r%4)*16}")
        for i in range(4): a(f"v_mov_b32 v{OB+i}, v{vOnes}")
        a(f"""ds_write_b128 v{T}, {v(OB,4)} offset:{VI+256}
        s_waitcnt lgkmcnt(0)
        ds_read_b128 {v(OB+12,4)}, v{vL16} offset:{VI}
        ds_read_b128 {v(OB+16,4)}, v{vL16} offset:{VI+1024}
        s_waitcnt lgkmcnt(0)
        buffer_store_dwordx4 {v(OB+12,4)}, v{vL16}, {WSR}, s{t1_} offen offset:1024 sc1
        s_mov_b64 exec, 15
        buffer_store_dwordx4 {v(OB+16,4)}, v{vL16}, {WSR}, s{t1_} offen offset:2048 sc1
        s_mov_b64 exec, -1
        s_add_u32 s{sKF}, s{sKF}, 128
        @opte
        {Ln}:""")
        sl=s.ksplit(acc, WQR, lambda k:BQ[t]+4*k, f"bq{t}_", True, chk=ck(acc+16) if L>0 else None)
        sl[7]+=["@wvm csq"]
        if t==0 and L>0:
            ql=s.qkv_loads(L,1)
            sl[-2]+=s.flag(L-1, 7, "xst")+s.gate(L-1,7)+flat(ql[:4])
        a(sl); a(s.stamp(L,f"q{t}b"))
        a(s.stat_rd(sq+4, 2+t, "st")); a(s.red_read())
        Lk=a.label("nkf")
        a(f"""s_cmp_eq_u32 s{sKF}, 0
        s_cbranch_scc1 {Lk}
        @optb
        s_waitcnt vmcnt({4 if (t==0 and L>0) else 0})
        s_mov_b64 exec, 1
        buffer_store_dword v{vOne}, off, {WSR}, s{sKF} sc1
        s_mov_b64 exec, -1
        @opte
        {Lk}:""")
        if t==1: a(s.kvpoll_i(L,0))
        e=[[x] for x in ["@wlg st"]+s.rstd(sq+4, sq)+[f"v_mul_f32 v{sq}, {f2u(0.25*LOG2E):#x}, v{sq}", f"v_mov_b32 v{sq+1}, v{sq}"]+s.red_add(acc)]
        if t==0 and L>0: weave(e, ql[4:])
        a(e)
        for i in range(4): a(f"v_pk_mul_f32 {v(acc+2*i,2)}, {v(acc+2*i,2)}, {v(sq,2)}")
        for i in range(4): a(f"v_cvt_pk_bf16_f32 v{Q[t]+i}, v{acc+2*i}, v{acc+2*i+1}")
        a(s.stamp(L,f"q{t}e"))

    def att_fin(s, L, t, O, W):
        a=s.a; Lf=a.label("fb"); Lb=a.label("fbback"); L1=a.label("p1"); L2=a.label("p2")
        sc=[f"v_rcp_f32 v{O+10}, v{O+8}", f"v_subrev_u32 v{O+9}, {f2u(2.0**-60):#x}, v{O+8}"]+[f"v_mul_f32 v{O+i}, v{O+10}, v{O+i}" for i in range(8)]
        o=sc+[f"v_cmp_lt_u32 vcc, {f2u(2.0**100)-f2u(2.0**-60):#x}, v{O+9}"]
        o+=[f"v_add_f32 v{O+12+i}, v{O+i}, v{O+4+i}" for i in range(4)]+[f"v_add_f32 v{O+12}, v{O+12}, v{O+13}", f"v_add_f32 v{O+14}, v{O+14}, v{O+15}", f"s_mov_b32 s{t1_}, 0x207", f"v_add_f32 v{O+12}, v{O+12}, v{O+14}",
           f"v_cmp_class_f32 s[{P2}:{P2+1}], v{O+12}, s{t1_}", f"s_add_u32 s{t1_}, s{sOwn}, {L*LOFF+O_+t*32*KB}", f"s_or_b64 vcc, vcc, s[{P2}:{P2+1}]", f"s_cbranch_vccnz {Lf}", f"{Lb}:"]
        o+=[f"v_cvt_pk_bf16_f32 v{O+12+i}, v{O+2*i}, v{O+2*i+1}" for i in range(4)]
        o+=s.pub([f"buffer_store_dwordx4 {v(O+12,4)}, v{vL16}, {WSR}, s{t1_} offen {{F}} ;@ost{t}"])
        S=W; K=W+16; V=W+20; m=W+28; va=W+29; c1=P2; c2=P2+1
        f=[f"{Lf}:", f"v_mov_b32 v{m}, 0xff800000", f"s_mov_b32 s{c1}, {KVI+2*L*KVH}", f"s_mov_b32 s{c2}, 64", f"{L1}:",
           f"buffer_load_dwordx4 {v(K,4)}, v{vL16}, {WSR}, s{c1} offen sc1", "s_waitcnt vmcnt(0)", mf(S,K,Q[t],"0")]
        f+=[f"v_max_f32 v{m}, v{m}, v{S+i}" for i in range(16)]
        nxt=lambda l:[f"s_add_u32 s{c1}, s{c1}, {KVT}", f"s_sub_u32 s{c2}, s{c2}, 1", f"s_cmp_lg_u32 s{c2}, 0", f"s_cbranch_scc1 {l}"]
        f+=nxt(L1)+[f"v_mov_b32 v{va}, v{m}", f"v_permlane32_swap_b32 v{m}, v{va}", f"v_max_f32 v{m}, v{m}, v{va}",
            f"v_and_b32 v{va}, 31, v0", f"v_min_u32 v{va}, 16, v{va}", f"v_lshlrev_b32 v{va}, 4, v{va}", f"v_lshrrev_b32 v{va+1}, 5, v0", f"v_mul_u32_u24 v{va+1}, 272, v{va+1}", f"v_add_u32 v{va}, v{va}, v{va+1}"]
        f+=[f"v_mov_b32 v{O+i}, 0" for i in range(16)]
        f+=[f"s_mov_b32 s{c1}, {KVI+2*L*KVH}", f"s_mov_b32 s{c2}, 64", f"{L2}:",
            f"buffer_load_dwordx4 {v(K,4)}, v{vL16}, {WSR}, s{c1} offen sc1", f"buffer_load_dwordx4 {v(V,4)}, v{va}, {WSR}, s{c1} offen offset:1024 sc1",
            f"buffer_load_dwordx4 {v(V+4,4)}, v{va}, {WSR}, s{c1} offen offset:{1024+544} sc1", "s_waitcnt vmcnt(0)", mf(S,K,Q[t],"0")]
        f+=[f"v_sub_f32 v{S+i}, v{S+i}, v{m}" for i in range(16)]+[f"v_exp_f32 v{S+i}, v{S+i}" for i in range(16)]
        f+=[f"v_smfmac_f32_32x32x32_bf16 {v(O,16)}, {v(V+4*u,4)}, {v(S+8*u,8)}, v{vA}" for u in range(2)]
        f+=nxt(L2)+sc+[f"s_branch {Lb}"]
        s.ool+=f
        return o
    def kv_dma(s, L, t):
        lb = LR if t==0 else LP
        out=[]
        for r in range(4): out+=s.dmas(4, vL16, pKVd, (2*L+t)*KVH+r*16384, sKVd, lb+r*16384, P1, f"kv{t}_{r}_", "sc1")
        out+=s.dmas(1, vL16, pKVl, (2*L+t)*KVH+65536, sKVl, lb+65536, P1, f"kv{t}_4_", "sc1")
        return out
    def att(s, L):
        a=s.a
        S=[32,48]; O=[64,80]; KR=[96,100]; VR=[104,112]; IDX=vA; vK=vA+1; vV=vA+2
        jobs=[(t,k) for k in range(32) for t in range(2)]+[(0,k) for k in range(32,32+STAG)]+[(t,k) for k in range(32+STAG,64) for t in range(2)]+[(1,k) for k in range(32,32+STAG)]
        N=len(jobs)
        kap=[0]
        for i in range(1,N): kap.append(kap[-1]+(jobs[i][1]!=jobs[i-1][1]))
        first={}
        for i in range(N): first.setdefault(kap[i], i)
        NK=kap[-1]+1
        def laddr(k): return (LR+k*KVT) if k<32 else (LP+(k-32)*KVT)
        base={"K":LR,"V":LR}
        def rd(kind, kp, u=0):
            kt=jobs[first[kp]][1]
            ad=laddr(kt)+(0 if kind=="K" else 1024+u*544); o=[]
            reg=vK if kind=="K" else vV
            if not (0<=ad-base[kind]<65536):
                nb=laddr(kt); o.append(f"v_add_u32 v{reg}, {(nb-base[kind])&0xffffffff:#x}, v{reg}"); base[kind]=nb
            dst=KR[kp%2] if kind=="K" else VR[kp%2]+4*u
            return o+[f"ds_read_b128 {v(dst,4)}, v{reg} offset:{ad-base[kind]} ;@{kind}{kp}_{u}"]
        def smf(i,u): return [f"@wlg V{kap[i]}_{u}", f"v_smfmac_f32_32x32x32_bf16 {v(O[jobs[i][0]],16)}, {v(VR[kap[i]%2]+4*u,4)}, {v(S[i%2]+8*u,8)}, v{IDX}"]
        def qk(i): return [f"@wlg K{kap[i]}_0", mf(S[i%2], KR[kap[i]%2], Q[jobs[i][0]], "0")]
        def ex(r0,r1): return [f"v_exp_f32 v{r}, v{r}" for r in range(r0,r1)]
        d0=s.kv_dma(L,0); d1=s.kv_dma(L,1)
        a(f"""v_mov_b32 v{IDX}, 0xdddddddd
        v_add_u32 v{vK}, {LR}, v{vL16}
        v_and_b32 v{vV}, 31, v0
        v_min_u32 v{vV}, 16, v{vV}
        v_lshlrev_b32 v{vV}, 4, v{vV}
        v_lshrrev_b32 v{vA+3}, 5, v0
        v_mul_u32_u24 v{vA+3}, 272, v{vA+3}
        v_add_u32 v{vV}, v{vV}, v{vA+3}
        v_add_u32 v{vV}, {LR}, v{vV}""")
        for i in range(32): a(f"v_mov_b32 v{O[0]+i}, 0")
        a(f"v_lshlrev_b32 v{OB+8}, 7, v0\nv_lshlrev_b32 v{OB+9}, 10, v0")
        for i in range(4): a(f"v_mov_b32 v{OB+i}, -1")
        touch=[]
        def pst(sb, c, n=1, dw=False):
            Lk=a.label("np")
            it=[f"s_cmp_eq_u32 s{sPure}, 0", f"s_cbranch_scc1 {Lk}", "@optb", f"s_add_u32 s{t1_}, s{sb}, {c}"]
            for k in range(n): it.append(f"buffer_store_dword v{OB}, v{vL16}, {WSR}, s{t1_} offen" if dw else f"buffer_store_dwordx4 {v(OB,4)}, v{vL16}, {WSR}, s{t1_} offen offset:{k*1024}")
            touch.append(it+["@opte", f"{Lk}:"])
        for t in range(2):
            pst(sOwn, L*LOFF+O_+t*32*KB); pst(sOwn, L*LOFF+X1_+t*32*KB); pst(sStS, L*LOFF+S1_+t*8*KB, dw=True)
            for c in range(2): pst(sHs[c], L*LOFF+t*112*KB, 2)
            if L==0: pst(sOwn, LOFF+XA_+t*32*KB); pst(sStS, LOFF+SA_+t*8*KB, dw=True)
        if L==1: touch.append([f"s_lshl_b32 s{t1_}, s{sG}, 16", f"s_lshl_b32 s{t2_}, s{sJ}, 7", f"s_add_u32 s{t1_}, s{t1_}, s{t2_}", f"buffer_load_dword v{OB+6}, v{OB+9}, s[8:11], s{t1_} offen"])
        warm=[[f"s_bitcmp1_b32 s{sG}, 4", f"s_cselect_b64 s[{P2}:{P2+1}], s[{pW2[1]}:{pW2[1]+1}], s[{pW2[0]}:{pW2[0]+1}]", f"s_and_b32 s{t1_}, s{sG}, 8", f"s_lshl_b32 s{t1_}, s{t1_}, 10", f"s_add_u32 s{t1_}, s{t1_}, {12*KB}",
               f"s_add_u32 s{P2}, s{P2}, s{t1_}", f"s_addc_u32 s{P2+1}, s{P2+1}, 0", f"global_load_dword v{OB+6}, v{OB+8}, s[{P2}:{P2+1}] ;@warm"]]
        if L==0: warm.append([f"s_bitcmp1_b32 s{sG}, 3", f"s_cselect_b64 s[{P2}:{P2+1}], s[{pWQ[1]}:{pWQ[1]+1}], s[{pWQ[0]}:{pWQ[0]+1}]", f"global_load_dword v{OB+6}, v{OB+8}, s[{P2}:{P2+1}]"])
        a(s.kvpoll_c()); a(s.stamp(L,"kvp"))
        a(d0[:7])
        a("@wvm kv0_0_3\ns_barrier"); a(s.stamp(L,"kv0"))
        a(rd("K",0)+rd("V",0,0)+rd("V",0,1)+rd("K",1)+qk(0))
        A=[[] for _ in range(N)]; B=[[] for _ in range(N)]; C=[[] for _ in range(N)]
        fr=[]
        for i in range(N):
            kp=kap[i]; isf=first[kp]==i; last=(i+1==N or kap[i+1]!=kp)
            if isf and last:
                if kp+1<NK: A[i]+=[f"@wlg K{kp+1}_0"]+rd("V",kp+1,0); B[i]+=rd("V",kp+1,1)
                if kp+2<NK: C[i]+=rd("K",kp+2)
            elif isf:
                A[i]+=rd("V",kp+1,0); B[i]+=rd("V",kp+1,1); fr.append((i,C[i]))
            else:
                A[i]+=[f"@wlg V{kp+1}_1"]; fr.append((i,B[i])); C[i]+=rd("K",kp+2)
        def put(items, j0, j1):
            sl=[l for (j,l) in fr if j0<=j<j1]; weave(sl, items)
        def at(j): return [l for (jj,l) in fr if jj>=j][0]
        put(d0[7:], 0, 5)
        at(9).extend(["@wvm kv0_4_0","s_barrier"])
        at(12).extend(s.kvpoll_i(L,1))
        at(20).extend(s.kvpoll_c())
        put(d1, 21, 31)
        if L==0:
            ldx=f"buffer_load_dword v{vP}, v{vP+1}, {WSR}, s{t3_} offen sc1 ;@poll"
            at(31).extend([f"v_and_b32 v{vP+1}, 7, v0", f"v_lshlrev_b32 v{vP+1}, 7, v{vP+1}", f"s_lshl_b32 s{t3_}, s{sG}, 20", f"s_add_u32 s{t3_}, s{t3_}, {GBASE+XID_}", ldx])
            at(40).extend(s.retry(ldx, [f"v_cmp_eq_u32 vcc, 0, v{vP}"], ("s_cbranch_vccz","s_cbranch_vccnz"))+[f"v_cmp_ne_u32 vcc, s{sXcc}, v{vP}", "s_cmp_eq_u64 vcc, 0", f"s_cselect_b32 s{sPure}, 1, 0"])
        w1=[]
        for c in range(2): w1+=s.loads([W1R(c,k) for k in range(32)], vL16, pW1[c], 0, P0, f"w1{c}_")
        put(w1[:24], 32, 44)
        at(44).extend(["@wvm kv1_4_0","s_barrier"])
        put(touch, 45, 59)
        put(w1[24:34], 59, 64)
        j2=64+STAG
        at(j2).append("s_barrier")
        wo=[]
        for c in range(2): wo+=s.dmas(8, vL16x, pWQ[c], WOF, s16, LR+c*8192, P1, f"wo{c}_")
        put(w1[34:], j2+1, j2+16); j2+=15
        put(wo, j2+1, j2+9)
        w2=[]
        for c in range(2): w2+=s.loads([W2R(2*k+c) for k in range(12)], vL16x, pW2[c], 0, P0, f"w2{c}_")
        put(w2, j2+9, j2+21)
        put(warm, j2+21, j2+23)
        e0=N-STAG
        if ATS:
            for j in (10,20,32,44,60,72,88,100,110): A[j]+=s.stamp(L,f"j{j}")
        at(j2+14).extend(s.flag(2,L,"w10_31"))
        at(j2+23).extend(s.poll_i(2,L))
        at(e0-3).extend(s.poll_c(2,L))
        C[e0-1]+=s.stamp(L,"a0")+s.att_fin(L,0,O[0],OB)
        C[e0+3]+=s.flag(L,0,"ost0")
        ob=s.loads([OB+4*i for i in range(8)], vL16, pQtr, L*LOFF+O_, P0, "ob", "sc1")
        C[N-2]+=s.gate(L,0)+flat(ob[:2]); A[N-1]+=flat(ob[2:4]); B[N-1]+=flat(ob[4:6]); C[N-1]+=flat(ob[6:])
        for i in range(N):
            Sa=S[i%2]
            a(ex(Sa,Sa+2)+(smf(i-1,1) if i>0 else [])+A[i]+ex(Sa+2,Sa+5)+(qk(i+1) if i+1<N else [])+B[i]+ex(Sa+5,Sa+10)+smf(i,0)+C[i]+ex(Sa+10,Sa+16))
        a(f"s_add_u32 s{t1_}, s{s16}, {LR}\nv_add_u32 v6, s{t1_}, v{vL16}")
        a(smf(N-1,1)); a(s.stamp(L,"a1"))
        a("@wvm wo1_7"); a(s.op_rd(0,6))
        a(s.att_fin(L,1,O[1],32))

    def op_rd(s, i0, i1):
        return [f"ds_read_b128 {v(T+4*(i%6),4)}, v6 offset:{(1-i//8)*8192+(i%8)*1024} ;@oa{i}" for i in range(i0,i1)]
    def x_fetch(s, L, t):
        return s.loads([SX,SX+4], vL16, pStL, L*LOFF+S1_+t*8*KB, P1, "s1_", "sc1") + s.dmas(8, vL16, pQtr, L*LOFF+X1_+t*32*KB, sW8, LP+t*32*KB, P1, f"xd{t}_", "sc1")
    def op(s, L, t):
        a=s.a; acc=ACC[t]
        Ls=a.label("opst"); obl=lambda tt: s.loads([OB+4*i for i in range(8)], vL16, pQtr, L*LOFF+O_+tt*32*KB, P0, "ob", "sc1")
        sl=s.ksplit(acc, lambda c,k:T+4*(((1-c)*8+k)%6), lambda k:OB+4*k, "ob", False,
                    pre=lambda i:[f"@wlg oa{i}"], post=lambda i:(s.op_rd(i+6,i+7) if i+6<16 else []), c0init=None,
                    chk=s.check(L,t,acc+16,obl(t)+s.op_rd(0,6),Ls))
        ini=flat([[f"v_lshlrev_b32 v{acc+2*i}, 16, v{XR[t]+i}", f"v_and_b32 v{acc+2*i+1}, 0xffff0000, v{XR[t]+i}"] for i in range(4)])+[f"v_mov_b32 v{acc+8+i}, 0" for i in range(8)]
        weave(sl, ini+s.red_addr("C" if t==0 else "R"), 0, 7)
        nx = obl(1) if t==0 else s.x_fetch(L,0)
        sl[-2]+=(s.flag(L,1,"ost1")+s.gate(L,1) if t==0 else s.flag(L,2,"xst")+s.gate(L,2))+flat(nx[:3])
        a(f"{Ls}:"); a(sl); a(s.stamp(L,f"o{t}b"))
        a(s.red_read())
        e=s.red_add(acc)+(s.op_rd(0,6) if t==0 else [])+s.emit_x(acc, t, L*LOFF+X1_, L*LOFF+S1_, acc+8)
        k=e.index(f"s_cmp_eq_u32 s{sPure}, 0")
        sl=[[x] for x in e[:k]]+[e[k:]]
        a(nx[3:5]); weave(sl, nx[5:], 2, k); a(sl); a(s.stamp(L,f"o{t}e"))

    def silu(s, L, t, c, pk):
        acc=ACC[t]; E=T+16; sc=vA+2*t; out=[]
        for h in range(2):
            b=acc+16*c+8*h
            if pk:
                out+=[f"v_pk_mul_f32 {v(E+2*i,2)}, {v(b+2*i,2)}, {v(sc,2)}" for i in range(4)]
                out+=[f"v_exp_f32 v{E+i}, v{E+i}" for i in range(8)]
                out+=[f"v_pk_add_f32 {v(E+2*i,2)}, {v(E+2*i,2)}, s[{sONE}:{sONE+1}]" for i in range(4)]
                out+=[f"v_rcp_f32 v{E+i}, v{E+i}" for i in range(8)]
                out+=[f"v_pk_mul_f32 {v(E+2*i,2)}, {v(b+2*i,2)}, {v(E+2*i,2)}" for i in range(4)]
                out+=[f"v_cvt_pk_bf16_f32 v{b+i}, v{E+2*i}, v{E+2*i+1}" for i in range(4)]
            else:
                mu=[f"v_mul_f32 v{E+i}, v{sc}, v{b+i}" for i in range(8)]; exx=[f"v_exp_f32 v{E+i}, v{E+i}" for i in range(8)]
                ad=[f"v_add_f32 v{E+i}, 1.0, v{E+i}" for i in range(8)]; rc=[f"v_rcp_f32 v{E+i}, v{E+i}" for i in range(8)]
                m2=[f"v_mul_f32 v{E+i}, v{b+i}, v{E+i}" for i in range(8)]; cv=[f"v_cvt_pk_bf16_f32 v{b+i}, v{E+2*i}, v{E+2*i+1}" for i in range(4)]
                out+=[mu[0:5],[mu[5],exx[0],exx[1]],[mu[6],exx[2],exx[3]],[mu[7],exx[4],exx[5]],[ad[0],exx[6],exx[7]],
                      [ad[1],ad[2],ad[3],rc[0]],[ad[4],rc[1],rc[2]],[ad[5],rc[3],rc[4]],[ad[6],ad[7],m2[0],rc[5]],[m2[1],rc[6],rc[7]],
                      m2[2:7],[m2[7]]+cv]
            out.append([f"s_add_u32 s{t1_}, s{sHs[c]}, {L*LOFF+t*112*KB+h*1024}"]+s.pub([f"buffer_store_dwordx4 {v(b,4)}, v{vL16}, {WSR}, s{t1_} offen {{F}} ;@hst{t}"]))
        return out
    def f1_sync(s, L, t):
        c=([],[]); Ls=s.a.label("f1sy")
        if t==0: c=s.check(L,2,SX,s.x_fetch(L,0),Ls)
        return [f"{Ls}:","@wvm s1_1"]+s.sum8(SX)+c[0]+s.stat_wr(SX,SX+1,t)+[f"@wvm xd{t}_7","@wlg rw"]+c[1]+["s_barrier"]
    def f1(s, L):
        a=s.a
        def rd(n):
            q,ks=n//32,n%32
            return [f"ds_read_b128 {v(T+4*(n%4),4)}, v{vL16} offset:{LP+(q//2)*32*KB+ks*1024} ;@xb{n}"]
        a(s.f1_sync(L,0)); a(s.stamp(L,"f1s"))
        Ls=a.label("f1st"); a(f"{Ls}:")
        a(rd(0)+rd(1)+rd(2)+["@wlg xb0", "@wvm w11_31"])
        sl=[];
        for n in range(128):
            q,ks=n//32,n%32; t,c=q//2,q%2
            p=[mf(ACC[t]+16*c, W1R(c,ks), T+4*(n%4), "0" if ks==0 else None)]
            if n+3<128: p+=rd(n+3)
            if n+1<128: p+=[f"@wlg xb{n+1}"]
            sl.append(p)
        for q in range(4):
            sl[32*q+31]+=[mf(ACC[q//2]+16*(q%2), CS1R, vBX+2-2*(q%2))]+s.stamp(L,f"f1q{q}")
        def stat(t,X):
            r=s.rstd(X,vRs[t])
            return [s.stat_rd(X,t,"st"), [], ["@wlg st"]+r[:4], r[4:8], r[8:], s.bext(X,X+1), [f"v_mul_f32 v{vA+2*t}, {f2u(-LOG2E):#x}, v{vRs[t]}", f"v_mov_b32 v{vA+2*t+1}, v{vA+2*t}"]]
        weave(sl, stat(0,SX+4), 0, 8)
        allx=[[f"s_sub_u32 s{P2}, s{pQtr}, s{sW8}", f"s_subb_u32 s{P2+1}, s{pQtr+1}, 0", f"s_mov_b32 s{t1_}, 0"]]+s.dmas(32, vL16, P2, L*LOFF+X1_, t1_, LP, P1, "z", "sc1")
        c=s.check(L,2,ACC[0],allx,Ls,allcu=True,idn=20+L)
        sl[34]+=c[0]; sl[35]+=c[1]
        w2=[]
        for c in range(2): w2+=s.loads([W2R(2*k+c) for k in range(12,16)], vL16x, pW2[c], 12*KB, P0, f"w2b{c}_")
        sl[3]+=s.flag(L,3,"xst")
        weave(sl, w2[:4], 4, 12)
        sl[12]+=s.poll_i(L,3)
        weave(sl, w2[4:], 13, 22)
        sl[23]+=s.poll_c(L,3)
        weave(sl, s.x_fetch(L,1), 24, 44)
        wq=[]
        if L==0:
            for c in range(2): wq+=s.dmas(8, vL16x, pWQ[c], WQF, s16, LR+c*8192, P1, f"wq{c}_")
            weave(sl, wq[:10], 44, 66)
        weave(sl, s.silu(L,0,0,False), 36, 60)
        sl[60]+=s.f1_sync(L,1)
        weave(sl, stat(1,SX+4)[:5], 61, 65)
        sl[65]+=flat(stat(1,SX+4)[5:])
        weave(sl, s.silu(L,0,1,False), 66, 92)
        wc=[s.loads([W2R(32+2*kk+c) for kk in range(12)], vL16x, pW2[c], 16*KB, P0+4*c, f"w2c{c}_") for c in range(2)]
        weave(sl, wq[10:]+[wc[i%2][i//2] for i in range(24)], 66, 128 if L==0 else 114)
        weave(sl, s.silu(L,1,0,False), 98, 124)
        s.hl=[s.loads([HWR(28*t+k) for k in range(28)], vL16, pHl, L*LOFF+t*112*KB, P1, f"h{t}_", "sc1") for t in range(2)]
        s.h0=0 if L==0 else 6
        if L==1:
            sl[114]+=s.gate(L,4); weave(sl, s.hl[0][:6], 115, 128)
        a(sl)
    def f2(s, L):
        a=s.a
        hl=s.hl
        if L==0: a(s.gate(L,4))
        a(hl[0][s.h0:s.h0+2])
        sl=[[x] if isinstance(x,str) else x for x in s.silu(L,1,1,True)]
        weave(sl, hl[0][s.h0+2:s.h0+9])
        a(sl); a(s.stamp(L,"sil"))
        a(hl[0][s.h0+9:16])
        for t in range(2):
            acc=ACC[t]; sl=[]
            order=[(ks,c) for ks in range(22) for c in (1,0)]+[(ks,1) for ks in range(22,28)]+[(ks,0) for ks in range(22,28)]
            for (ks,c) in order:
                p=[]
                if c==1:
                    w=[f"h{t}_{ks}"]
                    if t==0: w+= [f"w2{cc}_{ks}" if ks<12 else (f"w2b{cc}_{ks-12}" if ks<16 else f"w2c{cc}_{ks-16}") for cc in range(2)]
                    p=[f"@wvm {' '.join(w)}"]
                p.append(mf(acc+16*c, W2R(2*ks+c), HWR(28*t+ks), "0" if ks==0 else None))
                if c==0 and ks+16<28: p+=hl[t][ks+16]
                sl.append(p)
            Ls=a.label("f2st")
            if t==0:
                sl[4]+=s.flag(L,4,"hst0")
                if L==0:
                    cp=[[f"s_add_u32 s{t1_}, s{s16}, {LR}", f"v_add_u32 v{vA}, s{t1_}, v{vL16}", "@wvm wq1_7"]]+[f"ds_read_b128 {R(WQR(c,k))}, v{vA} offset:{c*8192+k*1024} ;@wqr" for c in range(2) for k in range(8)]
                    weave(sl, cp, 6, 40)
                sl[24]+=s.gate(L,5)
                for k in range(10): sl[25+2*k]+=hl[1][k]
                sl[34]+=s.flag(L,5,"hst1")
            elif L==0:
                sl[24]+=s.wkv_loads()+s.gate(L,6)
                weave(sl, s.qkv_loads(1,0), 25, 45)
                sl[34]+=s.flag(L,6,"xst")
            sl[48]+=flat(s.red_addr("C" if t==0 else "P"))
            w=s.red_write(acc)
            c=s.check(L,4+t,acc+16,hl[t][:16],Ls)
            sl[52]+=c[0]; sl[53]+=c[1]+[w[2]]; sl[54]+=[w[3]]; sl[55]+=w[4:6]
            a(f"{Ls}:"); a(sl)
            if t==0: a(hl[1][10:12])
            a(w[:2]); a("@wlg rw\ns_barrier"); a(s.stamp(L,f"f2{t}b")); a(s.red_read())
            if t==0: a(hl[1][12:16])
            for i in range(4): a(f"v_lshlrev_b32 v{acc+8+2*i}, 16, v{XR[t]+i}\nv_and_b32 v{acc+8+2*i+1}, 0xffff0000, v{XR[t]+i}")
            a(s.red_add(acc))
            for i in range(8): a(f"v_fma_f32 v{acc+i}, v{vRs[t]}, v{acc+i}, v{acc+8+i}")
            if L==0:
                a(s.emit_x(acc, t, LOFF+XA_, LOFF+SA_, acc+8))
                if t==1: a(s.cs_loads())
            else:
                x=XR[t]
                for i in range(4): a(f"v_cvt_pk_bf16_f32 v{x+i}, v{acc+2*i}, v{acc+2*i+1}")
                a(f"""v_and_b32 v{acc}, 31, v0
                v_lshlrev_b32 v{acc}, 10, v{acc}
                v_lshrrev_b32 v{acc+1}, 5, v0
                v_lshl_add_u32 v{acc}, v{acc+1}, 4, v{acc}
                v_permlane32_swap_b32 v{x}, v{x+2}
                v_permlane32_swap_b32 v{x+1}, v{x+3}
                s_lshl_b32 s{t1_}, s{sJ}, 2
                s_add_u32 s{t1_}, s{t1_}, s{sW}
                s_lshl_b32 s{t1_}, s{t1_}, 5
                s_lshl_b32 s{t2_}, s{sG}, 16
                s_add_u32 s{t1_}, s{t1_}, s{t2_}
                s_add_u32 s{t1_}, s{t1_}, {t*32*KB}
                buffer_store_dwordx4 {v(x,4)}, v{acc}, s[8:11], s{t1_} offen""")
            a(s.stamp(L,f"f2{t}e"))

def k_main(a):
    s=M(a)
    def p64(p, src): a(f"s_add_u32 s{p}, s4, s{src}\ns_addc_u32 s{p+1}, s5, 0")
    a(f"s_cmp_ge_u32 s2, 256\ns_cbranch_scc1 {a.endl}")
    if STAMP:
        for j in range(1,13): a(f"s_mov_b32 s{72+2*j}, 0")
        a("s_memrealtime s[70:71]\ns_memtime s[72:73]")
    GR=3
    a(f"""s_load_dwordx2 s[4:5], s[0:1], 80
    s_load_dwordx2 s[8:9], s[0:1], 64
    v_lshrrev_b32 v1, 6, v0
    v_readfirstlane_b32 s{sW}, v1
    v_and_b32 v0, 63, v0
    s_and_b32 s{sG}, s2, 31
    s_lshr_b32 s{sJ}, s2, 5
    s_mov_b32 s6, {WS_SIZE}
    s_mov_b32 s7, 0x20000
    s_mov_b32 s10, {2*MB}
    s_mov_b32 s11, 0x20000
    v_lshlrev_b32 v{vL16}, 4, v0
    v_lshlrev_b32 v{vL4}, 2, v0
    s_and_b32 s60, s{sW}, 1
    s_lshl_b32 s{sKVl}, s60, 10
    s_lshl_b32 s60, s60, 8
    v_xor_b32 v{vL16x}, s60, v{vL16}
    s_lshl_b32 s{GR}, s{sG}, 20
    s_add_u32 s{GR}, s{GR}, {GBASE}
    s_lshl_b32 s{sW8}, s{sW}, 13
    s_add_u32 s{pQtr}, s{sW8}, s{GR}
    s_lshl_b32 s{pStL}, s{sW}, 11
    s_add_u32 s{pStL}, s{pStL}, s{GR}
    s_lshr_b32 s63, s{sW}, 1
    s_lshl_b32 s62, s{sJ}, 1
    s_add_u32 s63, s63, s62
    s_lshl_b32 s{pWQ[0]}, s63, 15
    s_add_u32 s{pWQ[0]}, s{pWQ[0]}, s{sW8}
    s_xor_b32 s{pWQ[1]}, s{pWQ[0]}, {32*KB}
    s_waitcnt lgkmcnt(0)""")
    for p in (pQtr,pStL,pWQ[0],pWQ[1]): p64(p,p)
    a(s.qkv_loads(0,0)); a(s.wkv_loads())
    for c in (1,0): a(s.loads([WQR(c,k) for k in range(8)], vL16x, pWQ[c], WQF, P0, f"wqd{c}_"))
    a(s.cs_loads()); a(s.qkv_loads(0,1))
    a(f"""s_lshl_b32 s60, s{sJ}, 2
    s_add_u32 s60, s60, s{sW}               ; 4j+w
    s_lshl_b32 s{sOwn}, s60, 10
    s_add_u32 s{sOwn}, s{sOwn}, s{GR}
    s_add_u32 s{sFlS}, s60, s{GR}
    s_add_u32 s{sFlS}, s{sFlS}, {FL_}
    s_lshl_b32 s{sFlP}, s{sW}, 3
    s_add_u32 s{sFlP}, s{sFlP}, s{GR}
    s_add_u32 s{sFlP}, s{sFlP}, {FL_}
    s_lshl_b32 s{sStS}, s{sJ}, 10
    s_lshl_b32 s60, s{sW}, 2
    s_add_u32 s{sStS}, s{sStS}, s60
    s_add_u32 s{sStS}, s{sStS}, s{GR}
    s_mul_i32 s60, s{sJ}, 7
    s_lshl_b32 s61, s{sW}, 1
    s_add_u32 s60, s60, s61                 ; F1 cb0 = 7j+2w
    s_lshl_b32 s{sHs[0]}, s60, 11
    s_add_u32 s{sHs[0]}, s{sHs[0]}, s{GR}
    s_add_u32 s{sHs[0]}, s{sHs[0]}, {H_}
    s_add_u32 s{sHs[1]}, s{sHs[0]}, 2048
    s_lshl_b32 s{pW1[0]}, s60, 15
    s_add_u32 s{pW1[0]}, s{pW1[0]}, {W1F}
    s_add_u32 s{pW1[1]}, s{pW1[0]}, {32*KB}
    s_lshl_b32 s61, s60, 9
    s_add_u32 s61, s61, {CS1}
    s_add_u32 s62, s61, 512
    s_cmp_eq_u32 s{sW}, 3
    s_cselect_b32 s{sHs[1]}, s{sHs[0]}, s{sHs[1]}
    s_cselect_b32 s{pW1[1]}, s{pW1[0]}, s{pW1[1]}
    s_cselect_b32 s62, s61, s62
    v_lshrrev_b32 v{vA}, 1, v{vL16}
    buffer_load_dwordx2 {v(CS1R,2)}, v{vA}, {WSR}, s61 offen
    buffer_load_dwordx2 {v(CS1R+2,2)}, v{vA}, {WSR}, s62 offen
    s_add_u32 s61, s{sOwn}, {XA_}
    buffer_load_dwordx4 {v(XR[0],4)}, v{vL16}, {WSR}, s61 offen
    s_add_u32 s61, s{sOwn}, {XA_+32*KB}
    buffer_load_dwordx4 {v(XR[1],4)}, v{vL16}, {WSR}, s61 offen
    s_mul_i32 s{pHl}, s{sW}, {28*KB}
    s_mul_i32 s{pW2[0]}, s63, {112*KB}
    s_xor_b32 s63, s63, 1
    s_mul_i32 s{pW2[1]}, s63, {112*KB}
    s_add_u32 s60, s{pHl}, {W2F}
    s_add_u32 s{pW2[0]}, s{pW2[0]}, s60
    s_add_u32 s{pW2[1]}, s{pW2[1]}, s60
    s_add_u32 s{pHl}, s{pHl}, s{GR}
    s_add_u32 s{pHl}, s{pHl}, {H_}
    s_lshl_b32 s{sKVd}, s{sW}, 12
    s_add_u32 s{pKVd}, s{sKVd}, {KVI}
    s_add_u32 s{pKVl}, s{sKVl}, {KVI}
    s_mov_b32 s{sPure}, 0
    s_mov_b32 s{sBud}, 100000
    s_mov_b32 s{sONE}, 1.0
    s_mov_b32 s{sONE+1}, 1.0
    s_getreg_b32 s{sXcc}, hwreg(HW_REG_XCC_ID)
    s_add_u32 s{sXcc}, s{sXcc}, 1
    v_mov_b32 v{vP}, s{sXcc}
    s_lshl_b32 s60, s{sJ}, 7
    s_add_u32 s60, s60, s{GR}
    s_add_u32 s60, s60, {XID_}
    s_mov_b64 exec, 1
    buffer_store_dword v{vP}, off, {WSR}, s60 sc1
    s_mov_b64 exec, -1
    v_mov_b32 v{vOnes}, {ONES:#x}
    v_mov_b32 v{vOne}, 1""")
    for p in (pHl,pW2[0],pW2[1],pW1[0],pW1[1],pKVd,pKVl): p64(p,p)
    for i in (0,1,4,5): a(f"v_mov_b32 v{vBX+i}, 0")
    for i in range(4): a(f"s_xor_b32 s60, s{sW}, {i}\ns_lshl_b32 s{s16+i}, s60, 14\ns_mul_i32 s60, s60, {CST}\ns_add_u32 s{s7+i}, s60, {LC}")
    a(f"s_mov_b32 s{sLast}, 0\ns_mov_b32 s0, 0\n@wvm csq"); a(s.stamp(0,"ld"))
    for L in range(2):
        if L==1: a("@wlg wqr")
        s.qkv(L,0); s.qkv(L,1); s.att(L); s.op(L,0); s.op(L,1); s.f1(L); s.f2(L)
    if STAMP:
        a("s_memtime s[98:99]\ns_memrealtime s[100:101]\ns_waitcnt lgkmcnt(0)\nv_mov_b32 v4, 0x57a3")
        for j in range(14): a(f"v_writelane_b32 v4, s{70+2*j}, {j}")
        a(f"""v_writelane_b32 v4, s98, 19
        v_writelane_b32 v4, s100, 20
        v_writelane_b32 v4, s{sBud}, 21
        v_writelane_b32 v4, s{sPure}, 22
        v_writelane_b32 v4, s0, 23
        s_lshl_b32 s60, s2, 2
        s_add_u32 s60, s60, s{sW}
        s_lshl_b32 s60, s60, 7
        s_add_u32 s60, s60, {TS}
        s_mov_b64 exec, 0xffffffff
        buffer_store_dword v4, v{vL4}, {WSR}, s60 offen""")
    a(f"s_endpgm\n@optb"); a(s.ool); a("@opte")

gen2.KERNELS=[("prep_kernel",k_prep,512,36864,256),("main_kernel",k_main,256,LDS_TOTAL,512)]
if __name__=="__main__":
    for x in sys.argv[2:]:
        if x.startswith("stamp"): STAMP=True; STL=int(x[5]); STO=int(x[7:] or 0)
        elif "=" in x:
            k,val=x.split("="); globals()[k]=int(val)
    p = sys.argv[1] if len(sys.argv)>1 and sys.argv[1]!="-" else "cdna_kernels/"+NAME+".s"
    open(p,"w").write(gen2.build())
```

```python
import sys
import gen2
from gen2 import *
sPure=12; sBud=13; sXcc=14; sKF=15; sW=16; sG=17; sJ=18; sW8=19
sOwn=20; sFlS=21; sFlP=22; sStS=23; sHs=[24,25]; s7=26; s16=30; sONE=34; sKVd=36; sKVl=37
pQtr=38; pStL=40; pHl=42; pWQ=[44,46]; pW2=[48,50]; pW1=[52,54]; pKVd=56; pKVl=58
t0_,t1_,t2_,t3_=60,61,62,63; P0,P1,P2=64,66,68
vL16=1; vL16x=2; vL4=3; vOnes=4; vOne=5; vRs=[6,7]; vBX=8; vP=14; XR=[16,20]; Q=[24,28]
ACC=[32,64]; T=96; CS1R=120; vA=124
A0=256
def W1R(c,ks): return A0+128*c+4*ks
def W2R(i): return 128+4*i if i<32 else A0+4*(i-32)
def HWR(i): return A0+96+4*(i%16)
def WKR(ks): return A0+160+4*ks
def WQR(c,ks): return A0+192+32*c+4*ks
BQ=[32,160]; SQ=[24,200]; QACC=[64,32]; KACC=128; CSK=208; CSQR=210; OB=224; SX=24; sLast=3
XID_=FL_+3072; gen2.XID_=XID_
STAMP=False; STL=0; STO=0; STAG=8; TOUCH=1; ATS=0; FORCEFB=0; PFC=1
def flat(x):
    o=[]
    for y in x: o+= flat(y) if isinstance(y,list) else [y]
    return o

class M:
    def __init__(s,a): s.a=a; s.ool=[]; s.nst=0; s.cnt=0
    def stamp(s,L,name):
        if STAMP and L==STL:
            s.cnt+=1
            if s.cnt>STO and s.nst<12:
                s.nst+=1; s.a.stamps.append(name)
                return [f"s_memtime s[{72+2*s.nst}:{73+2*s.nst}]"]
        return []
    def base(s, pt, pb, c): return [f"s_add_u32 s{pt}, s{pb}, {c}", f"s_addc_u32 s{pt+1}, s{pb+1}, 0"]
    def loads(s, regs, voff, pb, const, pt, tag, fl=""):
        out=[]
        for i,r in enumerate(regs):
            it=s.base(pt,pb,const+i*1024+4096) if i%8==0 else []
            out.append(it+[f"global_load_dwordx4 {R(r)}, v{voff}, s[{pt}:{pt+1}] offset:{(i%8)*1024-4096} {fl} ;@{tag}{i}"])
        return out
    def dmas(s, n, voff, pb, const, sl, lconst, pt, tag, fl=""):
        out=[]
        for i in range(n):
            it=[f"s_add_u32 m0, s{sl}, {lconst+i*1024}"]+s.base(pt,pb,const+i*1024) if i%4==0 else []
            out.append(it+[f"global_load_lds_dwordx4 v{voff}, s[{pt}:{pt+1}] offset:{(i%4)*1024} {fl} ;@{tag}{i}"])
        return out
    def pub(s, stores, one=False):
        Ls=s.a.label("slow"); Lb=s.a.label("back")
        s.ool += [f"{Ls}:"] + (["s_mov_b64 exec, 1"] if one else []) + [x.replace("{F}","sc1").split(";@")[0] for x in stores] + (["s_mov_b64 exec, -1"] if one else []) + [f"s_branch {Lb}"]
        return [f"s_cmp_eq_u32 s{sPure}, 0", f"s_cbranch_scc1 {Ls}"]+[x.replace("{F}","") for x in stores]+[f"{Lb}:"]
    def flag(s, L, step, *tags):
        return [f"@wvm {' '.join(tags)}"] + s.pub([f"buffer_store_byte v{vOne}, off, {WSR}, s{sFlS} offset:{(8*L+step)*128} {{F}}"], one=True)
    def poll_i(s, L, step):
        return [f"buffer_load_dwordx2 {v(vP,2)}, off, {WSR}, s{sFlP} offset:{(8*L+step)*128} sc1 ;@poll"]
    def retry(s, ld, chk, okbr):
        Lr=s.a.label("retry"); Lb=s.a.label("back")
        s.ool += [f"{Lr}:", f"s_sub_u32 s{sBud}, s{sBud}, 1", f"s_cmp_lt_i32 s{sBud}, 0", f"s_cbranch_scc1 {Lb}", ld.split(";@")[0], "s_waitcnt vmcnt(0)"]+chk+[f"{okbr[0]} {Lb}", f"s_branch {Lr}"]
        return ["@wvm poll"]+chk+[f"{okbr[1]} {Lr}", f"{Lb}:"]
    def poll_c(s, L, step):
        return s.retry(s.poll_i(L,step)[0], [f"v_and_b32 v{vP}, v{vP}, v{vP+1}", f"v_readfirstlane_b32 s{t0_}, v{vP}", f"s_cmp_eq_u32 s{t0_}, 0x01010101"], ("s_cbranch_scc1","s_cbranch_scc0"))
    def block(s, L, step, allcu=False):
        Lr=s.a.label("blk"); Le=s.a.label("blke"); Lp=s.a.label("blkp"); off=(8*L+step)*128
        o=["s_waitcnt vmcnt(0)", f"s_cmp_eq_u32 s{sPure}, 0", f"s_cbranch_scc1 {Lp}", f"buffer_store_byte v{vOne}, off, {WSR}, s{sFlS} offset:{off}", f"s_branch {Lr}",
           f"{Lp}:", "s_mov_b64 exec, 1", f"buffer_store_byte v{vOne}, off, {WSR}, s{sFlS} offset:{off} sc1", "s_mov_b64 exec, -1",
           f"{Lr}:", f"s_sub_u32 s{sBud}, s{sBud}, 1", f"s_cmp_lt_i32 s{sBud}, 0", f"s_cbranch_scc1 {Le}"]
        if allcu:
            o+=[f"s_and_b32 s{t0_}, s{sFlP}, 0xffffffe0", f"v_and_b32 v{vP+1}, 28, v{vL4}", f"buffer_load_dword v{vP}, v{vP+1}, {WSR}, s{t0_} offen offset:{off} sc1", "s_waitcnt vmcnt(0)",
                f"v_cmp_ne_u32 vcc, 0x01010101, v{vP}", f"s_cbranch_vccnz {Lr}"]
        else:
            o+=[f"buffer_load_dwordx2 {v(vP,2)}, off, {WSR}, s{sFlP} offset:{off} sc1", "s_waitcnt vmcnt(0)", f"v_and_b32 v{vP}, v{vP}, v{vP+1}", f"v_readfirstlane_b32 s{t0_}, v{vP}",
                f"s_cmp_eq_u32 s{t0_}, 0x01010101", f"s_cbranch_scc0 {Lr}"]
        return o+[f"{Le}:"]
    def gate(s, L, step):
        Lg=s.a.label("gate"); Lb=s.a.label("back")
        s.ool+=[f"{Lg}:"]+s.block(L,step)+[f"s_branch {Lb}"]
        return [f"s_cmp_eq_u32 s{sPure}, 0", f"s_cbranch_scc1 {Lg}", f"{Lb}:"]
    def check(s, L, step, reg, reload, start, allcu=False, idn=None):
        Lr=s.a.label("redo"); Lb=s.a.label("back"); idn=8*L+step+1 if idn is None else idn
        s.ool+=[f"{Lr}:", f"s_cmp_eq_u32 s{sLast}, {idn}", f"s_cbranch_scc1 {Lb}", f"s_mov_b32 s{sLast}, {idn}"]
        if STAMP: s.ool+=[f"s_bitset1_b32 s0, {idn}"]
        s.ool+=s.block(L,step,allcu)+[x.split(";@")[0] for x in flat(reload)]+["s_waitcnt vmcnt(0) lgkmcnt(0)", f"s_branch {start}"]
        return [f"v_cmp_u_f32 vcc, v{reg}, v{reg}"], [f"s_cbranch_vccnz {Lr}", f"{Lb}:"]
    def kvpoll_i(s, L, t):
        return [f"v_lshlrev_b32 v{vP+1}, 7, v0", f"s_mov_b32 s{t3_}, {KVF+(2*L+t)*8192}", f"buffer_load_dword v{vP}, v{vP+1}, {WSR}, s{t3_} offen sc1 ;@poll"]
    def kvpoll_c(s):
        return s.retry(s.kvpoll_i(0,0)[2], [f"v_cmp_ne_u32 vcc, 1, v{vP}"], ("s_cbranch_vccz","s_cbranch_vccnz"))
    def red_addr(s, buf):
        if buf=="C": return [f"v_add_u32 v{vA+i}, s{s7+i}, v{vL16}" for i in range(4)]
        if buf=="P": return [f"v_add_u32 v{vA+i}, s{s16+i}, v{vL16}" for i in range(4)]
        return [[f"s_add_u32 s{t1_}, s{s16+i}, {LR}", f"v_add_u32 v{vA+i}, s{t1_}, v{vL16}"] for i in range(4)]
    def red_write(s, acc):
        return [f"ds_write_b128 v{vA}, {v(acc+8+4*i,4)} offset:{i*1024} ;@rw" for i in range(6)]
    def red_read(s):
        return [f"ds_read_b128 {v(T+4*i,4)}, v{vA+1+i//2} offset:{i*1024} ;@rr{i}" for i in (2,3,4,5,0,1)]
    def red_add(s, acc):
        o=[]
        for i in (2,3,4,5,0,1):
            o.append(f"@wlg rr{i}")
            for h in range(2): o.append(f"v_pk_add_f32 {v(acc+4*(i%2)+2*h,2)}, {v(acc+4*(i%2)+2*h,2)}, {v(T+4*i+2*h,2)}")
        return o
    def sum8(s, r):
        return [f"v_add_f32 v{r+i}, v{r+i}, v{r+i+4}" for i in range(4)]+[f"v_add_f32 v{r}, v{r}, v{r+2}", f"v_add_f32 v{r+1}, v{r+1}, v{r+3}", f"v_add_f32 v{r}, v{r}, v{r+1}"]
    def bext(s, p, t):
        return [f"v_mul_f32 v{t}, {f2u(-1/512):#x}, v{p}", f"v_cvt_pk_bf16_f32 v{vBX+2}, v{t}, v{t}", f"v_and_b32 v{vBX+3}, 0xffff0000, v{vBX+2}",
                f"v_sub_f32 v{t}, v{t}, v{vBX+3}", f"v_cvt_pk_bf16_f32 v{vBX+3}, v{t}, v{t}"]
    def stat_rd(s, r, slot, tag):
        return [f"v_add_u32 v{r+3}, {LC}, v{vL4}"]+[f"ds_read_b32 v{r+i}, v{r+3} offset:{i*CST+6144+256*slot} ;@{tag}" for i in range(4)]
    def stat_wr(s, p, t, slot):
        return [f"v_add_u32 v{t}, s{s7}, v{vL4}", f"ds_write_b32 v{t}, v{p} offset:{6144+256*slot} ;@rw"]
    def rstd(s, r, dst):
        return [f"v_add_f32 v{r}, v{r}, v{r+2}", f"v_add_f32 v{r+1}, v{r+1}, v{r+3}", f"v_add_f32 v{r}, v{r}, v{r+1}", f"v_mov_b32 v{r+1}, v{r}",
                f"v_permlane32_swap_b32 v{r}, v{r+1}", f"v_mul_f32 v{r+2}, {f2u(1/512):#x}, v{r}", f"v_mul_f32 v{r+1}, {f2u(1/512):#x}, v{r+1}",
                f"v_fma_f32 v{r+1}, -v{r+2}, v{r+2}, v{r+1}", f"v_max_f32 v{r+1}, 0, v{r+1}", f"v_add_f32 v{r+1}, {f2u(1e-5):#x}, v{r+1}", f"v_rsq_f32 v{dst}, v{r+1}"]
    def emit_x(s, acc, t, xoff, soff, tmp):
        o=[f"s_add_u32 s{t1_}, s{sOwn}, {xoff+t*32*KB}", f"s_add_u32 s{t2_}, s{sStS}, {soff+t*8*KB}"]
        o+=[f"v_cvt_pk_bf16_f32 v{XR[t]+i}, v{acc+2*i}, v{acc+2*i+1}" for i in range(4)]
        for i in range(4):
            o+=[f"v_dot2_f32_bf16 v{tmp}, v{XR[t]+i}, v{vOnes}, {'0' if i==0 else v(tmp)}", f"v_dot2_f32_bf16 v{tmp+1}, v{XR[t]+i}, v{XR[t]+i}, {'0' if i==0 else v(tmp+1)}"]
        o+=[f"v_permlane32_swap_b32 v{tmp}, v{tmp+1}", f"v_add_f32 v{tmp}, v{tmp}, v{tmp+1}"]
        o+=s.pub([f"buffer_store_dwordx4 {v(XR[t],4)}, v{vL16}, {WSR}, s{t1_} offen {{F}}", f"buffer_store_dword v{tmp}, v{vL16}, {WSR}, s{t2_} offen {{F}} ;@xst"])
        return o
    def qkv_loads(s, L, t):
        return s.loads([SQ[t],SQ[t]+4], vL16, pStL, L*LOFF+SA_+t*8*KB, P0, f"sq{t}_", "sc1") + s.loads([BQ[t]+4*i for i in range(8)], vL16, pQtr, L*LOFF+XA_+t*32*KB, P0, f"bq{t}_", "sc1")
    def cs_loads(s):
        return [[f"v_lshrrev_b32 v{vA+3}, 1, v{vL16x}", f"s_lshr_b32 s{t1_}, s{sW}, 1", f"s_lshl_b32 s{t2_}, s{sJ}, 1", f"s_add_u32 s{t1_}, s{t1_}, s{t2_}", f"s_lshl_b32 s{t1_}, s{t1_}, 9", f"s_add_u32 s{t1_}, s{t1_}, {CSQ}",
                f"buffer_load_dwordx2 {v(CSQR,2)}, v{vA+3}, {WSR}, s{t1_} offen", f"s_xor_b32 s{t1_}, s{t1_}, 512", f"buffer_load_dwordx2 {v(CSQR+2,2)}, v{vA+3}, {WSR}, s{t1_} offen",
                f"v_lshrrev_b32 v{vA+3}, 1, v{vL16}", f"s_mov_b32 s{t1_}, {CSKV}", f"buffer_load_dwordx2 {v(CSK,2)}, v{vA+3}, {WSR}, s{t1_} offen ;@csq"]]
    def wkv_loads(s):
        Lk=s.a.label("nokv")
        o=[f"s_cmp_ge_u32 s{sJ}, 2", f"s_cbranch_scc1 {Lk}", "@optb", f"s_add_u32 s{P2}, s4, s{sW8}", f"s_addc_u32 s{P2+1}, s5, 0"]
        return o+flat(s.loads([WKR(k) for k in range(8)], vL16, P2, WKVF, P2, "wk"))+["@opte", f"{Lk}:"]
    def ksplit(s, acc, Areg, Breg, btag, ext, pre=None, post=None, c0init="0", chk=None):
        sl=[]
        for i in range(16):
            c,ks=1-i//8,i%8
            p=([f"@wvm {btag}{ks}"] if c==1 else [])+(pre(i) if pre else [])
            p.append(mf(acc+16*c, Areg(c,ks), Breg(ks), ("0" if c==1 else c0init) if ks==0 else None))
            p+=(post(i) if post else [])
            if ext and ks==7: sl.append(p); p=[mf(acc+16*c, CSQR, vBX+2-2*c)]
            sl.append(p)
        w=s.red_write(acc); n=len(sl)
        if chk: sl[n-6]+=chk[0]; sl[n-5]+=chk[1]
        for k in range(4): sl[n-4+k if chk else n-5+k]+=[w[2+k]]
        sl.append([]); sl.append(w[:2]+["@wlg rw","s_barrier"])
        return sl

    def qkv(s, L, t):
        a=s.a; acc=QACC[t]; kacc=KACC; sq=SQ[t]
        Ls=a.label("qst"); ck=(lambda r: s.check(L-1,6+t,r,s.qkv_loads(L,t),Ls)) if L>0 else (lambda r:([],[]))
        a(s.red_addr("C" if t==0 else "P"))
        a(f"{Ls}:\n@wvm sq{t}_1"); a(s.sum8(sq)); c=ck(sq); a(c[0]); a(s.stat_wr(sq, sq+1, 2+t)); a(s.bext(sq, sq+1)); a(c[1])
        Ln=a.label("nkv"); Lv=a.label("v"); X=sq+2
        a(f"s_mov_b32 s{sKF}, 0\ns_cmp_lg_u32 s{sJ}, {t}\ns_cbranch_scc1 {Ln}\n@optb")
        a(f"v_add_u32 v{X}, s{s16}, v{vL16}\ns_lshl_b32 s{t1_}, s{sW}, 11\nv_add_u32 v{X+1}, s{t1_}, v{vL16}")
        for ks in range(8):
            a(f"@wvm bq{t}_{ks}"); a(mf(kacc, WKR(ks), BQ[t]+4*ks, "0" if ks==0 else None))
        a("@wvm csq"); a(mf(kacc, CSK, vBX+2))
        c=ck(kacc); a(c[0]+c[1])
        if L>0: a(f"s_mov_b32 s{sLast}, {8*(L-1)+6+t+1}")
        for i in range(4): a(f"ds_write_b128 v{X}, {v(kacc+4*i,4)} offset:{8192+i*1024}")
        a(f"s_waitcnt lgkmcnt(0)\ns_barrier\ns_cmp_ge_u32 s{sW}, 2\ns_cbranch_scc1 {Ln}")
        a(s.stat_rd(T, 2+t, "st"))
        for i in range(8): a(f"ds_read_b128 {v(OB+4*i,4)}, v{X+1} offset:{(i//2)*16384+8192+(i%2)*1024} ;@kr{i}")
        a(f"""s_mul_i32 s{t1_}, s{sG}, {KVT}
        s_add_u32 s{t1_}, s{t1_}, {KVI+(2*L+t)*KVH}
        s_lshl_b32 s{sKF}, s{sG}, 8
        s_add_u32 s{sKF}, s{sKF}, {KVF+(2*L+t)*8192}""")
        a("@wlg st"); a(s.rstd(T, T+4)); a(f"v_mov_b32 v{T+5}, v{T+4}")
        for i in range(2,8):
            a(f"@wlg kr{i}")
            for h in range(2): a(f"v_pk_add_f32 {v(OB+4*(i%2)+2*h,2)}, {v(OB+4*(i%2)+2*h,2)}, {v(OB+4*i+2*h,2)}")
        for i in range(4): a(f"v_pk_mul_f32 {v(OB+2*i,2)}, {v(OB+2*i,2)}, {v(T+4,2)}")
        for i in range(4): a(f"v_cvt_pk_bf16_f32 v{OB+8+i}, v{OB+2*i}, v{OB+2*i+1}")
        a(f"""s_cmp_eq_u32 s{sW}, 1
        s_cbranch_scc1 {Lv}
        buffer_store_dwordx4 {v(OB+8,4)}, v{vL16}, {WSR}, s{t1_} offen sc1
        s_branch {Ln}
        {Lv}:
        v_bfe_u32 v{T}, v0, 3, 2
        v_mul_u32_u24 v{T}, 272, v{T}
        v_and_b32 v{T+1}, 7, v0
        v_lshl_add_u32 v{T+1}, v{T+1}, 1, v{T}
        v_lshrrev_b32 v{T+2}, 5, v0
        v_lshl_add_u32 v{T+1}, v{T+2}, 6, v{T+1}""")
        VI=16384+12288
        for r in range(8):
            a(f"{'ds_write_b16' if r%2==0 else 'ds_write_b16_d16_hi'} v{T+1}, v{OB+8+r//2} offset:{VI+(8*(r//4)+r%4)*16}")
        for i in range(4): a(f"v_mov_b32 v{OB+i}, v{vOnes}")
        a(f"""ds_write_b128 v{T}, {v(OB,4)} offset:{VI+256}
        s_waitcnt lgkmcnt(0)
        ds_read_b128 {v(OB+12,4)}, v{vL16} offset:{VI}
        ds_read_b128 {v(OB+16,4)}, v{vL16} offset:{VI+1024}
        s_waitcnt lgkmcnt(0)
        buffer_store_dwordx4 {v(OB+12,4)}, v{vL16}, {WSR}, s{t1_} offen offset:1024 sc1
        s_mov_b64 exec, 15
        buffer_store_dwordx4 {v(OB+16,4)}, v{vL16}, {WSR}, s{t1_} offen offset:2048 sc1
        s_mov_b64 exec, -1
        s_add_u32 s{sKF}, s{sKF}, 128
        @opte
        {Ln}:""")
        sl=s.ksplit(acc, WQR, lambda k:BQ[t]+4*k, f"bq{t}_", True, chk=ck(acc+16) if L>0 else None)
        sl[7]+=["@wvm csq"]
        if t==0 and L>0:
            ql=s.qkv_loads(L,1)
            sl[-2]+=s.flag(L-1, 7, "xst")+s.gate(L-1,7)+flat(ql[:4])
        a(sl); a(s.stamp(L,f"q{t}b"))
        a(s.stat_rd(sq+4, 2+t, "st")); a(s.red_read())
        Lk=a.label("nkf")
        a(f"""s_cmp_eq_u32 s{sKF}, 0
        s_cbranch_scc1 {Lk}
        @optb
        s_waitcnt vmcnt({4 if (t==0 and L>0) else 0})
        s_mov_b64 exec, 1
        buffer_store_dword v{vOne}, off, {WSR}, s{sKF} sc1
        s_mov_b64 exec, -1
        @opte
        {Lk}:""")
        if t==1: a(s.kvpoll_i(L,0))
        e=[[x] for x in ["@wlg st"]+s.rstd(sq+4, sq)+[f"v_mul_f32 v{sq}, {f2u(0.25*LOG2E):#x}, v{sq}", f"v_mov_b32 v{sq+1}, v{sq}"]+s.red_add(acc)]
        if t==0 and L>0: weave(e, ql[4:])
        a(e)
        for i in range(4): a(f"v_pk_mul_f32 {v(acc+2*i,2)}, {v(acc+2*i,2)}, {v(sq,2)}")
        for i in range(4): a(f"v_cvt_pk_bf16_f32 v{Q[t]+i}, v{acc+2*i}, v{acc+2*i+1}")
        a(s.stamp(L,f"q{t}e"))

    def att_fin(s, L, t, O, W):
        a=s.a; Lf=a.label("fb"); Lb=a.label("fbback"); L1=a.label("p1"); L2=a.label("p2")
        sc=[f"v_rcp_f32 v{O+10}, v{O+8}", f"v_subrev_u32 v{O+9}, {f2u(2.0**-60):#x}, v{O+8}"]+[f"v_mul_f32 v{O+i}, v{O+10}, v{O+i}" for i in range(8)]
        o=sc+[f"v_cmp_lt_u32 vcc, {f2u(2.0**100)-f2u(2.0**-60):#x}, v{O+9}"]
        o+=[f"v_add_f32 v{O+12+i}, v{O+i}, v{O+4+i}" for i in range(4)]+[f"v_add_f32 v{O+12}, v{O+12}, v{O+13}", f"v_add_f32 v{O+14}, v{O+14}, v{O+15}", f"s_mov_b32 s{t1_}, 0x207", f"v_add_f32 v{O+12}, v{O+12}, v{O+14}",
           f"v_cmp_class_f32 s[{P2}:{P2+1}], v{O+12}, s{t1_}", f"s_add_u32 s{t1_}, s{sOwn}, {L*LOFF+O_+t*32*KB}", f"s_or_b64 vcc, vcc, s[{P2}:{P2+1}]", f"s_cbranch_vccnz {Lf}" if not FORCEFB else f"s_branch {Lf}", f"{Lb}:"]
        o+=[f"v_cvt_pk_bf16_f32 v{O+12+i}, v{O+2*i}, v{O+2*i+1}" for i in range(4)]
        o+=s.pub([f"buffer_store_dwordx4 {v(O+12,4)}, v{vL16}, {WSR}, s{t1_} offen {{F}} ;@ost{t}"])
        S=W; K=W+16; V=W+20; m=W+28; va=W+29; c1=P2; c2=P2+1
        f=[f"{Lf}:", f"v_mov_b32 v{m}, 0xff800000", f"s_mov_b32 s{c1}, {KVI+2*L*KVH}", f"s_mov_b32 s{c2}, 64", f"{L1}:",
           f"buffer_load_dwordx4 {v(K,4)}, v{vL16}, {WSR}, s{c1} offen sc1", "s_waitcnt vmcnt(0)", mf(S,K,Q[t],"0")]
        f+=[f"v_max_f32 v{m}, v{m}, v{S+i}" for i in range(16)]
        nxt=lambda l:[f"s_add_u32 s{c1}, s{c1}, {KVT}", f"s_sub_u32 s{c2}, s{c2}, 1", f"s_cmp_lg_u32 s{c2}, 0", f"s_cbranch_scc1 {l}"]
        f+=nxt(L1)+[f"v_mov_b32 v{va}, v{m}", f"v_permlane32_swap_b32 v{m}, v{va}", f"v_max_f32 v{m}, v{m}, v{va}",
            f"v_and_b32 v{va}, 31, v0", f"v_min_u32 v{va}, 16, v{va}", f"v_lshlrev_b32 v{va}, 4, v{va}", f"v_lshrrev_b32 v{va+1}, 5, v0", f"v_mul_u32_u24 v{va+1}, 272, v{va+1}", f"v_add_u32 v{va}, v{va}, v{va+1}"]
        f+=[f"v_mov_b32 v{O+i}, 0" for i in range(16)]
        f+=[f"s_mov_b32 s{c1}, {KVI+2*L*KVH}", f"s_mov_b32 s{c2}, 64", f"{L2}:",
            f"buffer_load_dwordx4 {v(K,4)}, v{vL16}, {WSR}, s{c1} offen sc1", f"buffer_load_dwordx4 {v(V,4)}, v{va}, {WSR}, s{c1} offen offset:1024 sc1",
            f"buffer_load_dwordx4 {v(V+4,4)}, v{va}, {WSR}, s{c1} offen offset:{1024+544} sc1", "s_waitcnt vmcnt(0)", mf(S,K,Q[t],"0")]
        f+=[f"v_sub_f32 v{S+i}, v{S+i}, v{m}" for i in range(16)]+[f"v_exp_f32 v{S+i}, v{S+i}" for i in range(16)]
        f+=[f"v_smfmac_f32_32x32x32_bf16 {v(O,16)}, {v(V+4*u,4)}, {v(S+8*u,8)}, v{vA}" for u in range(2)]
        f+=nxt(L2)+sc+[f"s_branch {Lb}"]
        s.ool+=f
        return o
    def kv_dma(s, L, t):
        lb = LR if t==0 else LP
        out=[]
        for r in range(4): out+=s.dmas(4, vL16, pKVd, (2*L+t)*KVH+r*16384, sKVd, lb+r*16384, P1, f"kv{t}_{r}_", "sc1")
        out+=s.dmas(1, vL16, pKVl, (2*L+t)*KVH+65536, sKVl, lb+65536, P1, f"kv{t}_4_", "sc1")
        return out
    def att(s, L):
        a=s.a
        S=[32,48]; O=[64,80]; KR=[96,100]; VR=[104,112]; IDX=vA; vK=vA+1; vV=vA+2
        jobs=[(t,k) for k in range(32) for t in range(2)]+[(0,k) for k in range(32,32+STAG)]+[(t,k) for k in range(32+STAG,64) for t in range(2)]+[(1,k) for k in range(32,32+STAG)]
        N=len(jobs)
        kap=[0]
        for i in range(1,N): kap.append(kap[-1]+(jobs[i][1]!=jobs[i-1][1]))
        first={}
        for i in range(N): first.setdefault(kap[i], i)
        NK=kap[-1]+1
        def laddr(k): return (LR+k*KVT) if k<32 else (LP+(k-32)*KVT)
        base={"K":LR,"V":LR}
        def rd(kind, kp, u=0):
            kt=jobs[first[kp]][1]
            ad=laddr(kt)+(0 if kind=="K" else 1024+u*544); o=[]
            reg=vK if kind=="K" else vV
            if not (0<=ad-base[kind]<65536):
                nb=laddr(kt); o.append(f"v_add_u32 v{reg}, {(nb-base[kind])&0xffffffff:#x}, v{reg}"); base[kind]=nb
            dst=KR[kp%2] if kind=="K" else VR[kp%2]+4*u
            return o+[f"ds_read_b128 {v(dst,4)}, v{reg} offset:{ad-base[kind]} ;@{kind}{kp}_{u}"]
        def smf(i,u): return [f"@wlg V{kap[i]}_{u}", f"v_smfmac_f32_32x32x32_bf16 {v(O[jobs[i][0]],16)}, {v(VR[kap[i]%2]+4*u,4)}, {v(S[i%2]+8*u,8)}, v{IDX}"]
        def qk(i): return [f"@wlg K{kap[i]}_0", mf(S[i%2], KR[kap[i]%2], Q[jobs[i][0]], "0")]
        def ex(r0,r1): return [f"v_exp_f32 v{r}, v{r}" for r in range(r0,r1)]
        d0=s.kv_dma(L,0); d1=s.kv_dma(L,1)
        a(f"""v_mov_b32 v{IDX}, 0xdddddddd
        v_add_u32 v{vK}, {LR}, v{vL16}
        v_and_b32 v{vV}, 31, v0
        v_min_u32 v{vV}, 16, v{vV}
        v_lshlrev_b32 v{vV}, 4, v{vV}
        v_lshrrev_b32 v{vA+3}, 5, v0
        v_mul_u32_u24 v{vA+3}, 272, v{vA+3}
        v_add_u32 v{vV}, v{vV}, v{vA+3}
        v_add_u32 v{vV}, {LR}, v{vV}""")
        for i in range(32): a(f"v_mov_b32 v{O[0]+i}, 0")
        a(f"v_lshlrev_b32 v{OB+8}, 7, v0\nv_lshlrev_b32 v{OB+9}, 10, v0")
        for i in range(4): a(f"v_mov_b32 v{OB+i}, -1")
        touch=[]
        def pst(sb, c, n=1, dw=False):
            Lk=a.label("np")
            it=[f"s_cmp_eq_u32 s{sPure}, 0", f"s_cbranch_scc1 {Lk}", "@optb", f"s_add_u32 s{t1_}, s{sb}, {c}"]
            for k in range(n): it.append(f"buffer_store_dword v{OB}, v{vL16}, {WSR}, s{t1_} offen" if dw else f"buffer_store_dwordx4 {v(OB,4)}, v{vL16}, {WSR}, s{t1_} offen offset:{k*1024}")
            touch.append(it+["@opte", f"{Lk}:"])
        for t in range(2):
            pst(sOwn, L*LOFF+O_+t*32*KB); pst(sOwn, L*LOFF+X1_+t*32*KB); pst(sStS, L*LOFF+S1_+t*8*KB, dw=True)
            for c in range(2): pst(sHs[c], L*LOFF+t*112*KB, 2)
            if L==0: pst(sOwn, LOFF+XA_+t*32*KB); pst(sStS, LOFF+SA_+t*8*KB, dw=True)
        if L==1: touch.append([f"s_lshl_b32 s{t1_}, s{sG}, 16", f"s_lshl_b32 s{t2_}, s{sJ}, 7", f"s_add_u32 s{t1_}, s{t1_}, s{t2_}", f"buffer_load_dword v{OB+6}, v{OB+9}, s[8:11], s{t1_} offen"])
        warm=[[f"s_bitcmp1_b32 s{sG}, 4", f"s_cselect_b64 s[{P2}:{P2+1}], s[{pW2[1]}:{pW2[1]+1}], s[{pW2[0]}:{pW2[0]+1}]", f"s_and_b32 s{t1_}, s{sG}, 8", f"s_lshl_b32 s{t1_}, s{t1_}, 10", f"s_add_u32 s{t1_}, s{t1_}, {12*KB}",
               f"s_add_u32 s{P2}, s{P2}, s{t1_}", f"s_addc_u32 s{P2+1}, s{P2+1}, 0", f"global_load_dword v{OB+6}, v{OB+8}, s[{P2}:{P2+1}] ;@warm"]]
        if L==0: warm.append([f"s_bitcmp1_b32 s{sG}, 3", f"s_cselect_b64 s[{P2}:{P2+1}], s[{pWQ[1]}:{pWQ[1]+1}], s[{pWQ[0]}:{pWQ[0]+1}]", f"global_load_dword v{OB+6}, v{OB+8}, s[{P2}:{P2+1}]"])
        a(s.kvpoll_c()); a(s.stamp(L,"kvp"))
        a(d0[:7])
        a("@wvm kv0_0_3\ns_barrier"); a(s.stamp(L,"kv0"))
        a(rd("K",0)+rd("V",0,0)+rd("V",0,1)+rd("K",1)+qk(0))
        A=[[] for _ in range(N)]; B=[[] for _ in range(N)]; C=[[] for _ in range(N)]
        fr=[]
        for i in range(N):
            kp=kap[i]; isf=first[kp]==i; last=(i+1==N or kap[i+1]!=kp)
            if isf and last:
                if kp+1<NK: A[i]+=[f"@wlg K{kp+1}_0"]+rd("V",kp+1,0); B[i]+=rd("V",kp+1,1)
                if kp+2<NK: C[i]+=rd("K",kp+2)
            elif isf:
                A[i]+=rd("V",kp+1,0); B[i]+=rd("V",kp+1,1); fr.append((i,C[i]))
            else:
                A[i]+=[f"@wlg V{kp+1}_1"]; fr.append((i,B[i])); C[i]+=rd("K",kp+2)
        def put(items, j0, j1):
            sl=[l for (j,l) in fr if j0<=j<j1]; weave(sl, items)
        def at(j): return [l for (jj,l) in fr if jj>=j][0]
        put(d0[7:], 0, 5)
        at(9).extend(["@wvm kv0_4_0","s_barrier"])
        at(12).extend(s.kvpoll_i(L,1))
        at(20).extend(s.kvpoll_c())
        put(d1, 21, 31)
        if L==0:
            ldx=f"buffer_load_dword v{vP}, v{vP+1}, {WSR}, s{t3_} offen sc1 ;@poll"
            at(31).extend([f"v_and_b32 v{vP+1}, 7, v0", f"v_lshlrev_b32 v{vP+1}, 7, v{vP+1}", f"s_lshl_b32 s{t3_}, s{sG}, 20", f"s_add_u32 s{t3_}, s{t3_}, {GBASE+XID_}", ldx])
            at(40).extend(s.retry(ldx, [f"v_cmp_eq_u32 vcc, 0, v{vP}"], ("s_cbranch_vccz","s_cbranch_vccnz"))+[f"v_cmp_ne_u32 vcc, s{sXcc}, v{vP}", "s_cmp_eq_u64 vcc, 0", f"s_cselect_b32 s{sPure}, 1, 0"])
        w1=[]
        for c in range(2): w1+=s.loads([W1R(c,k) for k in range(32)], vL16, pW1[c], 0, P0, f"w1{c}_")
        put(w1[:24], 32, 44)
        at(44).extend(["@wvm kv1_4_0","s_barrier"])
        put(touch, 45, 59)
        put(w1[24:34], 59, 64)
        j2=64+STAG
        at(j2).append("s_barrier")
        wo=[]
        for c in range(2): wo+=s.dmas(8, vL16x, pWQ[c], WOF, s16, LR+c*8192, P1, f"wo{c}_")
        put(w1[34:], j2+1, j2+16); j2+=15
        put(wo, j2+1, j2+9)
        w2=[]
        for c in range(2): w2+=s.loads([W2R(2*k+c) for k in range(12)], vL16x, pW2[c], 0, P0, f"w2{c}_")
        put(w2, j2+9, j2+21)
        put(warm, j2+21, j2+23)
        e0=N-STAG
        if ATS:
            for j in (10,20,32,44,60,72,88,100,110): A[j]+=s.stamp(L,f"j{j}")
        at(j2+14).extend(s.flag(2,L,"w10_31"))
        at(j2+23).extend(s.poll_i(2,L))
        at(e0-3).extend(s.poll_c(2,L))
        C[e0-1]+=s.stamp(L,"a0")+s.att_fin(L,0,O[0],OB)
        C[e0+3]+=s.flag(L,0,"ost0")
        ob=s.loads([OB+4*i for i in range(8)], vL16, pQtr, L*LOFF+O_, P0, "ob", "sc1")
        C[N-2]+=s.gate(L,0)+flat(ob[:2]); A[N-1]+=flat(ob[2:4]); B[N-1]+=flat(ob[4:6]); C[N-1]+=flat(ob[6:])
        for i in range(N):
            Sa=S[i%2]
            a(ex(Sa,Sa+2)+(smf(i-1,1) if i>0 else [])+A[i]+ex(Sa+2,Sa+5)+(qk(i+1) if i+1<N else [])+B[i]+ex(Sa+5,Sa+10)+smf(i,0)+C[i]+ex(Sa+10,Sa+16))
        a(f"s_add_u32 s{t1_}, s{s16}, {LR}\nv_add_u32 v6, s{t1_}, v{vL16}")
        a(smf(N-1,1)); a(s.stamp(L,"a1"))
        a("@wvm wo1_7"); a(s.op_rd(0,6))
        a(s.att_fin(L,1,O[1],32))

    def op_rd(s, i0, i1):
        return [f"ds_read_b128 {v(T+4*(i%6),4)}, v6 offset:{(1-i//8)*8192+(i%8)*1024} ;@oa{i}" for i in range(i0,i1)]
    def x_fetch(s, L, t):
        return s.loads([SX,SX+4], vL16, pStL, L*LOFF+S1_+t*8*KB, P1, "s1_", "sc1") + s.dmas(8, vL16, pQtr, L*LOFF+X1_+t*32*KB, sW8, LP+t*32*KB, P1, f"xd{t}_", "sc1")
    def op(s, L, t):
        a=s.a; acc=ACC[t]
        Ls=a.label("opst"); obl=lambda tt: s.loads([OB+4*i for i in range(8)], vL16, pQtr, L*LOFF+O_+tt*32*KB, P0, "ob", "sc1")
        sl=s.ksplit(acc, lambda c,k:T+4*(((1-c)*8+k)%6), lambda k:OB+4*k, "ob", False,
                    pre=lambda i:[f"@wlg oa{i}"], post=lambda i:(s.op_rd(i+6,i+7) if i+6<16 else []), c0init=None,
                    chk=s.check(L,t,acc+16,obl(t)+s.op_rd(0,6),Ls))
        ini=flat([[f"v_lshlrev_b32 v{acc+2*i}, 16, v{XR[t]+i}", f"v_and_b32 v{acc+2*i+1}, 0xffff0000, v{XR[t]+i}"] for i in range(4)])+[f"v_mov_b32 v{acc+8+i}, 0" for i in range(8)]
        weave(sl, ini+s.red_addr("C" if t==0 else "R"), 0, 7)
        nx = obl(1) if t==0 else s.x_fetch(L,0)
        sl[-2]+=(s.flag(L,1,"ost1")+s.gate(L,1) if t==0 else s.flag(L,2,"xst")+s.gate(L,2))+flat(nx[:3])
        a(f"{Ls}:"); a(sl); a(s.stamp(L,f"o{t}b"))
        a(s.red_read())
        e=s.red_add(acc)+(s.op_rd(0,6) if t==0 else [])+s.emit_x(acc, t, L*LOFF+X1_, L*LOFF+S1_, acc+8)
        k=e.index(f"s_cmp_eq_u32 s{sPure}, 0")
        sl=[[x] for x in e[:k]]+[e[k:]]
        a(nx[3:5]); weave(sl, nx[5:], 2, k); a(sl); a(s.stamp(L,f"o{t}e"))

    def silu(s, L, t, c, pk):
        acc=ACC[t]; E=T+16; sc=vA+2*t; out=[]
        for h in range(2):
            b=acc+16*c+8*h
            if pk:
                out+=[f"v_pk_mul_f32 {v(E+2*i,2)}, {v(b+2*i,2)}, {v(sc,2)}" for i in range(4)]
                out+=[f"v_exp_f32 v{E+i}, v{E+i}" for i in range(8)]
                out+=[f"v_pk_add_f32 {v(E+2*i,2)}, {v(E+2*i,2)}, s[{sONE}:{sONE+1}]" for i in range(4)]
                out+=[f"v_rcp_f32 v{E+i}, v{E+i}" for i in range(8)]
                out+=[f"v_pk_mul_f32 {v(E+2*i,2)}, {v(b+2*i,2)}, {v(E+2*i,2)}" for i in range(4)]
                out+=[f"v_cvt_pk_bf16_f32 v{b+i}, v{E+2*i}, v{E+2*i+1}" for i in range(4)]
            else:
                mu=[f"v_mul_f32 v{E+i}, v{sc}, v{b+i}" for i in range(8)]; exx=[f"v_exp_f32 v{E+i}, v{E+i}" for i in range(8)]
                ad=[f"v_add_f32 v{E+i}, 1.0, v{E+i}" for i in range(8)]; rc=[f"v_rcp_f32 v{E+i}, v{E+i}" for i in range(8)]
                m2=[f"v_mul_f32 v{E+i}, v{b+i}, v{E+i}" for i in range(8)]; cv=[f"v_cvt_pk_bf16_f32 v{b+i}, v{E+2*i}, v{E+2*i+1}" for i in range(4)]
                out+=[mu[0:5],[mu[5],exx[0],exx[1]],[mu[6],exx[2],exx[3]],[mu[7],exx[4],exx[5]],[ad[0],exx[6],exx[7]],
                      [ad[1],ad[2],ad[3],rc[0]],[ad[4],rc[1],rc[2]],[ad[5],rc[3],rc[4]],[ad[6],ad[7],m2[0],rc[5]],[m2[1],rc[6],rc[7]],
                      m2[2:7],[m2[7]]+cv]
            out.append([f"s_add_u32 s{t1_}, s{sHs[c]}, {L*LOFF+t*112*KB+h*1024}"]+s.pub([f"buffer_store_dwordx4 {v(b,4)}, v{vL16}, {WSR}, s{t1_} offen {{F}} ;@hst{t}"]))
        return out
    def f1_sync(s, L, t):
        c=([],[]); Ls=s.a.label("f1sy")
        if t==0: c=s.check(L,2,SX,s.x_fetch(L,0),Ls)
        return [f"{Ls}:","@wvm s1_1"]+s.sum8(SX)+c[0]+s.stat_wr(SX,SX+1,t)+[f"@wvm xd{t}_7","@wlg rw"]+c[1]+["s_barrier"]
    def f1(s, L):
        a=s.a
        def rd(n):
            q,ks=n//32,n%32
            return [f"ds_read_b128 {v(T+4*(n%4),4)}, v{vL16} offset:{LP+(q//2)*32*KB+ks*1024} ;@xb{n}"]
        a(s.f1_sync(L,0)); a(s.stamp(L,"f1s"))
        Ls=a.label("f1st"); a(f"{Ls}:")
        a(rd(0)+rd(1)+rd(2)+["@wlg xb0", "@wvm w11_31"])
        sl=[];
        for n in range(128):
            q,ks=n//32,n%32; t,c=q//2,q%2
            p=[mf(ACC[t]+16*c, W1R(c,ks), T+4*(n%4), "0" if ks==0 else None)]
            if n+3<128: p+=rd(n+3)
            if n+1<128: p+=[f"@wlg xb{n+1}"]
            sl.append(p)
        for q in range(4):
            sl[32*q+31]+=[mf(ACC[q//2]+16*(q%2), CS1R, vBX+2-2*(q%2))]+s.stamp(L,f"f1q{q}")
        def stat(t,X):
            r=s.rstd(X,vRs[t])
            return [s.stat_rd(X,t,"st"), [], ["@wlg st"]+r[:4], r[4:8], r[8:], s.bext(X,X+1), [f"v_mul_f32 v{vA+2*t}, {f2u(-LOG2E):#x}, v{vRs[t]}", f"v_mov_b32 v{vA+2*t+1}, v{vA+2*t}"]]
        weave(sl, stat(0,SX+4), 0, 8)
        allx=[[f"s_sub_u32 s{P2}, s{pQtr}, s{sW8}", f"s_subb_u32 s{P2+1}, s{pQtr+1}, 0", f"s_mov_b32 s{t1_}, 0"]]+s.dmas(32, vL16, P2, L*LOFF+X1_, t1_, LP, P1, "z", "sc1")
        c=s.check(L,2,ACC[0],allx,Ls,allcu=True,idn=20+L)
        sl[34]+=c[0]; sl[35]+=c[1]
        w2=[]
        for c in range(2): w2+=s.loads([W2R(2*k+c) for k in range(12,16)], vL16x, pW2[c], 12*KB, P0, f"w2b{c}_")
        sl[3]+=s.flag(L,3,"xst")
        weave(sl, w2[:4], 4, 12)
        sl[12]+=s.poll_i(L,3)
        weave(sl, w2[4:], 13, 22)
        sl[23]+=s.poll_c(L,3)
        weave(sl, s.x_fetch(L,1), 24, 44)
        wq=[]
        if L==0:
            for c in range(2): wq+=s.dmas(8, vL16x, pWQ[c], WQF, s16, LR+c*8192, P1, f"wq{c}_")
            weave(sl, wq[:10], 44, 66)
        weave(sl, s.silu(L,0,0,False), 36, 60)
        sl[60]+=s.f1_sync(L,1)
        weave(sl, stat(1,SX+4)[:5], 61, 65)
        sl[65]+=flat(stat(1,SX+4)[5:])
        weave(sl, s.silu(L,0,1,False), 66, 92)
        wc=[s.loads([W2R(32+2*kk+c) for kk in range(12)], vL16x, pW2[c], 16*KB, P0+4*c, f"w2c{c}_") for c in range(2)]
        weave(sl, wq[10:]+[wc[i%2][i//2] for i in range(24)], 66, 128 if L==0 else 114)
        weave(sl, s.silu(L,1,0,False), 98, 124)
        s.hl=[s.loads([HWR(28*t+k) for k in range(28)], vL16, pHl, L*LOFF+t*112*KB, P1, f"h{t}_", "sc1") for t in range(2)]
        s.h0=0 if L==0 else 6
        if L==1:
            sl[114]+=s.gate(L,4); weave(sl, s.hl[0][:6], 115, 128)
        a(sl)
    def f2(s, L):
        a=s.a
        hl=s.hl
        if L==0: a(s.gate(L,4))
        a(hl[0][s.h0:s.h0+2])
        sl=[[x] if isinstance(x,str) else x for x in s.silu(L,1,1,True)]
        weave(sl, hl[0][s.h0+2:s.h0+9])
        a(sl); a(s.stamp(L,"sil"))
        a(hl[0][s.h0+9:16])
        for t in range(2):
            acc=ACC[t]; sl=[]
            order=[(ks,c) for ks in range(22) for c in (1,0)]+[(ks,1) for ks in range(22,28)]+[(ks,0) for ks in range(22,28)]
            for (ks,c) in order:
                p=[]
                if c==1:
                    w=[f"h{t}_{ks}"]
                    if t==0: w+= [f"w2{cc}_{ks}" if ks<12 else (f"w2b{cc}_{ks-12}" if ks<16 else f"w2c{cc}_{ks-16}") for cc in range(2)]
                    p=[f"@wvm {' '.join(w)}"]
                p.append(mf(acc+16*c, W2R(2*ks+c), HWR(28*t+ks), "0" if ks==0 else None))
                if c==0 and ks+16<28: p+=hl[t][ks+16]
                sl.append(p)
            Ls=a.label("f2st")
            if t==0:
                sl[4]+=s.flag(L,4,"hst0")
                if L==0:
                    cp=[[f"s_add_u32 s{t1_}, s{s16}, {LR}", f"v_add_u32 v{vA}, s{t1_}, v{vL16}", "@wvm wq1_7"]]+[f"ds_read_b128 {R(WQR(c,k))}, v{vA} offset:{c*8192+k*1024} ;@wqr" for c in range(2) for k in range(8)]
                    weave(sl, cp, 6, 40)
                sl[24]+=s.gate(L,5)
                for k in range(10): sl[25+2*k]+=hl[1][k]
                sl[34]+=s.flag(L,5,"hst1")
            elif L==0:
                sl[24]+=s.wkv_loads()+s.gate(L,6)
                weave(sl, s.qkv_loads(1,0), 25, 45)
                sl[34]+=s.flag(L,6,"xst")
            sl[48]+=flat(s.red_addr("C" if t==0 else "P"))
            w=s.red_write(acc)
            c=s.check(L,4+t,acc+16,hl[t][:16],Ls)
            sl[52]+=c[0]; sl[53]+=c[1]+[w[2]]; sl[54]+=[w[3]]; sl[55]+=w[4:6]
            a(f"{Ls}:"); a(sl)
            if t==0: a(hl[1][10:12])
            a(w[:2]); a("@wlg rw\ns_barrier"); a(s.stamp(L,f"f2{t}b")); a(s.red_read())
            if t==0: a(hl[1][12:16])
            for i in range(4): a(f"v_lshlrev_b32 v{acc+8+2*i}, 16, v{XR[t]+i}\nv_and_b32 v{acc+8+2*i+1}, 0xffff0000, v{XR[t]+i}")
            a(s.red_add(acc))
            for i in range(8): a(f"v_fma_f32 v{acc+i}, v{vRs[t]}, v{acc+i}, v{acc+8+i}")
            if L==0:
                a(s.emit_x(acc, t, LOFF+XA_, LOFF+SA_, acc+8))
                if t==1: a(s.cs_loads())
            else:
                x=XR[t]
                for i in range(4): a(f"v_cvt_pk_bf16_f32 v{x+i}, v{acc+2*i}, v{acc+2*i+1}")
                a(f"""v_and_b32 v{acc}, 31, v0
                v_lshlrev_b32 v{acc}, 10, v{acc}
                v_lshrrev_b32 v{acc+1}, 5, v0
                v_lshl_add_u32 v{acc}, v{acc+1}, 4, v{acc}
                v_permlane32_swap_b32 v{x}, v{x+2}
                v_permlane32_swap_b32 v{x+1}, v{x+3}
                s_lshl_b32 s{t1_}, s{sJ}, 2
                s_add_u32 s{t1_}, s{t1_}, s{sW}
                s_lshl_b32 s{t1_}, s{t1_}, 5
                s_lshl_b32 s{t2_}, s{sG}, 16
                s_add_u32 s{t1_}, s{t1_}, s{t2_}
                s_add_u32 s{t1_}, s{t1_}, {t*32*KB}
                buffer_store_dwordx4 {v(x,4)}, v{acc}, s[8:11], s{t1_} offen""")
            a(s.stamp(L,f"f2{t}e"))

def k_main(a):
    s=M(a)
    def p64(p, src): a(f"s_add_u32 s{p}, s4, s{src}\ns_addc_u32 s{p+1}, s5, 0")
    a(f"s_cmp_ge_u32 s2, 256\ns_cbranch_scc1 {a.endl}")
    if STAMP:
        for j in range(1,13): a(f"s_mov_b32 s{72+2*j}, 0")
        a("s_memrealtime s[70:71]\ns_memtime s[72:73]")
    GR=3
    a(f"""s_load_dwordx2 s[4:5], s[0:1], 80
    s_load_dwordx2 s[8:9], s[0:1], 64
    v_lshrrev_b32 v1, 6, v0
    v_readfirstlane_b32 s{sW}, v1
    v_and_b32 v0, 63, v0
    s_and_b32 s{sG}, s2, 31
    s_lshr_b32 s{sJ}, s2, 5
    s_mov_b32 s6, {WS_SIZE}
    s_mov_b32 s7, 0x20000
    s_mov_b32 s10, {2*MB}
    s_mov_b32 s11, 0x20000
    v_lshlrev_b32 v{vL16}, 4, v0
    v_lshlrev_b32 v{vL4}, 2, v0
    s_and_b32 s60, s{sW}, 1
    s_lshl_b32 s{sKVl}, s60, 10
    s_lshl_b32 s60, s60, 8
    v_xor_b32 v{vL16x}, s60, v{vL16}
    s_lshl_b32 s{GR}, s{sG}, 20
    s_add_u32 s{GR}, s{GR}, {GBASE}
    s_lshl_b32 s{sW8}, s{sW}, 13
    s_add_u32 s{pQtr}, s{sW8}, s{GR}
    s_lshl_b32 s{pStL}, s{sW}, 11
    s_add_u32 s{pStL}, s{pStL}, s{GR}
    s_lshr_b32 s63, s{sW}, 1
    s_lshl_b32 s62, s{sJ}, 1
    s_add_u32 s63, s63, s62
    s_lshl_b32 s{pWQ[0]}, s63, 15
    s_add_u32 s{pWQ[0]}, s{pWQ[0]}, s{sW8}
    s_xor_b32 s{pWQ[1]}, s{pWQ[0]}, {32*KB}
    s_waitcnt lgkmcnt(0)""")
    for p in (pQtr,pStL,pWQ[0],pWQ[1]): p64(p,p)
    a(s.qkv_loads(0,0)); a(s.wkv_loads())
    if PFC:
        a(f"""s_getpc_b64 s[64:65]
        Lpc0:
        s_add_u32 s64, s64, main_kernel-Lpc0
        s_addc_u32 s65, s65, -1
        s_mov_b32 s66, {a.endl}-main_kernel
        s_mov_b32 s67, 0x20000
        s_lshr_b32 s60, s2, 3
        s_lshl_b32 s60, s60, 12
        s_lshl_b32 s61, s{sW}, 10
        s_add_u32 s60, s60, s61
        buffer_load_dwordx4 {v(OB,4)}, v{vL16}, s[64:67], s60 offen""")
    for c in (1,0): a(s.loads([WQR(c,k) for k in range(8)], vL16x, pWQ[c], WQF, P0, f"wqd{c}_"))
    a(s.cs_loads()); a(s.qkv_loads(0,1))
    a(f"""s_lshl_b32 s60, s{sJ}, 2
    s_add_u32 s60, s60, s{sW}               ; 4j+w
    s_lshl_b32 s{sOwn}, s60, 10
    s_add_u32 s{sOwn}, s{sOwn}, s{GR}
    s_add_u32 s{sFlS}, s60, s{GR}
    s_add_u32 s{sFlS}, s{sFlS}, {FL_}
    s_lshl_b32 s{sFlP}, s{sW}, 3
    s_add_u32 s{sFlP}, s{sFlP}, s{GR}
    s_add_u32 s{sFlP}, s{sFlP}, {FL_}
    s_lshl_b32 s{sStS}, s{sJ}, 10
    s_lshl_b32 s60, s{sW}, 2
    s_add_u32 s{sStS}, s{sStS}, s60
    s_add_u32 s{sStS}, s{sStS}, s{GR}
    s_mul_i32 s60, s{sJ}, 7
    s_lshl_b32 s61, s{sW}, 1
    s_add_u32 s60, s60, s61                 ; F1 cb0 = 7j+2w
    s_lshl_b32 s{sHs[0]}, s60, 11
    s_add_u32 s{sHs[0]}, s{sHs[0]}, s{GR}
    s_add_u32 s{sHs[0]}, s{sHs[0]}, {H_}
    s_add_u32 s{sHs[1]}, s{sHs[0]}, 2048
    s_lshl_b32 s{pW1[0]}, s60, 15
    s_add_u32 s{pW1[0]}, s{pW1[0]}, {W1F}
    s_add_u32 s{pW1[1]}, s{pW1[0]}, {32*KB}
    s_lshl_b32 s61, s60, 9
    s_add_u32 s61, s61, {CS1}
    s_add_u32 s62, s61, 512
    s_cmp_eq_u32 s{sW}, 3
    s_cselect_b32 s{sHs[1]}, s{sHs[0]}, s{sHs[1]}
    s_cselect_b32 s{pW1[1]}, s{pW1[0]}, s{pW1[1]}
    s_cselect_b32 s62, s61, s62
    v_lshrrev_b32 v{vA}, 1, v{vL16}
    buffer_load_dwordx2 {v(CS1R,2)}, v{vA}, {WSR}, s61 offen
    buffer_load_dwordx2 {v(CS1R+2,2)}, v{vA}, {WSR}, s62 offen
    s_add_u32 s61, s{sOwn}, {XA_}
    buffer_load_dwordx4 {v(XR[0],4)}, v{vL16}, {WSR}, s61 offen
    s_add_u32 s61, s{sOwn}, {XA_+32*KB}
    buffer_load_dwordx4 {v(XR[1],4)}, v{vL16}, {WSR}, s61 offen
    s_mul_i32 s{pHl}, s{sW}, {28*KB}
    s_mul_i32 s{pW2[0]}, s63, {112*KB}
    s_xor_b32 s63, s63, 1
    s_mul_i32 s{pW2[1]}, s63, {112*KB}
    s_add_u32 s60, s{pHl}, {W2F}
    s_add_u32 s{pW2[0]}, s{pW2[0]}, s60
    s_add_u32 s{pW2[1]}, s{pW2[1]}, s60
    s_add_u32 s{pHl}, s{pHl}, s{GR}
    s_add_u32 s{pHl}, s{pHl}, {H_}
    s_lshl_b32 s{sKVd}, s{sW}, 12
    s_add_u32 s{pKVd}, s{sKVd}, {KVI}
    s_add_u32 s{pKVl}, s{sKVl}, {KVI}
    s_mov_b32 s{sPure}, 0
    s_mov_b32 s{sBud}, 100000
    s_mov_b32 s{sONE}, 1.0
    s_mov_b32 s{sONE+1}, 1.0
    s_getreg_b32 s{sXcc}, hwreg(HW_REG_XCC_ID)
    s_add_u32 s{sXcc}, s{sXcc}, 1
    v_mov_b32 v{vP}, s{sXcc}
    s_lshl_b32 s60, s{sJ}, 7
    s_add_u32 s60, s60, s{GR}
    s_add_u32 s60, s60, {XID_}
    s_mov_b64 exec, 1
    buffer_store_dword v{vP}, off, {WSR}, s60 sc1
    s_mov_b64 exec, -1
    v_mov_b32 v{vOnes}, {ONES:#x}
    v_mov_b32 v{vOne}, 1""")
    for p in (pHl,pW2[0],pW2[1],pW1[0],pW1[1],pKVd,pKVl): p64(p,p)
    for i in (0,1,4,5): a(f"v_mov_b32 v{vBX+i}, 0")
    for i in range(4): a(f"s_xor_b32 s60, s{sW}, {i}\ns_lshl_b32 s{s16+i}, s60, 14\ns_mul_i32 s60, s60, {CST}\ns_add_u32 s{s7+i}, s60, {LC}")
    a(f"s_mov_b32 s{sLast}, 0\ns_mov_b32 s0, 0\n@wvm csq"); a(s.stamp(0,"ld"))
    for L in range(2):
        if L==1: a("@wlg wqr")
        s.qkv(L,0); s.qkv(L,1); s.att(L); s.op(L,0); s.op(L,1); s.f1(L); s.f2(L)
    if STAMP:
        a("s_memtime s[98:99]\ns_memrealtime s[100:101]\ns_waitcnt lgkmcnt(0)\nv_mov_b32 v4, 0x57a3")
        for j in range(14): a(f"v_writelane_b32 v4, s{70+2*j}, {j}")
        a(f"""v_writelane_b32 v4, s98, 19
        v_writelane_b32 v4, s100, 20
        v_writelane_b32 v4, s{sBud}, 21
        v_writelane_b32 v4, s{sPure}, 22
        v_writelane_b32 v4, s0, 23
        s_lshl_b32 s60, s2, 2
        s_add_u32 s60, s60, s{sW}
        s_lshl_b32 s60, s60, 7
        s_add_u32 s60, s60, {TS}
        s_mov_b64 exec, 0xffffffff
        buffer_store_dword v4, v{vL4}, {WSR}, s60 offen""")
    a(f"s_endpgm\n@optb"); a(s.ool); a("@opte")

gen2.KERNELS=[("prep_kernel",k_prep,512,36864,256),("main_kernel",k_main,256,LDS_TOTAL,512)]
if __name__=="__main__":
    for x in sys.argv[2:]:
        if x.startswith("stamp"): STAMP=True; STL=int(x[5]); STO=int(x[7:] or 0)
        elif "=" in x:
            k,val=x.split("="); globals()[k]=int(val)
    p = sys.argv[1] if len(sys.argv)>1 and sys.argv[1]!="-" else "cdna_kernels/"+NAME+".s"
    open(p,"w").write(gen2.build())
```

```python
import sys
import gen2
from gen2 import *
sPure=12; sBud=13; sXcc=14; sKF=15; sW=16; sG=17; sJ=18; sW8=19
sOwn=20; sFlS=21; sFlP=22; sStS=23; sHs=[24,25]; s7=26; s16=30; sONE=34; sKVd=36; sKVl=37
pQtr=38; pStL=40; pHl=42; pWQ=[44,46]; pW2=[48,50]; pW1=[52,54]; pKVd=56; pKVl=58
t0_,t1_,t2_,t3_=60,61,62,63; P0,P1,P2=64,66,68
vL16=1; vL16x=2; vL4=3; vOnes=4; vOne=5; vRs=[6,7]; vBX=8; vP=14; XR=[16,20]; Q=[24,28]
ACC=[32,64]; T=96; CS1R=120; vA=124
A0=256
def W1R(c,ks): return A0+128*c+4*ks
def W2R(i): return 128+4*i if i<32 else A0+4*(i-32)
def HWR(i): return A0+96+4*(i%16)
def WKR(ks): return A0+160+4*ks
def WQR(c,ks): return A0+192+32*c+4*ks
BQ=[32,160]; SQ=[24,200]; QACC=[64,32]; KACC=128; CSK=208; CSQR=210; OB=224; SX=24; sLast=3
XIDG=KVF+32*KB; sNon=1; WQL=65536; KVL=131072; JG=8; pJ=34; pQ2=12
STAMP=False; STL=0; STO=0; STAG=8; TOUCH=1; ATS=0; FORCEFB=0; NW0=4; KFK=5; PFC=0; SINGLE=0
def flat(x):
    o=[]
    for y in x: o+= flat(y) if isinstance(y,list) else [y]
    return o

class M:
    def __init__(s,a): s.a=a; s.ool=[]; s.nst=0; s.cnt=0
    def stamp(s,L,name):
        if STAMP and L==STL:
            s.cnt+=1
            if s.cnt>STO and s.nst<12:
                s.nst+=1; s.a.stamps.append(name)
                return [f"s_memtime s[{72+2*s.nst}:{73+2*s.nst}]"]
        return []
    def base(s, pt, pb, c): return [f"s_add_u32 s{pt}, s{pb}, {c}", f"s_addc_u32 s{pt+1}, s{pb+1}, 0"]
    def loads(s, regs, voff, pb, const, pt, tag, fl=""):
        out=[]
        for i,r in enumerate(regs):
            it=s.base(pt,pb,const+i*1024+4096) if i%8==0 else []
            out.append(it+[f"global_load_dwordx4 {R(r)}, v{voff}, s[{pt}:{pt+1}] offset:{(i%8)*1024-4096} {fl} ;@{tag}{i}"])
        return out
    def dmas(s, n, voff, pb, const, sl, lconst, pt, tag, fl=""):
        out=[]
        for i in range(n):
            it=[f"s_add_u32 m0, s{sl}, {lconst+i*1024}"]+s.base(pt,pb,const+i*1024) if i%4==0 else []
            out.append(it+[f"global_load_lds_dwordx4 v{voff}, s[{pt}:{pt+1}] offset:{(i%4)*1024} {fl} ;@{tag}{i}"])
        return out
    def pub(s, stores, one=False):
        Ls=s.a.label("slow"); Lb=s.a.label("back")
        s.ool += [f"{Ls}:"] + (["s_mov_b64 exec, 1"] if one else []) + [x.replace("{F}","sc1").split(";@")[0] for x in stores] + (["s_mov_b64 exec, -1"] if one else []) + [f"s_branch {Lb}"]
        return [f"s_cmp_eq_u32 s{sPure}, 0", f"s_cbranch_scc1 {Ls}"]+[x.replace("{F}","") for x in stores]+[f"{Lb}:"]
    def flag(s, L, step, *tags):
        return [f"@wvm {' '.join(tags)}"] + s.pub([f"buffer_store_byte v{vOne}, off, {WSR}, s{sFlS} offset:{(8*L+step)*128} {{F}}"], one=True)
    def poll_i(s, L, step):
        return [f"buffer_load_dwordx2 {v(vP,2)}, off, {WSR}, s{sFlP} offset:{(8*L+step)*128} sc1 ;@poll"]
    def retry(s, ld, chk, okbr):
        Lr=s.a.label("retry"); Lb=s.a.label("back")
        s.ool += [f"{Lr}:", f"s_sub_u32 s{sBud}, s{sBud}, 1", f"s_cmp_lt_i32 s{sBud}, 0", f"s_cbranch_scc1 {Lb}", ld.split(";@")[0], "s_waitcnt vmcnt(0)"]+chk+[f"{okbr[0]} {Lb}", f"s_branch {Lr}"]
        return ["@wvm poll"]+chk+[f"{okbr[1]} {Lr}", f"{Lb}:"]
    def poll_c(s, L, step):
        return s.retry(s.poll_i(L,step)[0], [f"v_and_b32 v{vP}, v{vP}, v{vP+1}", f"v_readfirstlane_b32 s{t0_}, v{vP}", f"s_cmp_eq_u32 s{t0_}, 0x01010101"], ("s_cbranch_scc1","s_cbranch_scc0"))
    def block(s, L, step, allcu=False):
        Lr=s.a.label("blk"); Le=s.a.label("blke"); Lp=s.a.label("blkp"); off=(8*L+step)*128
        o=["s_waitcnt vmcnt(0)", f"s_cmp_eq_u32 s{sPure}, 0", f"s_cbranch_scc1 {Lp}", f"buffer_store_byte v{vOne}, off, {WSR}, s{sFlS} offset:{off}", f"s_branch {Lr}",
           f"{Lp}:", "s_mov_b64 exec, 1", f"buffer_store_byte v{vOne}, off, {WSR}, s{sFlS} offset:{off} sc1", "s_mov_b64 exec, -1",
           f"{Lr}:", f"s_sub_u32 s{sBud}, s{sBud}, 1", f"s_cmp_lt_i32 s{sBud}, 0", f"s_cbranch_scc1 {Le}"]
        if allcu:
            o+=[f"s_and_b32 s{t0_}, s{sFlP}, 0xffffffe0", f"v_and_b32 v{vP+1}, 28, v{vL4}", f"buffer_load_dword v{vP}, v{vP+1}, {WSR}, s{t0_} offen offset:{off} sc1", "s_waitcnt vmcnt(0)",
                f"v_cmp_ne_u32 vcc, 0x01010101, v{vP}", f"s_cbranch_vccnz {Lr}"]
        else:
            o+=[f"buffer_load_dwordx2 {v(vP,2)}, off, {WSR}, s{sFlP} offset:{off} sc1", "s_waitcnt vmcnt(0)", f"v_and_b32 v{vP}, v{vP}, v{vP+1}", f"v_readfirstlane_b32 s{t0_}, v{vP}",
                f"s_cmp_eq_u32 s{t0_}, 0x01010101", f"s_cbranch_scc0 {Lr}"]
        return o+[f"{Le}:"]
    def gate(s, L, step):
        Lg=s.a.label("gate"); Lb=s.a.label("back")
        s.ool+=[f"{Lg}:"]+s.block(L,step)+[f"s_branch {Lb}"]
        return [f"s_cmp_eq_u32 s{sPure}, 0", f"s_cbranch_scc1 {Lg}", f"{Lb}:"]
    def check(s, L, step, reg, reload, start, allcu=False, idn=None):
        Lr=s.a.label("redo"); Lb=s.a.label("back"); idn=8*L+step+1 if idn is None else idn
        s.ool+=[f"{Lr}:", f"s_cmp_eq_u32 s{sLast}, {idn}", f"s_cbranch_scc1 {Lb}", f"s_mov_b32 s{sLast}, {idn}"]
        if STAMP: s.ool+=[f"s_bitset1_b32 s0, {idn}"]
        s.ool+=s.block(L,step,allcu)+[x.split(";@")[0] for x in flat(reload)]+["s_waitcnt vmcnt(0) lgkmcnt(0)", f"s_branch {start}"]
        return [f"v_cmp_u_f32 vcc, v{reg}, v{reg}"], [f"s_cbranch_vccnz {Lr}", f"{Lb}:"]
    def kvpoll_i(s, L, t):
        return [f"v_lshlrev_b32 v{vP+1}, 7, v0", f"s_mov_b32 s{t3_}, {KVF+(2*L+t)*8192}", f"buffer_load_dword v{vP}, v{vP+1}, {WSR}, s{t3_} offen sc1 ;@poll"]
    def kvpoll_c(s):
        return s.retry(s.kvpoll_i(0,0)[2], [f"v_cmp_ne_u32 vcc, s{sNon}, v{vP}"], ("s_cbranch_vccz","s_cbranch_vccnz"))
    def red_addr(s, buf):
        if buf=="C": return [f"v_add_u32 v{vA+i}, s{s7+i}, v{vL16}" for i in range(4)]
        if buf=="P": return [f"v_add_u32 v{vA+i}, s{s16+i}, v{vL16}" for i in range(4)]
        return [[f"s_add_u32 s{t1_}, s{s16+i}, {LR}", f"v_add_u32 v{vA+i}, s{t1_}, v{vL16}"] for i in range(4)]
    def red_write(s, acc):
        return [f"ds_write_b128 v{vA}, {v(acc+8+4*i,4)} offset:{i*1024} ;@rw" for i in range(6)]
    def red_read(s):
        return [f"ds_read_b128 {v(T+4*i,4)}, v{vA+1+i//2} offset:{i*1024} ;@rr{i}" for i in (2,3,4,5,0,1)]
    def red_add(s, acc):
        o=[]
        for i in (2,3,4,5,0,1):
            o.append(f"@wlg rr{i}")
            for h in range(2): o.append(f"v_pk_add_f32 {v(acc+4*(i%2)+2*h,2)}, {v(acc+4*(i%2)+2*h,2)}, {v(T+4*i+2*h,2)}")
        return o
    def sum8(s, r):
        return [f"v_add_f32 v{r+i}, v{r+i}, v{r+i+4}" for i in range(4)]+[f"v_add_f32 v{r}, v{r}, v{r+2}", f"v_add_f32 v{r+1}, v{r+1}, v{r+3}", f"v_add_f32 v{r}, v{r}, v{r+1}"]
    def bext(s, p, t):
        return [f"v_mul_f32 v{t}, {f2u(-1/512):#x}, v{p}", f"v_cvt_pk_bf16_f32 v{vBX+2}, v{t}, v{t}", f"v_and_b32 v{vBX+3}, 0xffff0000, v{vBX+2}",
                f"v_sub_f32 v{t}, v{t}, v{vBX+3}", f"v_cvt_pk_bf16_f32 v{vBX+3}, v{t}, v{t}"]
    def stat_rd(s, r, slot, tag):
        return [f"v_add_u32 v{r+3}, {LC}, v{vL4}"]+[f"ds_read_b32 v{r+i}, v{r+3} offset:{i*CST+6144+256*slot} ;@{tag}" for i in range(4)]
    def stat_wr(s, p, t, slot):
        return [f"v_add_u32 v{t}, s{s7}, v{vL4}", f"ds_write_b32 v{t}, v{p} offset:{6144+256*slot} ;@rw"]
    def rstd(s, r, dst):
        return [f"v_add_f32 v{r}, v{r}, v{r+2}", f"v_add_f32 v{r+1}, v{r+1}, v{r+3}", f"v_add_f32 v{r}, v{r}, v{r+1}", f"v_mov_b32 v{r+1}, v{r}",
                f"v_permlane32_swap_b32 v{r}, v{r+1}", f"v_mul_f32 v{r+2}, {f2u(1/512):#x}, v{r}", f"v_mul_f32 v{r+1}, {f2u(1/512):#x}, v{r+1}",
                f"v_fma_f32 v{r+1}, -v{r+2}, v{r+2}, v{r+1}", f"v_max_f32 v{r+1}, 0, v{r+1}", f"v_add_f32 v{r+1}, {f2u(1e-5):#x}, v{r+1}", f"v_rsq_f32 v{dst}, v{r+1}"]
    def emit_x(s, acc, t, xoff, soff, tmp):
        o=[f"s_add_u32 s{t1_}, s{sOwn}, {xoff+t*32*KB}", f"s_add_u32 s{t2_}, s{sStS}, {soff+t*8*KB}"]
        o+=[f"v_cvt_pk_bf16_f32 v{XR[t]+i}, v{acc+2*i}, v{acc+2*i+1}" for i in range(4)]
        for i in range(4):
            o+=[f"v_dot2_f32_bf16 v{tmp}, v{XR[t]+i}, v{vOnes}, {'0' if i==0 else v(tmp)}", f"v_dot2_f32_bf16 v{tmp+1}, v{XR[t]+i}, v{XR[t]+i}, {'0' if i==0 else v(tmp+1)}"]
        o+=[f"v_permlane32_swap_b32 v{tmp}, v{tmp+1}", f"v_add_f32 v{tmp}, v{tmp}, v{tmp+1}"]
        o+=s.pub([f"buffer_store_dwordx4 {v(XR[t],4)}, v{vL16}, {WSR}, s{t1_} offen {{F}}", f"buffer_store_dword v{tmp}, v{vL16}, {WSR}, s{t2_} offen {{F}} ;@xst"])
        return o
    def qkv_loads(s, L, t):
        return s.loads([SQ[t],SQ[t]+4], vL16, pStL, L*LOFF+SA_+t*8*KB, P0, f"sq{t}_", "sc1") + s.loads([BQ[t]+4*i for i in range(8)], vL16, pQtr, L*LOFF+XA_+t*32*KB, P0, f"bq{t}_", "sc1")
    def cs_loads(s):
        return [[f"v_lshrrev_b32 v{vA+3}, 1, v{vL16x}", f"s_lshr_b32 s{t1_}, s{sW}, 1", f"s_lshl_b32 s{t2_}, s{sJ}, 1", f"s_add_u32 s{t1_}, s{t1_}, s{t2_}", f"s_lshl_b32 s{t1_}, s{t1_}, 9", f"s_add_u32 s{t1_}, s{t1_}, {CSQ}",
                f"buffer_load_dwordx2 {v(CSQR,2)}, v{vA+3}, {WSR}, s{t1_} offen", f"s_xor_b32 s{t1_}, s{t1_}, 512", f"buffer_load_dwordx2 {v(CSQR+2,2)}, v{vA+3}, {WSR}, s{t1_} offen",
                f"v_lshrrev_b32 v{vA+3}, 1, v{vL16}", f"s_mov_b32 s{t1_}, {CSKV}", f"buffer_load_dwordx2 {v(CSK,2)}, v{vA+3}, {WSR}, s{t1_} offen ;@csq"]]
    def wkv_loads(s):
        Lk=s.a.label("nokv")
        o=[f"s_cmp_ge_u32 s{sJ}, 2", f"s_cbranch_scc1 {Lk}", "@optb", f"s_add_u32 s{P2}, s4, s{sW8}", f"s_addc_u32 s{P2+1}, s5, 0"]
        return o+flat(s.loads([WKR(k) for k in range(8)], vL16, P2, WKVF, P2, "wk"))+["@opte", f"{Lk}:"]
    def ksplit(s, acc, Areg, Breg, btag, ext, pre=None, post=None, c0init="0", chk=None):
        sl=[]
        for i in range(16):
            c,ks=1-i//8,i%8
            p=([f"@wvm {btag}{ks}"] if c==1 and btag else [])+(pre(i) if pre else [])
            p.append(mf(acc+16*c, Areg(c,ks), Breg(ks), ("0" if c==1 else c0init) if ks==0 else None))
            p+=(post(i) if post else [])
            if ext and ks==7: sl.append(p); p=[mf(acc+16*c, CSQR, vBX+2-2*c)]
            sl.append(p)
        w=s.red_write(acc); n=len(sl)
        if chk: sl[n-6]+=chk[0]; sl[n-5]+=chk[1]
        for k in range(4): sl[n-4+k if chk else n-5+k]+=[w[2+k]]
        sl.append([]); sl.append(w[:2]+["@wlg rw","s_barrier"])
        return sl

    def qkv(s, L, t):
        a=s.a; acc=QACC[t]; kacc=KACC; sq=SQ[t]
        Ls=a.label("qst"); ck=(lambda r: s.check(L-1,6+t,r,s.qkv_loads(L,t),Ls)) if L>0 else (lambda r:([],[]))
        a(s.red_addr("C" if t==0 else "P"))
        a(f"{Ls}:")
        if L>0: a(f"@wvm sq{t}_1"); a(s.sum8(sq))
        E0=(L==0 and t==0)
        c=ck(sq); a(c[0]); a(s.stat_wr(sq, sq+1, 2+t)); a(s.bext(sq, sq+1)); a(c[1])
        Ln=a.label("nkv"); Lv=a.label("v"); X=sq+2
        a(f"s_mov_b32 s{sKF}, 0\ns_cmp_lg_u32 s{sJ}, {t}\ns_cbranch_scc1 {Ln}\n@optb")
        PO,PS,VB,VI=(0,CST,LC,CST+4096) if E0 else (8192,16384,0,16384+12288)
        a(f"v_add_u32 v{X}, s{s7 if E0 else s16}, v{vL16}\ns_lshl_b32 s{t1_}, s{sW}, 11\ns_add_u32 s{t1_}, s{t1_}, {VB}\nv_add_u32 v{X+1}, s{t1_}, v{vL16}\nv_add_u32 v{X+2}, {VB}, v{vL16}")
        for ks in range(8):
            if L>0: a(f"@wvm bq{t}_{ks}")
            a(mf(kacc, WKR(ks), BQ[t]+4*ks, "0" if ks==0 else None))
        if L>0: a("@wvm csq")
        a(mf(kacc, CSK, vBX+2))
        c=ck(kacc); a(c[0]+c[1])
        if L>0: a(f"s_mov_b32 s{sLast}, {8*(L-1)+6+t+1}")
        for i in range(4): a(f"ds_write_b128 v{X}, {v(kacc+4*i,4)} offset:{PO+i*1024}")
        a(f"s_waitcnt lgkmcnt(0)\ns_barrier\ns_cmp_ge_u32 s{sW}, 2\ns_cbranch_scc1 {Ln}")
        a(s.stat_rd(T, 2+t, "st"))
        for i in range(8): a(f"ds_read_b128 {v(OB+4*i,4)}, v{X+1} offset:{(i//2)*PS+PO+(i%2)*1024} ;@kr{i}")
        a(f"""s_mul_i32 s{t1_}, s{sG}, {KVT}
        s_add_u32 s{t1_}, s{t1_}, {KVI+(2*L+t)*KVH}
        s_lshl_b32 s{sKF}, s{sG}, 8
        s_add_u32 s{sKF}, s{sKF}, {KVF+(2*L+t)*8192}""")
        a("@wlg st"); a(s.rstd(T, T+4)); a(f"v_mov_b32 v{T+5}, v{T+4}")
        for i in range(2,8):
            a(f"@wlg kr{i}")
            for h in range(2): a(f"v_pk_add_f32 {v(OB+4*(i%2)+2*h,2)}, {v(OB+4*(i%2)+2*h,2)}, {v(OB+4*i+2*h,2)}")
        for i in range(4): a(f"v_pk_mul_f32 {v(OB+2*i,2)}, {v(OB+2*i,2)}, {v(T+4,2)}")
        for i in range(4): a(f"v_cvt_pk_bf16_f32 v{OB+8+i}, v{OB+2*i}, v{OB+2*i+1}")
        a(f"""s_cmp_eq_u32 s{sW}, 1
        s_cbranch_scc1 {Lv}
        buffer_store_dwordx4 {v(OB+8,4)}, v{vL16}, {WSR}, s{t1_} offen sc1
        s_branch {Ln}
        {Lv}:
        v_bfe_u32 v{T}, v0, 3, 2
        v_mul_u32_u24 v{T}, 272, v{T}
        v_add_u32 v{T}, {VB}, v{T}
        v_and_b32 v{T+1}, 7, v0
        v_lshl_add_u32 v{T+1}, v{T+1}, 1, v{T}
        v_lshrrev_b32 v{T+2}, 5, v0
        v_lshl_add_u32 v{T+1}, v{T+2}, 6, v{T+1}""")
        for r in range(8):
            a(f"{'ds_write_b16' if r%2==0 else 'ds_write_b16_d16_hi'} v{T+1}, v{OB+8+r//2} offset:{VI+(8*(r//4)+r%4)*16}")
        for i in range(4): a(f"v_mov_b32 v{OB+i}, v{vOnes}")
        a(f"""ds_write_b128 v{T}, {v(OB,4)} offset:{VI+256}
        s_waitcnt lgkmcnt(0)
        ds_read_b128 {v(OB+12,4)}, v{X+2} offset:{VI}
        ds_read_b128 {v(OB+16,4)}, v{X+2} offset:{VI+1024}
        s_waitcnt lgkmcnt(0)
        buffer_store_dwordx4 {v(OB+12,4)}, v{vL16}, {WSR}, s{t1_} offen offset:1024 sc1
        s_mov_b64 exec, 15
        buffer_store_dwordx4 {v(OB+16,4)}, v{vL16}, {WSR}, s{t1_} offen offset:2048 sc1
        s_mov_b64 exec, -1
        s_add_u32 s{sKF}, s{sKF}, 128
        @opte
        {Ln}:""")
        sl=s.ksplit(acc, WQR, lambda k:BQ[t]+4*k, f"bq{t}_" if L>0 else None, True, chk=ck(acc+16) if L>0 else None)
        if L>0: sl[7]+=["@wvm csq"]
        Lk=a.label("nkf")
        kf=f"""s_cmp_eq_u32 s{sKF}, 0
        s_cbranch_scc1 {Lk}
        @optb
        s_waitcnt vmcnt({4 if (t==0 and L>0) else 0})
        v_mov_b32 v{vP}, s{sNon}
        s_mov_b64 exec, 1
        buffer_store_dword v{vP}, off, {WSR}, s{sKF} sc1
        s_mov_b64 exec, -1
        @opte
        {Lk}:"""
        if E0: sl=s.pro3(kf); kf=""
        if t==0 and L>0:
            ql=s.qkv_loads(L,1)
            sl[-2]+=s.flag(L-1, 7, "xst")+s.gate(L-1,7)+flat(ql[:4])
        a(sl); a(s.stamp(L,f"q{t}b"))
        a(s.stat_rd(sq+4, 2+t, "st")); a(s.red_read())
        a(kf)
        if t==1: a(s.kvpoll_i(L,0))
        e=[[x] for x in ["@wlg st"]+s.rstd(sq+4, sq)+[f"v_mul_f32 v{sq}, {f2u(0.25*LOG2E):#x}, v{sq}", f"v_mov_b32 v{sq+1}, v{sq}"]+s.red_add(acc)]
        if t==0 and L>0: weave(e, ql[4:])
        a(e)
        for i in range(4): a(f"v_pk_mul_f32 {v(acc+2*i,2)}, {v(acc+2*i,2)}, {v(sq,2)}")
        for i in range(4): a(f"v_cvt_pk_bf16_f32 v{Q[t]+i}, v{acc+2*i}, v{acc+2*i+1}")
        a(s.stamp(L,f"q{t}e"))

    def att_fin(s, L, t, O, W):
        a=s.a; Lf=a.label("fb"); Lb=a.label("fbback"); L1=a.label("p1"); L2=a.label("p2")
        sc=[f"v_rcp_f32 v{O+10}, v{O+8}", f"v_subrev_u32 v{O+9}, {f2u(2.0**-60):#x}, v{O+8}"]+[f"v_mul_f32 v{O+i}, v{O+10}, v{O+i}" for i in range(8)]
        o=sc+[f"v_cmp_lt_u32 vcc, {f2u(2.0**100)-f2u(2.0**-60):#x}, v{O+9}"]
        o+=[f"v_add_f32 v{O+12+i}, v{O+i}, v{O+4+i}" for i in range(4)]+[f"v_add_f32 v{O+12}, v{O+12}, v{O+13}", f"v_add_f32 v{O+14}, v{O+14}, v{O+15}", f"s_mov_b32 s{t1_}, 0x207", f"v_add_f32 v{O+12}, v{O+12}, v{O+14}",
           f"v_cmp_class_f32 s[{P2}:{P2+1}], v{O+12}, s{t1_}", f"s_add_u32 s{t1_}, s{sOwn}, {L*LOFF+O_+t*32*KB}", f"s_or_b64 vcc, vcc, s[{P2}:{P2+1}]", f"s_cbranch_vccnz {Lf}" if not FORCEFB else f"s_branch {Lf}", f"{Lb}:"]
        o+=[f"v_cvt_pk_bf16_f32 v{O+12+i}, v{O+2*i}, v{O+2*i+1}" for i in range(4)]
        o+=s.pub([f"buffer_store_dwordx4 {v(O+12,4)}, v{vL16}, {WSR}, s{t1_} offen {{F}} ;@ost{t}"])
        S=W; K=W+16; V=W+20; m=W+28; va=W+29; c1=P2; c2=P2+1
        f=[f"{Lf}:", f"v_mov_b32 v{m}, 0xff800000", f"s_mov_b32 s{c1}, {KVI+2*L*KVH}", f"s_mov_b32 s{c2}, 64", f"{L1}:",
           f"buffer_load_dwordx4 {v(K,4)}, v{vL16}, {WSR}, s{c1} offen sc1", "s_waitcnt vmcnt(0)", mf(S,K,Q[t],"0")]
        f+=[f"v_max_f32 v{m}, v{m}, v{S+i}" for i in range(16)]
        nxt=lambda l:[f"s_add_u32 s{c1}, s{c1}, {KVT}", f"s_sub_u32 s{c2}, s{c2}, 1", f"s_cmp_lg_u32 s{c2}, 0", f"s_cbranch_scc1 {l}"]
        f+=nxt(L1)+[f"v_mov_b32 v{va}, v{m}", f"v_permlane32_swap_b32 v{m}, v{va}", f"v_max_f32 v{m}, v{m}, v{va}",
            f"v_and_b32 v{va}, 31, v0", f"v_min_u32 v{va}, 16, v{va}", f"v_lshlrev_b32 v{va}, 4, v{va}", f"v_lshrrev_b32 v{va+1}, 5, v0", f"v_mul_u32_u24 v{va+1}, 272, v{va+1}", f"v_add_u32 v{va}, v{va}, v{va+1}"]
        f+=[f"v_mov_b32 v{O+i}, 0" for i in range(16)]
        f+=[f"s_mov_b32 s{c1}, {KVI+2*L*KVH}", f"s_mov_b32 s{c2}, 64", f"{L2}:",
            f"buffer_load_dwordx4 {v(K,4)}, v{vL16}, {WSR}, s{c1} offen sc1", f"buffer_load_dwordx4 {v(V,4)}, v{va}, {WSR}, s{c1} offen offset:1024 sc1",
            f"buffer_load_dwordx4 {v(V+4,4)}, v{va}, {WSR}, s{c1} offen offset:{1024+544} sc1", "s_waitcnt vmcnt(0)", mf(S,K,Q[t],"0")]
        f+=[f"v_sub_f32 v{S+i}, v{S+i}, v{m}" for i in range(16)]+[f"v_exp_f32 v{S+i}, v{S+i}" for i in range(16)]
        f+=[f"v_smfmac_f32_32x32x32_bf16 {v(O,16)}, {v(V+4*u,4)}, {v(S+8*u,8)}, v{vA}" for u in range(2)]
        f+=nxt(L2)+sc+[f"s_branch {Lb}"]
        s.ool+=f
        return o
    def kv_dma(s, L, t):
        lb = LR if t==0 else LP
        out=[]
        for r in range(4): out+=s.dmas(4, vL16, pKVd, (2*L+t)*KVH+r*16384, sKVd, lb+r*16384, P1, f"kv{t}_{r}_", "sc1")
        out+=s.dmas(1, vL16, pKVl, (2*L+t)*KVH+65536, sKVl, lb+65536, P1, f"kv{t}_4_", "sc1")
        return out
    def att(s, L):
        a=s.a
        S=[32,48]; O=[64,80]; KR=[96,100]; VR=[104,112]; IDX=vA; vK=vA+1; vV=vA+2
        jobs=[(t,k) for k in range(32) for t in range(2)]+[(0,k) for k in range(32,32+STAG)]+[(t,k) for k in range(32+STAG,64) for t in range(2)]+[(1,k) for k in range(32,32+STAG)]
        N=len(jobs)
        kap=[0]
        for i in range(1,N): kap.append(kap[-1]+(jobs[i][1]!=jobs[i-1][1]))
        first={}
        for i in range(N): first.setdefault(kap[i], i)
        NK=kap[-1]+1
        def laddr(k): return (LR+k*KVT) if k<32 else (LP+(k-32)*KVT)
        base={"K":LR,"V":LR}
        def rd(kind, kp, u=0):
            kt=jobs[first[kp]][1]
            ad=laddr(kt)+(0 if kind=="K" else 1024+u*544); o=[]
            reg=vK if kind=="K" else vV
            if not (0<=ad-base[kind]<65536):
                nb=laddr(kt); o.append(f"v_add_u32 v{reg}, {(nb-base[kind])&0xffffffff:#x}, v{reg}"); base[kind]=nb
            dst=KR[kp%2] if kind=="K" else VR[kp%2]+4*u
            return o+[f"ds_read_b128 {v(dst,4)}, v{reg} offset:{ad-base[kind]} ;@{kind}{kp}_{u}"]
        def smf(i,u): return [f"@wlg V{kap[i]}_{u}", f"v_smfmac_f32_32x32x32_bf16 {v(O[jobs[i][0]],16)}, {v(VR[kap[i]%2]+4*u,4)}, {v(S[i%2]+8*u,8)}, v{IDX}"]
        def qk(i): return [f"@wlg K{kap[i]}_0", mf(S[i%2], KR[kap[i]%2], Q[jobs[i][0]], "0")]
        def ex(r0,r1): return [f"v_exp_f32 v{r}, v{r}" for r in range(r0,r1)]
        d0=s.kv_dma(L,0); d1=s.kv_dma(L,1)
        a(f"""v_mov_b32 v{IDX}, 0xdddddddd
        v_add_u32 v{vK}, {LR}, v{vL16}
        v_and_b32 v{vV}, 31, v0
        v_min_u32 v{vV}, 16, v{vV}
        v_lshlrev_b32 v{vV}, 4, v{vV}
        v_lshrrev_b32 v{vA+3}, 5, v0
        v_mul_u32_u24 v{vA+3}, 272, v{vA+3}
        v_add_u32 v{vV}, v{vV}, v{vA+3}
        v_add_u32 v{vV}, {LR}, v{vV}""")
        for i in range(32): a(f"v_mov_b32 v{O[0]+i}, 0")
        a(f"v_lshlrev_b32 v{OB+8}, 7, v0\nv_lshlrev_b32 v{OB+9}, 10, v0")
        for i in range(4): a(f"v_mov_b32 v{OB+i}, -1")
        touch=[]
        def pst(sb, c, n=1, dw=False):
            Lk=a.label("np")
            it=[f"s_cmp_eq_u32 s{sPure}, 0", f"s_cbranch_scc1 {Lk}", "@optb", f"s_add_u32 s{t1_}, s{sb}, {c}"]
            for k in range(n): it.append(f"buffer_store_dword v{OB}, v{vL16}, {WSR}, s{t1_} offen" if dw else f"buffer_store_dwordx4 {v(OB,4)}, v{vL16}, {WSR}, s{t1_} offen offset:{k*1024}")
            touch.append(it+["@opte", f"{Lk}:"])
        for t in range(2):
            pst(sOwn, L*LOFF+O_+t*32*KB); pst(sOwn, L*LOFF+X1_+t*32*KB); pst(sStS, L*LOFF+S1_+t*8*KB, dw=True)
            for c in range(2): pst(sHs[c], L*LOFF+t*112*KB, 2)
            if L==0: pst(sOwn, LOFF+XA_+t*32*KB); pst(sStS, LOFF+SA_+t*8*KB, dw=True)
        if L==1: touch.append([f"s_lshl_b32 s{t1_}, s{sG}, 16", f"s_lshl_b32 s{t2_}, s{sJ}, 7", f"s_add_u32 s{t1_}, s{t1_}, s{t2_}", f"buffer_load_dword v{OB+6}, v{OB+9}, s[8:11], s{t1_} offen"])
        warm=[[f"s_bitcmp1_b32 s{sG}, 4", f"s_cselect_b64 s[{P2}:{P2+1}], s[{pW2[1]}:{pW2[1]+1}], s[{pW2[0]}:{pW2[0]+1}]", f"s_and_b32 s{t1_}, s{sG}, 8", f"s_lshl_b32 s{t1_}, s{t1_}, 10", f"s_add_u32 s{t1_}, s{t1_}, {12*KB}",
               f"s_add_u32 s{P2}, s{P2}, s{t1_}", f"s_addc_u32 s{P2+1}, s{P2+1}, 0", f"global_load_dword v{OB+6}, v{OB+8}, s[{P2}:{P2+1}] ;@warm"]]
        if L==0: warm.append([f"s_bitcmp1_b32 s{sG}, 3", f"s_cselect_b64 s[{P2}:{P2+1}], s[{pWQ[1]}:{pWQ[1]+1}], s[{pWQ[0]}:{pWQ[0]+1}]", f"global_load_dword v{OB+6}, v{OB+8}, s[{P2}:{P2+1}]"])
        if L==0: s.setup2(); a(s.job1()); a(s.kvpoll_i(0,0)[1]); a(s.stamp(L,"job"))
        a(s.kvpoll_c()); a(s.stamp(L,"kvp"))
        a(d0[:7])
        a("@wvm kv0_0_3\ns_barrier"); a(s.stamp(L,"kv0"))
        if L==0: a(s.job2())
        a(rd("K",0)+rd("V",0,0)+rd("V",0,1)+rd("K",1)+qk(0))
        A=[[] for _ in range(N)]; B=[[] for _ in range(N)]; C=[[] for _ in range(N)]
        fr=[]
        for i in range(N):
            kp=kap[i]; isf=first[kp]==i; last=(i+1==N or kap[i+1]!=kp)
            if isf and last:
                if kp+1<NK: A[i]+=[f"@wlg K{kp+1}_0"]+rd("V",kp+1,0); B[i]+=rd("V",kp+1,1)
                if kp+2<NK: C[i]+=rd("K",kp+2)
            elif isf:
                A[i]+=rd("V",kp+1,0); B[i]+=rd("V",kp+1,1); fr.append((i,C[i]))
            else:
                A[i]+=[f"@wlg V{kp+1}_1"]; fr.append((i,B[i])); C[i]+=rd("K",kp+2)
        def put(items, j0, j1):
            sl=[l for (j,l) in fr if j0<=j<j1]; weave(sl, items)
        def at(j): return [l for (jj,l) in fr if jj>=j][0]
        put(d0[7:], 0, 5)
        at(9).extend(["@wvm kv0_4_0","s_barrier"])
        if L==0:
            Lx=a.label("nx")
            at(9).append(f"""s_cmp_lg_u32 s{sW}, 0
            s_cbranch_scc1 {Lx}
            @optb
            v_mov_b32 v{vP}, s{sXcc}
            s_lshl_b32 s{t1_}, s2, 7
            s_add_u32 s{t1_}, s{t1_}, {XIDG}
            s_mov_b64 exec, 1
            buffer_store_dword v{vP}, off, {WSR}, s{t1_} sc1
            s_mov_b64 exec, -1
            @opte
            {Lx}:""")
        at(12).extend(s.kvpoll_i(L,1))
        at(20).extend(s.kvpoll_c())
        ldx=f"buffer_load_dword v{vP}, v{vP+1}, {WSR}, s{t3_} offen sc1 ;@poll"
        if L==0: at(20).extend([f"s_add_u32 s{t3_}, s{sW8}, {XIDG}", ldx])
        put(d1, 21, 30)
        if L==0:
            at(30).extend(s.retry(ldx, [f"v_xor_b32 v{vP}, s{sNon}, v{vP}", f"v_cmp_lt_u32 vcc, 15, v{vP}"], ("s_cbranch_vccz","s_cbranch_vccnz"))+["s_barrier"])
            at(31).extend([f"v_and_b32 v{vP+1}, 7, v0", f"v_lshlrev_b32 v{vP+1}, 12, v{vP+1}", f"s_lshl_b32 s{t3_}, s{sG}, 7", f"s_add_u32 s{t3_}, s{t3_}, {XIDG}", ldx])
            at(40).extend(["@wvm poll", f"v_cmp_ne_u32 vcc, s{sXcc}, v{vP}", "s_cmp_eq_u64 vcc, 0", f"s_cselect_b32 s{sPure}, 1, 0"])
            warm.append([f"s_mul_i32 s{t1_}, s{sJ}, {7*512}", f"s_lshl_b32 s{t2_}, s{sW}, 10", f"s_add_u32 s{t1_}, s{t1_}, s{t2_}", f"s_add_u32 s{t1_}, s{t1_}, {CS1}", f"v_lshrrev_b32 v{vA+3}, 1, v{vL16}",
                f"buffer_load_dwordx2 {v(CS1R,2)}, v{vA+3}, {WSR}, s{t1_} offen", f"s_cmp_eq_u32 s{sW}, 3", f"s_cselect_b32 s{t2_}, 0, 512", f"s_add_u32 s{t1_}, s{t1_}, s{t2_}",
                f"buffer_load_dwordx2 {v(CS1R+2,2)}, v{vA+3}, {WSR}, s{t1_} offen"])
        w1=[]
        for c in range(2): w1+=s.loads([W1R(c,k) for k in range(32)], vL16, pW1[c], 0, P0, f"w1{c}_")
        put(w1[:24], 32, 44)
        at(44).extend(["@wvm kv1_4_0","s_barrier"])
        put(touch, 45, 59)
        put(w1[24:34], 59, 64)
        j2=64+STAG
        at(j2).append("s_barrier")
        wo=[]
        for c in range(2): wo+=s.dmas(8, vL16x, pWQ[c], WOF, s16, LR+c*8192, P1, f"wo{c}_")
        put(w1[34:], j2+1, j2+16); j2+=15
        put(wo, j2+1, j2+9)
        w2=[]
        for c in range(2): w2+=s.loads([W2R(2*k+c) for k in range(12)], vL16x, pW2[c], 0, P0, f"w2{c}_")
        put(w2, j2+9, j2+21)
        put(warm, j2+21, j2+23)
        e0=N-STAG
        if ATS:
            for j in (10,20,32,44,60,72,88,100,110): A[j]+=s.stamp(L,f"j{j}")
        at(j2+14).extend(s.flag(2,L,"w10_31"))
        at(j2+23).extend(s.poll_i(2,L))
        at(e0-3).extend(s.poll_c(2,L))
        C[e0-1]+=s.stamp(L,"a0")+s.att_fin(L,0,O[0],OB)
        C[e0+3]+=s.flag(L,0,"ost0")
        ob=s.loads([OB+4*i for i in range(8)], vL16, pQtr, L*LOFF+O_, P0, "ob", "sc1")
        C[N-2]+=s.gate(L,0)+flat(ob[:2]); A[N-1]+=flat(ob[2:4]); B[N-1]+=flat(ob[4:6]); C[N-1]+=flat(ob[6:])
        for i in range(N):
            Sa=S[i%2]
            a(ex(Sa,Sa+2)+(smf(i-1,1) if i>0 else [])+A[i]+ex(Sa+2,Sa+5)+(qk(i+1) if i+1<N else [])+B[i]+ex(Sa+5,Sa+10)+smf(i,0)+C[i]+ex(Sa+10,Sa+16))
        a(f"s_add_u32 s{t1_}, s{s16}, {LR}\nv_add_u32 v6, s{t1_}, v{vL16}")
        a(smf(N-1,1)); a(s.stamp(L,"a1"))
        a("@wvm wo1_7"); a(s.op_rd(0,6))
        a(s.att_fin(L,1,O[1],32))

    def op_rd(s, i0, i1):
        return [f"ds_read_b128 {v(T+4*(i%6),4)}, v6 offset:{(1-i//8)*8192+(i%8)*1024} ;@oa{i}" for i in range(i0,i1)]
    def x_fetch(s, L, t):
        return s.loads([SX,SX+4], vL16, pStL, L*LOFF+S1_+t*8*KB, P1, "s1_", "sc1") + s.dmas(8, vL16, pQtr, L*LOFF+X1_+t*32*KB, sW8, LP+t*32*KB, P1, f"xd{t}_", "sc1")
    def op(s, L, t):
        a=s.a; acc=ACC[t]
        Ls=a.label("opst"); obl=lambda tt: s.loads([OB+4*i for i in range(8)], vL16, pQtr, L*LOFF+O_+tt*32*KB, P0, "ob", "sc1")
        sl=s.ksplit(acc, lambda c,k:T+4*(((1-c)*8+k)%6), lambda k:OB+4*k, "ob", False,
                    pre=lambda i:[f"@wlg oa{i}"], post=lambda i:(s.op_rd(i+6,i+7) if i+6<16 else []), c0init=None,
                    chk=s.check(L,t,acc+16,obl(t)+s.op_rd(0,6),Ls))
        ini=flat([[f"v_lshlrev_b32 v{acc+2*i}, 16, v{XR[t]+i}", f"v_and_b32 v{acc+2*i+1}, 0xffff0000, v{XR[t]+i}"] for i in range(4)])+[f"v_mov_b32 v{acc+8+i}, 0" for i in range(8)]
        weave(sl, ini+s.red_addr("C" if t==0 else "R"), 0, 7)
        nx = obl(1) if t==0 else s.x_fetch(L,0)
        sl[-2]+=(s.flag(L,1,"ost1")+s.gate(L,1) if t==0 else s.flag(L,2,"xst")+s.gate(L,2))+flat(nx[:3])
        a(f"{Ls}:"); a(sl); a(s.stamp(L,f"o{t}b"))
        a(s.red_read())
        e=s.red_add(acc)+(s.op_rd(0,6) if t==0 else [])+s.emit_x(acc, t, L*LOFF+X1_, L*LOFF+S1_, acc+8)
        k=e.index(f"s_cmp_eq_u32 s{sPure}, 0")
        sl=[[x] for x in e[:k]]+[e[k:]]
        a(nx[3:5]); weave(sl, nx[5:], 2, k); a(sl); a(s.stamp(L,f"o{t}e"))

    def silu(s, L, t, c, pk):
        acc=ACC[t]; E=T+16; sc=vA+2*t; out=[]
        for h in range(2):
            b=acc+16*c+8*h
            if pk:
                out+=[f"v_pk_mul_f32 {v(E+2*i,2)}, {v(b+2*i,2)}, {v(sc,2)}" for i in range(4)]
                out+=[f"v_exp_f32 v{E+i}, v{E+i}" for i in range(8)]
                out+=[f"v_pk_add_f32 {v(E+2*i,2)}, {v(E+2*i,2)}, s[{sONE}:{sONE+1}]" for i in range(4)]
                out+=[f"v_rcp_f32 v{E+i}, v{E+i}" for i in range(8)]
                out+=[f"v_pk_mul_f32 {v(E+2*i,2)}, {v(b+2*i,2)}, {v(E+2*i,2)}" for i in range(4)]
                out+=[f"v_cvt_pk_bf16_f32 v{b+i}, v{E+2*i}, v{E+2*i+1}" for i in range(4)]
            else:
                mu=[f"v_mul_f32 v{E+i}, v{sc}, v{b+i}" for i in range(8)]; exx=[f"v_exp_f32 v{E+i}, v{E+i}" for i in range(8)]
                ad=[f"v_add_f32 v{E+i}, 1.0, v{E+i}" for i in range(8)]; rc=[f"v_rcp_f32 v{E+i}, v{E+i}" for i in range(8)]
                m2=[f"v_mul_f32 v{E+i}, v{b+i}, v{E+i}" for i in range(8)]; cv=[f"v_cvt_pk_bf16_f32 v{b+i}, v{E+2*i}, v{E+2*i+1}" for i in range(4)]
                out+=[mu[0:5],[mu[5],exx[0],exx[1]],[mu[6],exx[2],exx[3]],[mu[7],exx[4],exx[5]],[ad[0],exx[6],exx[7]],
                      [ad[1],ad[2],ad[3],rc[0]],[ad[4],rc[1],rc[2]],[ad[5],rc[3],rc[4]],[ad[6],ad[7],m2[0],rc[5]],[m2[1],rc[6],rc[7]],
                      m2[2:7],[m2[7]]+cv]
            out.append([f"s_add_u32 s{t1_}, s{sHs[c]}, {L*LOFF+t*112*KB+h*1024}"]+s.pub([f"buffer_store_dwordx4 {v(b,4)}, v{vL16}, {WSR}, s{t1_} offen {{F}} ;@hst{t}"]))
        return out
    def f1_sync(s, L, t):
        c=([],[]); Ls=s.a.label("f1sy")
        if t==0: c=s.check(L,2,SX,s.x_fetch(L,0),Ls)
        return [f"{Ls}:","@wvm s1_1"]+s.sum8(SX)+c[0]+s.stat_wr(SX,SX+1,t)+[f"@wvm xd{t}_7","@wlg rw"]+c[1]+["s_barrier"]
    def f1(s, L):
        a=s.a
        def rd(n):
            q,ks=n//32,n%32
            return [f"ds_read_b128 {v(T+4*(n%4),4)}, v{vL16} offset:{LP+(q//2)*32*KB+ks*1024} ;@xb{n}"]
        a(s.f1_sync(L,0)); a(s.stamp(L,"f1s"))
        Ls=a.label("f1st"); a(f"{Ls}:")
        a(rd(0)+rd(1)+rd(2)+["@wlg xb0", "@wvm w11_31"])
        sl=[];
        for n in range(128):
            q,ks=n//32,n%32; t,c=q//2,q%2
            p=[mf(ACC[t]+16*c, W1R(c,ks), T+4*(n%4), "0" if ks==0 else None)]
            if n+3<128: p+=rd(n+3)
            if n+1<128: p+=[f"@wlg xb{n+1}"]
            sl.append(p)
        for q in range(4):
            sl[32*q+31]+=[mf(ACC[q//2]+16*(q%2), CS1R, vBX+2-2*(q%2))]+s.stamp(L,f"f1q{q}")
        def stat(t,X):
            r=s.rstd(X,vRs[t])
            return [s.stat_rd(X,t,"st"), [], ["@wlg st"]+r[:4], r[4:8], r[8:], s.bext(X,X+1), [f"v_mul_f32 v{vA+2*t}, {f2u(-LOG2E):#x}, v{vRs[t]}", f"v_mov_b32 v{vA+2*t+1}, v{vA+2*t}"]]
        weave(sl, stat(0,SX+4), 0, 8)
        allx=[[f"s_sub_u32 s{P2}, s{pQtr}, s{sW8}", f"s_subb_u32 s{P2+1}, s{pQtr+1}, 0", f"s_mov_b32 s{t1_}, 0"]]+s.dmas(32, vL16, P2, L*LOFF+X1_, t1_, LP, P1, "z", "sc1")
        c=s.check(L,2,ACC[0],allx,Ls,allcu=True,idn=20+L)
        sl[34]+=c[0]; sl[35]+=c[1]
        w2=[]
        for c in range(2): w2+=s.loads([W2R(2*k+c) for k in range(12,16)], vL16x, pW2[c], 12*KB, P0, f"w2b{c}_")
        sl[3]+=s.flag(L,3,"xst")
        weave(sl, w2[:4], 4, 12)
        sl[12]+=s.poll_i(L,3)
        weave(sl, w2[4:], 13, 22)
        sl[23]+=s.poll_c(L,3)
        weave(sl, s.x_fetch(L,1), 24, 44)
        wq=[]
        if L==0:
            for c in range(2): wq+=s.dmas(8, vL16x, pWQ[c], WQF, s16, LR+c*8192, P1, f"wq{c}_")
            weave(sl, wq[:10], 44, 66)
        weave(sl, s.silu(L,0,0,False), 36, 60)
        sl[60]+=s.f1_sync(L,1)
        weave(sl, stat(1,SX+4)[:5], 61, 65)
        sl[65]+=flat(stat(1,SX+4)[5:])
        weave(sl, s.silu(L,0,1,False), 66, 92)
        wc=[s.loads([W2R(32+2*kk+c) for kk in range(12)], vL16x, pW2[c], 16*KB, P0+4*c, f"w2c{c}_") for c in range(2)]
        weave(sl, wq[10:]+[wc[i%2][i//2] for i in range(24)], 66, 128 if L==0 else 114)
        weave(sl, s.silu(L,1,0,False), 98, 124)
        s.hl=[s.loads([HWR(28*t+k) for k in range(28)], vL16, pHl, L*LOFF+t*112*KB, P1, f"h{t}_", "sc1") for t in range(2)]
        s.h0=0 if L==0 else 6
        if L==1:
            sl[114]+=s.gate(L,4); weave(sl, s.hl[0][:6], 115, 128)
        a(sl)
    def f2(s, L):
        a=s.a
        hl=s.hl
        if L==0: a(s.gate(L,4))
        a(hl[0][s.h0:s.h0+2])
        sl=[[x] if isinstance(x,str) else x for x in s.silu(L,1,1,True)]
        weave(sl, hl[0][s.h0+2:s.h0+9])
        a(sl); a(s.stamp(L,"sil"))
        a(hl[0][s.h0+9:16])
        for t in range(2):
            acc=ACC[t]; sl=[]
            order=[(ks,c) for ks in range(22) for c in (1,0)]+[(ks,1) for ks in range(22,28)]+[(ks,0) for ks in range(22,28)]
            for (ks,c) in order:
                p=[]
                if c==1:
                    w=[f"h{t}_{ks}"]
                    if t==0: w+= [f"w2{cc}_{ks}" if ks<12 else (f"w2b{cc}_{ks-12}" if ks<16 else f"w2c{cc}_{ks-16}") for cc in range(2)]
                    p=[f"@wvm {' '.join(w)}"]
                p.append(mf(acc+16*c, W2R(2*ks+c), HWR(28*t+ks), "0" if ks==0 else None))
                if c==0 and ks+16<28: p+=hl[t][ks+16]
                sl.append(p)
            Ls=a.label("f2st")
            if t==0:
                sl[4]+=s.flag(L,4,"hst0")
                if L==0:
                    cp=[[f"s_add_u32 s{t1_}, s{s16}, {LR}", f"v_add_u32 v{vA}, s{t1_}, v{vL16}", "@wvm wq1_7"]]+[f"ds_read_b128 {R(WQR(c,k))}, v{vA} offset:{c*8192+k*1024} ;@wqr" for c in range(2) for k in range(8)]
                    weave(sl, cp, 6, 40)
                sl[24]+=s.gate(L,5)
                for k in range(10): sl[25+2*k]+=hl[1][k]
                sl[34]+=s.flag(L,5,"hst1")
            elif L==0:
                sl[24]+=s.wkv_loads()+s.gate(L,6)
                weave(sl, s.qkv_loads(1,0), 25, 45)
                sl[34]+=s.flag(L,6,"xst")
            sl[48]+=flat(s.red_addr("C" if t==0 else "P"))
            w=s.red_write(acc)
            c=s.check(L,4+t,acc+16,hl[t][:16],Ls)
            sl[52]+=c[0]; sl[53]+=c[1]+[w[2]]; sl[54]+=[w[3]]; sl[55]+=w[4:6]
            a(f"{Ls}:"); a(sl)
            if t==0: a(hl[1][10:12])
            a(w[:2]); a("@wlg rw\ns_barrier"); a(s.stamp(L,f"f2{t}b")); a(s.red_read())
            if t==0: a(hl[1][12:16])
            for i in range(4): a(f"v_lshlrev_b32 v{acc+8+2*i}, 16, v{XR[t]+i}\nv_and_b32 v{acc+8+2*i+1}, 0xffff0000, v{XR[t]+i}")
            a(s.red_add(acc))
            for i in range(8): a(f"v_fma_f32 v{acc+i}, v{vRs[t]}, v{acc+i}, v{acc+8+i}")
            if L==0:
                a(s.emit_x(acc, t, LOFF+XA_, LOFF+SA_, acc+8))
                if t==1: a(s.cs_loads())
            else:
                x=XR[t]
                for i in range(4): a(f"v_cvt_pk_bf16_f32 v{x+i}, v{acc+2*i}, v{acc+2*i+1}")
                a(f"""v_and_b32 v{acc}, 31, v0
                v_lshlrev_b32 v{acc}, 10, v{acc}
                v_lshrrev_b32 v{acc+1}, 5, v0
                v_lshl_add_u32 v{acc}, v{acc+1}, 4, v{acc}
                v_permlane32_swap_b32 v{x}, v{x+2}
                v_permlane32_swap_b32 v{x+1}, v{x+3}
                s_lshl_b32 s{t1_}, s{sJ}, 2
                s_add_u32 s{t1_}, s{t1_}, s{sW}
                s_lshl_b32 s{t1_}, s{t1_}, 5
                s_lshl_b32 s{t2_}, s{sG}, 16
                s_add_u32 s{t1_}, s{t1_}, s{t2_}
                s_add_u32 s{t1_}, s{t1_}, {t*32*KB}
                buffer_store_dwordx4 {v(x,4)}, v{acc}, s[8:11], s{t1_} offen""")
            a(s.stamp(L,f"f2{t}e"))

    def stats0(s, t):
        sq=SQ[t]; o=[]
        for i in range(32):
            if i%4==0: o+=[f"@wlg xl{t}_{i//4}"]
            o+=[f"v_dot2_f32_bf16 v{sq}, v{BQ[t]+i}, v{vOnes}, {'0' if i==0 else v(sq)}", f"v_dot2_f32_bf16 v{sq+1}, v{BQ[t]+i}, v{BQ[t]+i}, {'0' if i==0 else v(sq+1)}"]
        return o+[f"v_permlane32_swap_b32 v{sq}, v{sq+1}", f"v_add_f32 v{sq}, v{sq}, v{sq+1}"]
    def pro1(s, GR):
        a=s.a; pX,pQ,pK,pV,pD=42,48,50,52,66; X=144; Y=148
        Lk=a.label("nokv"); Ln=a.label("nn"); Lm=a.label("nm")
        a(f"""s_load_dwordx2 s[{pX}:{pX+1}], s[0:1], 0
        s_load_dwordx4 s[{pQ}:{pQ+3}], s[0:1], 8
        s_load_dwordx2 s[{pV}:{pV+1}], s[0:1], 24
        s_load_dwordx2 s[{pD}:{pD+1}], s[0:1], 72
        s_load_dwordx2 s[4:5], s[0:1], 80
        s_load_dwordx2 s[8:9], s[0:1], 64
        s_cmp_lt_u32 s2, 80
        s_cselect_b32 s60, 32, 56
        s_cmp_ge_u32 s2, 136
        s_cselect_b32 s60, 48, s60
        s_load_dwordx2 s[{pJ}:{pJ+1}], s[0:1], s60
        s_memrealtime s[62:63]
        v_lshrrev_b32 v1, 6, v0
        v_readfirstlane_b32 s{sW}, v1
        v_and_b32 v0, 63, v0
        s_and_b32 s{sG}, s2, 31
        s_lshr_b32 s{sJ}, s2, 5
        v_lshlrev_b32 v{vL16}, 4, v0
        v_lshrrev_b32 v{Y}, 4, v0
        v_xor_b32 v{X}, v0, v{Y}
        v_and_b32 v{X}, 15, v{X}
        v_lshlrev_b32 v{X}, 4, v{X}
        v_lshl_add_u32 v{X}, v{Y}, 10, v{X}""")
        for q in range(1,4): a(f"v_xor_b32 v{X+q}, {q<<6}, v{X}\nv_add_u32 v{X+q}, {q*3072}, v{X+q}")
        a(f"""v_lshrrev_b32 v{Y+1}, 3, v0
        v_and_b32 v{Y}, 3, v{Y+1}
        v_lshlrev_b32 v{Y}, 1, v{Y}
        v_xor_b32 v{Y}, v0, v{Y}
        v_and_b32 v{Y}, 7, v{Y}
        v_lshlrev_b32 v{Y}, 4, v{Y}
        v_lshl_add_u32 v{Y}, v{Y+1}, 10, v{Y}""")
        for q in range(1,4): a(f"v_add_u32 v{Y+q}, {q*7168}, v{Y}")
        a(f"""s_lshl_b32 s{sW8}, s{sW}, 13
        s_lshl_b32 s{s16}, s{sW}, 14
        s_lshl_b32 s{sKVd}, s{sW}, 12
        s_lshl_b32 s60, s{sG}, 16
        s_lshl_b32 s61, s{sW}, 8
        s_add_u32 s61, s61, s60
        s_lshl_b32 s54, s{sW}, 17
        s_lshl_b32 s55, s{sJ}, 7
        s_add_u32 s54, s54, s55
        s_add_u32 s55, s{sW8}, {KVL}
        s_waitcnt lgkmcnt(0)
        s_or_b32 s56, s2, s{sW}
        s_cmp_lg_u32 s56, 0
        s_cbranch_scc1 {Ln}
        @optb
        s_lshl_b32 s62, s62, 4
        s_bitset1_b32 s62, 31
        v_mov_b32 v{vP}, s62
        v_mov_b32 v{vP+1}, 0
        s_mov_b64 exec, 1
        global_store_dword v{vP+1}, v{vP}, s[{pD}:{pD+1}] sc1
        s_mov_b64 exec, -1
        @opte
        {Ln}:
        s_lshl_b32 s56, s{sJ}, 13
        s_add_u32 s56, s56, s60
        s_lshr_b32 s57, s{sG}, 3
        s_lshl_b32 s57, s57, 1
        s_and_b32 s58, s{sW}, 1
        s_add_u32 s57, s57, s58
        s_lshl_b32 s57, s57, 16
        s_lshl_b32 s58, s{sJ}, 7
        s_add_u32 s57, s57, s58
        s_cmp_lt_u32 s{sW}, 2
        s_cselect_b32 s56, s57, s56
        s_cselect_b32 s57, 10, 7
        s_cselect_b64 s[{P0}:{P0+1}], s[{pQ}:{pQ+1}], s[{pX}:{pX+1}]
        s_bitcmp1_b32 s2, 4
        s_cselect_b64 s[58:59], s[{pV}:{pV+1}], s[{pK}:{pK+1}]
        s_and_b32 s62, s2, 8
        s_lshl_b32 s62, s62, 10
        s_cmp_eq_u32 s{sW}, 3
        s_cselect_b32 s56, s62, s56
        s_cselect_b64 s[{P0}:{P0+1}], s[58:59], s[{P0}:{P0+1}]
        v_lshlrev_b32 v{T}, s57, v0
        v_add_u32 v{T}, s56, v{T}
        global_load_dword v{T+1}, v{T}, s[{P0}:{P0+1}]
        s_add_u32 s{P2}, s{pX}, s61
        s_addc_u32 s{P2+1}, s{pX+1}, 0
        s_add_u32 s{pQ2}, s{pQ}, s54
        s_addc_u32 s{pQ2+1}, s{pQ+1}, 0""")
        def xd(t):
            o=[]
            for i in range(8):
                o.append(([f"s_add_u32 m0, s{s16}, {t*8192+i*1024}"]+s.base(P0,P2,t*32768+i*4096) if i%4==0 else [])+[f"global_load_lds_dwordx4 v{X+i%4}, s[{P0}:{P0+1}] offset:{(i%4)*1024} ;@x{t}_{i}"])
            return o
        s.xd0=xd(0); s.xd1=xd(1); a(s.xd0)
        s.wqd=[([f"s_add_u32 m0, s{s16}, {WQL+i*1024}"]+s.base(P0,pQ2,i*8192) if i%4==0 else [])+[f"global_load_lds_dwordx4 v{Y+i%4}, s[{P0}:{P0+1}] offset:{(i%4)*1024} ;@wq{i}"] for i in range(16)]
        a(f"""
        s_mov_b32 s6, {WS_SIZE}
        s_mov_b32 s7, 0x20000
        v_lshlrev_b32 v{vL4}, 2, v0
        s_and_b32 s60, s{sW}, 1
        s_lshl_b32 s{sKVl}, s60, 10
        s_lshl_b32 s60, s60, 8
        v_xor_b32 v{vL16x}, s60, v{vL16}
        """)
        if PFC:
            a(f"""s_getpc_b64 s[56:57]
            Lpc0:
            s_add_u32 s56, s56, main_kernel-Lpc0
            s_addc_u32 s57, s57, -1
            s_mov_b32 s58, {a.endl}-main_kernel
            s_mov_b32 s59, 0x20000
            s_lshr_b32 s60, s2, 3
            s_lshl_b32 s60, s60, 12
            s_lshl_b32 s61, s{sW}, 10
            s_add_u32 s60, s60, s61
            buffer_load_dwordx4 {v(OB,4)}, v{vL16}, s[56:59], s60 offen""")
    def setup2(s):
        a=s.a; GR=3
        a(f"""s_mov_b32 s10, {2*MB}
        s_mov_b32 s11, 0x20000
        s_lshl_b32 s{GR}, s{sG}, 20
        s_add_u32 s{GR}, s{GR}, {GBASE}
        s_add_u32 s{pQtr}, s{sW8}, s{GR}
        s_lshl_b32 s{pStL}, s{sW}, 11
        s_add_u32 s{pStL}, s{pStL}, s{GR}
        s_lshr_b32 s63, s{sW}, 1
        s_lshl_b32 s62, s{sJ}, 1
        s_add_u32 s63, s63, s62
        s_lshl_b32 s{pWQ[0]}, s63, 15
        s_add_u32 s{pWQ[0]}, s{pWQ[0]}, s{sW8}
        s_xor_b32 s{pWQ[1]}, s{pWQ[0]}, {32*KB}""")
        for p in (pQtr,pStL,pWQ[0],pWQ[1]): a(f"s_add_u32 s{p}, s4, s{p}\ns_addc_u32 s{p+1}, s5, 0")
        a(f"""s_lshl_b32 s60, s{sJ}, 2
        s_add_u32 s60, s60, s{sW}               ; 4j+w
        s_lshl_b32 s{sOwn}, s60, 10
        s_add_u32 s{sOwn}, s{sOwn}, s{GR}
        s_add_u32 s{sFlS}, s60, s{GR}
        s_add_u32 s{sFlS}, s{sFlS}, {FL_}
        s_lshl_b32 s{sFlP}, s{sW}, 3
        s_add_u32 s{sFlP}, s{sFlP}, s{GR}
        s_add_u32 s{sFlP}, s{sFlP}, {FL_}
        s_lshl_b32 s{sStS}, s{sJ}, 10
        s_lshl_b32 s60, s{sW}, 2
        s_add_u32 s{sStS}, s{sStS}, s60
        s_add_u32 s{sStS}, s{sStS}, s{GR}
        s_mul_i32 s60, s{sJ}, 7
        s_lshl_b32 s61, s{sW}, 1
        s_add_u32 s60, s60, s61                 ; F1 cb0 = 7j+2w
        s_lshl_b32 s{sHs[0]}, s60, 11
        s_add_u32 s{sHs[0]}, s{sHs[0]}, s{GR}
        s_add_u32 s{sHs[0]}, s{sHs[0]}, {H_}
        s_add_u32 s{sHs[1]}, s{sHs[0]}, 2048
        s_lshl_b32 s{pW1[0]}, s60, 15
        s_add_u32 s{pW1[0]}, s{pW1[0]}, {W1F}
        s_add_u32 s{pW1[1]}, s{pW1[0]}, {32*KB}
        s_cmp_eq_u32 s{sW}, 3
        s_cselect_b32 s{sHs[1]}, s{sHs[0]}, s{sHs[1]}
        s_cselect_b32 s{pW1[1]}, s{pW1[0]}, s{pW1[1]}
        s_mul_i32 s{pHl}, s{sW}, {28*KB}
        s_mul_i32 s{pW2[0]}, s63, {112*KB}
        s_xor_b32 s63, s63, 1
        s_mul_i32 s{pW2[1]}, s63, {112*KB}
        s_add_u32 s60, s{pHl}, {W2F}
        s_add_u32 s{pW2[0]}, s{pW2[0]}, s60
        s_add_u32 s{pW2[1]}, s{pW2[1]}, s60
        s_add_u32 s{pHl}, s{pHl}, s{GR}
        s_add_u32 s{pHl}, s{pHl}, {H_}
        s_lshl_b32 s{sKVd}, s{sW}, 12
        s_add_u32 s{pKVd}, s{sKVd}, {KVI}
        s_add_u32 s{pKVl}, s{sKVl}, {KVI}
""")
        for p in (pHl,pW2[0],pW2[1],pW1[0],pW1[1],pKVd,pKVl): a(f"s_add_u32 s{p}, s4, s{p}\ns_addc_u32 s{p+1}, s5, 0")
        a(f"s_mov_b32 s{sLast}, 0")
    def tra(s, r, sh):
        return f"""v_lshrrev_b32 v{r}, 5, v0
        v_bfe_u32 v{r+2}, v0, 2, 2
        v_lshl_add_u32 v{r}, v{r}, 2, v{r+2}
        v_lshlrev_b32 v{r}, {sh}, v{r}
        v_and_b32 v{r+1}, 3, v0
        v_lshl_add_u32 v{r}, v{r+1}, 3, v{r}
        v_bfe_u32 v{r+1}, v0, 4, 1"""
    def hilo(s, r, d):
        return [f"v_cvt_pk_bf16_f32 v{r+1}, v{r}, v{r}", f"v_and_b32 v{r+1}, 0xffff0000, v{r+1}", f"v_sub_f32 v{r+1}, v{r}, v{r+1}", f"v_cvt_pk_bf16_f32 v{r}, v{r}, v{r+1}",
                f"v_cndmask_b32 v{d}, 0, v{r}, vcc", f"v_cndmask_b32 v{d+1}, 0, v{r}, vcc"]
    def sw(s,r): return [f"v_permlane32_swap_b32 v{r}, v{r+2}", f"v_permlane32_swap_b32 v{r+1}, v{r+3}"]
    def xr(s,t): return [f"ds_read_b64 {v(BQ[t]+4*k+2*h,2)}, v{(152,216)[h]+k} offset:{t*8192} ;@xl{t}_{k}" for k in range(8) for h in range(2)]
    def pro2(s, GR):
        a=s.a; X=152; Y=192; ON=T+16; Z=T+20; U=214
        Lk=a.label("nokv"); Lm=a.label("m")
        a(f"""v_and_b32 v{X}, 31, v0
        v_lshrrev_b32 v{X+1}, 5, v0
        v_lshlrev_b32 v{U}, 10, v{X}
        v_lshl_add_u32 v{U}, v{X+1}, 4, v{U}
        s_lshl_b32 s60, s{sJ}, 7
        s_mul_i32 s61, s{sW}, {32-256}
        s_add_u32 s60, s60, s61
        s_add_u32 s60, s60, 1024
        v_add_u32 v{U}, s60, v{U}
        v_and_b32 v{X+2}, 15, v{X}
        v_lshl_add_u32 v{X+1}, v{X+2}, 1, v{X+1}
        v_lshlrev_b32 v{X+1}, 3, v{X+1}
        v_lshl_add_u32 v{X}, v{X}, 8, v{X+1}
        v_add_u32 v{X}, s{s16}, v{X}""")
        for k in range(1,8): a(f"v_xor_b32 v{X+k}, {k<<5}, v{X}")
        for k in range(8): a(f"v_xor_b32 v{216+k}, {(k<<5)+16}, v{X}")
        a(s.tra(Y,7))
        a(f"""v_xor_b32 v{Y+3}, s{sW}, v{Y+1}
        v_xor_b32 v{Y+3}, v{Y+3}, v{Y+2}
        v_lshl_add_u32 v{Y+3}, v{Y+3}, 5, v{Y}
        s_add_u32 s60, s{s16}, {WQL}
        v_add_u32 v{Y+3}, s60, v{Y+3}
        v_xor_b32 v{Y+4}, 64, v{Y+3}
        v_and_b32 v{Y+7}, 124, v{vL4}
        s_lshl_b32 s61, s{sW}, 6
        v_xor_b32 v{Y+5}, s61, v{Y+7}
        v_add_u32 v{Y+5}, {WQL}, v{Y+5}
        v_xor_b32 v{Y+6}, 128, v{Y+5}
        v_add_u32 v{Y+7}, {KVL}, v{Y+7}
        v_add_u32 v{Y}, s{s16}, v{Y+5}
        v_add_u32 v{Y+1}, s{s16}, v{Y+6}
        s_lshl_b32 s61, s{sW}, 7
        v_add_u32 v{Y+2}, s61, v{Y+7}
        s_add_u32 s61, s{sW8}, {KVL}""")
        for i in range(4): a(f"v_mov_b32 v{ON+i}, v{vOnes}")
        a(s.tra(Z,5)); a(f"v_lshl_add_u32 v{Z}, v{Z+1}, 12, v{Z}\nv_add_u32 v{Z}, s61, v{Z}")
        a(f"""s_cmp_lt_u32 s2, 80
        s_cselect_b32 s60, 64, 80
        s_sub_u32 s60, s2, s60
        s_lshl_b32 s60, s60, 15
        s_lshr_b32 s61, s{sW}, 1
        s_lshl_b32 s61, s61, 14
        s_add_u32 s60, s60, s61
        s_lshr_b32 s61, s{sKVl}, 1
        s_add_u32 s60, s60, s61
        s_sub_u32 s61, s2, 136
        s_lshl_b32 s61, s61, 6
        s_mul_i32 s62, s{sW}, {128*3584}
        s_add_u32 s61, s61, s62
        s_cmp_ge_u32 s2, 136
        s_cselect_b32 s60, s61, s60
        s_cselect_b32 s3, {16*3584}, 64
        s_movk_i32 s62, 1024
        s_cmovk_i32 s62, 3584
        s_sub_u32 s61, s2, 64
        s_cmp_ge_u32 s61, 128
        s_cmov_b32 s60, 0
        s_cmov_b32 s3, 0
        s_cmov_b32 s62, 0
        v_lshrrev_b32 v{U+1}, 2, v0
        v_mul_lo_u32 v{U+1}, v{U+1}, s62
        v_and_b32 v{T}, 48, v{vL16}
        v_add_u32 v{U+1}, v{U+1}, v{T}
        s_add_u32 s{pJ}, s{pJ}, s60
        s_addc_u32 s{pJ+1}, s{pJ+1}, 0
        v_mov_b32 v{vP+1}, 0
        global_load_dword v{vP}, v{vP+1}, s[66:67] sc1 ;@non""")
        a(s.stamp(0,"set"))
        st=lambda: [[x] for x in ["@wvm x0_7"]+s.xr(0)+s.stats0(0)]
        a(f"s_cmp_ge_u32 s{sJ}, 2\ns_cbranch_scc1 {Lk}\n@optb")
        for u in range(2):
            a(f"s_add_u32 m0, s{sW8}, {KVL+u*4096}\ns_add_u32 s{P0}, s{50+2*u}, s{sKVd}\ns_addc_u32 s{P0+1}, s{51+2*u}, 0")
            for i in range(4): a(f"global_load_lds_dwordx4 v{vL16}, s[{P0}:{P0+1}] offset:{i*1024} ;@wkd")
        o=st()+[["@wvm wkd"]]
        o+=[[f"ds_read_b64_tr_b16 {R(WKR(k)+2*h,2)}, v{Z} offset:{k*512+h*256} ;@wk{k}"] for k in range(8) for h in range(2)]
        weave(o, s.wqd[:8], 17)
        for k in range(8): o+=[[f"@wlg wk{k}", mf(KACC, ON, WKR(k), "0" if k==0 else None)]+(s.wqd[8+k//2] if k%2 else [])]
        a(o); a(f"s_barrier\nds_write_b32 v{Y+2}, v{KACC} ;@cw"); a(s.wqd[12:14]); a("@wlg cw\ns_barrier")
        for k in range(4): a(f"ds_read_b32 v{64+k}, v{Y+7} offset:{k*128} ;@cr")
        a(s.wqd[14:])
        a(f"v_cmp_gt_u32 vcc, 32, v0\n@wlg cr\nv_add_f32 v64, v64, v65\nv_add_f32 v66, v66, v67\nv_add_f32 v64, v64, v66"); a(s.hilo(64,CSK))
        a(f"s_branch {Lm}\n@opte\n{Lk}:"); a(s.wqd[:NW0])
        o=st(); weave(o, s.wqd[NW0:], 17); a(o)
        Lw=a.label("nw"); Lr=a.label("nr")
        a(f"""{Lm}:
        s_waitcnt lgkmcnt(0)
        s_mov_b32 s0, 0
        s_mov_b32 s{sPure}, 0
        s_mov_b32 s{sBud}, 100000""")
        a(["@wvm non", f"v_readfirstlane_b32 s{sNon}, v{vP}", f"s_cmp_lg_u32 s{sNon}, 0", f"s_cbranch_scc0 {Lr}", f"{Lw}:", f"s_or_b32 s{sXcc}, s{sXcc}, s{sNon}"])
        s.ool+=[f"{Lr}:", f"s_sub_u32 s{sBud}, s{sBud}, 1", f"s_cmp_lt_i32 s{sBud}, 0", f"s_cbranch_scc1 {Lw}", f"global_load_dword v{vP}, v{vP+1}, s[66:67] sc1", "s_waitcnt vmcnt(0)",
                f"v_readfirstlane_b32 s{sNon}, v{vP}", f"s_cmp_lg_u32 s{sNon}, 0", f"s_cbranch_scc1 {Lw}", f"s_branch {Lr}"]
        a(s.stamp(0,"st0"))
    def pro3(s, kf):
        a=s.a; pD=66; Y=192; ON=T+16; acc=QACC[0]; Lw=a.label("nw"); Lr=a.label("nr"); o=[]
        o+=s.stamp(0,"kvb"); U=214
        ld=s.xd1+[[f"global_load_dwordx4 {v(XR[0],4)}, v{U}, s[{P2}:{P2+1}] offset:-1024"], [f"v_add_u32 v{U}, 32768, v{U}", f"global_load_dwordx4 {v(XR[1],4)}, v{U}, s[{P2}:{P2+1}] offset:-1024 ;@xr"]]
        ld+=[[f"s_add_u32 m0, s{s16}, {WQL+1024+i*1024}", f"global_load_lds_dwordx4 v{U+1}, s[{pJ}:{pJ+1}]", f"s_add_u32 s{pJ}, s{pJ}, s3", f"s_addc_u32 s{pJ+1}, s{pJ+1}, 0"] for i in range(8)]
        for k in range(9):
            if k<8:
                o+=[f"@wvm wq{2*k+1}"]+[f"ds_read_b64_tr_b16 {R(WQR(c,k)+2*h,2)}, v{Y+3+c} offset:{k*2048+h*1024} ;@wt{k}" for c in range(2) for h in range(2)]
            if k>0:
                o+=[f"@wlg wt{k-1}"]+[mf(OB+16*c, ON, WQR(c,k-1), "0" if k==1 else None) for c in range(2)]+[mf(acc+16*c, WQR(c,k-1), BQ[0]+4*(k-1), "0" if k==1 else None) for c in range(2)]
            if k==KFK: o+=[kf.replace("vmcnt(0)",f"vmcnt({2*k})")]
            o+=ld[2*k]+ld[2*k+1]
        o+=s.stamp(0,"wq")
        o+=[f"s_mov_b32 s{sONE}, 1.0", f"s_mov_b32 s{sONE+1}, 1.0"]
        o+=[f"ds_write_b32 v{Y+c}, v{OB+16*c} ;@cw" for c in range(2)]+["@wvm xr"]+s.xr(1)+["@wlg cw", "s_barrier"]+s.stamp(0,"bB")
        o+=[f"ds_read_b32 v{OB+4*i+k}, v{Y+5+i} offset:{k*16384} ;@cr{i}" for i in range(2) for k in range(4)]
        o+=s.sw(XR[0])+s.sw(XR[1])+["v_cmp_gt_u32 vcc, 32, v0"]
        for i in range(2):
            r=OB+4*i
            o+=[f"@wlg cr{i}", f"v_add_f32 v{r}, v{r}, v{r+1}", f"v_add_f32 v{r+2}, v{r+2}, v{r+3}", f"v_add_f32 v{r}, v{r}, v{r+2}"]+s.hilo(r,CSQR+2*i)
        w=s.red_write(acc)
        o+=[mf(acc+16,CSQR,vBX), mf(acc,CSQR,vBX+2)]+s.stamp(0,"ext")+w[2:]+w[:2]+s.stamp(0,"rw")+s.stats0(1)+["@wlg rw","s_barrier"]
        return o
    def job1(s):
        a=s.a; Lj=a.label("nj"); ON=148; Z=152
        o=[f"""s_sub_u32 s60, s2, 64
        s_cmp_ge_u32 s60, 128
        s_cbranch_scc1 {Lj}
        @optb
        {s.tra(Z,6)}
        v_lshl_add_u32 v{Z}, v{Z+1}, 5, v{Z}
        s_add_u32 s60, s{s16}, {WQL}
        v_add_u32 v{Z}, s60, v{Z}
        s_waitcnt vmcnt(1)"""]+[f"ds_read_b64_tr_b16 {R(WKR(k)+2*h,2)}, v{Z} offset:{1024+k*1024+h*512}" for k in range(8) for h in range(2)]
        o+=["s_waitcnt lgkmcnt(0)", "s_cmp_lt_u32 s2, 136", f"s_cbranch_scc1 {Lj}"]+[f"v_mov_b32 v{ON+i}, v{vOnes}" for i in range(4)]
        o+=[mf(KACC, ON, WKR(k), "0" if k==0 else None) for k in range(8)]
        o+=[f"v_add_u32 v{Z}, s60, v{vL4}", f"v_add_u32 v{Z+1}, {WQL}, v{vL4}", f"ds_write_b32 v{Z}, v{KACC}", "s_waitcnt lgkmcnt(0)", "s_barrier"]
        o+=[f"ds_read_b32 v{Z+2+k}, v{Z+1} offset:{k*16384}" for k in range(4)]+["v_cmp_gt_u32 vcc, 32, v0", "s_waitcnt lgkmcnt(0)",
            f"v_add_f32 v{Z+2}, v{Z+2}, v{Z+3}", f"v_add_f32 v{Z+4}, v{Z+4}, v{Z+5}", f"v_add_f32 v{Z+2}, v{Z+2}, v{Z+4}"]+s.hilo(Z+2,CSK)
        return o+["@opte", f"{Lj}:", "s_waitcnt vmcnt(1)", "s_barrier"]
    def job2(s):
        a=s.a; Lj=a.label("nj"); Lg=a.label("ng"); Lz=a.label("nz"); L1=a.label("j1"); ON=148; T=144; o=[]
        cs=[y.replace("buffer_load","buffer_store").replace(f"v{vA+3},",f"v{T},").split(";@")[0]+(" sc1" if "_load" in y else "") for y in flat(s.cs_loads())]
        o+=[f"s_cmp_gt_u32 s{sG}, 8", f"s_cbranch_scc1 {Lg}", "@optb", f"s_lshl_b32 s60, s{sG}, 10", f"v_add_u32 v{T}, s60, v{vL16x}", f"s_add_u32 s60, s60, s{sW8}", f"s_add_u32 s60, s60, {WKVF}"]
        for k in range(8):
            Ln=a.label("nk")
            o+=[f"s_cmp_lg_u32 s{sG}, {k}", f"s_cbranch_scc1 {Ln}"]+[f"global_store_dwordx4 v{T}, {R(WQR(c,k))}, s[{pWQ[c]}:{pWQ[c]+1}] sc1" for c in range(2)]
            o+=[f"s_cmp_lg_u32 s{sJ}, 0", f"s_cbranch_scc1 {Lg}", f"buffer_store_dwordx4 {R(WKR(k))}, v{vL16}, {WSR}, s60 offen sc1", f"s_branch {Lg}", f"{Ln}:"]
        assert WQF==0
        o+=cs[:-3]+[f"s_cmp_lg_u32 s{sJ}, 0", f"s_cbranch_scc1 {Lg}"]+cs[-3:]+["@opte", f"{Lg}:", f"s_cmp_lg_u32 s{sJ}, 6", f"s_cbranch_scc1 {Lz}", "@optb",
            f"s_lshl_b32 s61, s{sW}, 10", f"s_and_b32 s60, s{sFlP}, 0xffffff00", "s_add_u32 s61, s61, s60"]+[f"v_mov_b32 v{ON+i}, 0" for i in range(4)]
        o+=[f"""buffer_store_dwordx4 {v(ON,4)}, v{vL16}, {WSR}, s61 offen sc1
        @opte
        {Lz}:
        @optb
        s_movk_i32 s62, 1024
        s_sub_u32 s60, s2, 64
        s_cmp_ge_u32 s60, 128
        s_cbranch_scc1 {Lj}
        s_lshl_b32 s61, s2, 15
        s_add_u32 s61, s61, s{sW8}
        s_add_u32 s61, s61, {(W1F-136*32*KB)&0xffffffff:#x}
        s_lshl_b32 s63, s2, 9
        s_add_u32 s63, s63, {CS1-136*512}
        s_cmp_ge_u32 s2, 136
        s_cbranch_scc1 {L1}
        s_mov_b32 s62, {112*KB}
        s_mov_b32 s61, {W2F-80*2048}
        s_cmp_lt_u32 s2, 80
        s_cmov_b32 s62, {32*KB}
        s_cmov_b32 s61, {WOF-64*2048}
        s_lshl_b32 s63, s2, 11
        s_add_u32 s61, s61, s63
        s_lshr_b32 s63, s{sW}, 1
        s_lshl_b32 s63, s63, 10
        s_add_u32 s61, s61, s63
        s_and_b32 s63, s{sW}, 1
        s_lshl_b32 s63, s63, 3
        s_mul_i32 s63, s63, s62
        s_add_u32 s61, s61, s63
        {L1}:
        v_lshrrev_b32 v{T}, 1, v{vL16}"""]
        for k in range(8): o+=[f"buffer_store_dwordx4 {R(WKR(k))}, v{vL16}, {WSR}, s61 offen sc1", "s_add_u32 s61, s61, s62"]
        o+=["s_cmp_eq_u32 s62, 1024", f"s_cbranch_scc0 {Lj}", f"buffer_store_dwordx2 {v(CSK,2)}, v{T}, {WSR}, s63 offen sc1", "@opte", f"{Lj}:"]
        return o

def k_main(a):
    s=M(a)
    def p64(p, src): a(f"s_add_u32 s{p}, s4, s{src}\ns_addc_u32 s{p+1}, s5, 0")
    a(f"s_cmp_ge_u32 s2, 256\ns_cbranch_scc1 {a.endl}")
    if STAMP:
        for j in range(1,13): a(f"s_mov_b32 s{72+2*j}, 0")
        a("s_memrealtime s[70:71]\ns_memtime s[72:73]")
    GR=3
    s.pro1(GR)
    a(f"""    s_getreg_b32 s{sXcc}, hwreg(HW_REG_XCC_ID)
    s_and_b32 s{sXcc}, s{sXcc}, 15
    v_mov_b32 v{vOnes}, {ONES:#x}
    v_mov_b32 v{vOne}, 1""")
    for i in (0,1,4,5): a(f"v_mov_b32 v{vBX+i}, 0")
    for i in range(4): a(f"s_xor_b32 s60, s{sW}, {i}\ns_lshl_b32 s{s16+i}, s60, 14\ns_mul_i32 s60, s60, {CST}\ns_add_u32 s{s7+i}, s60, {LC}")
    s.pro2(GR)
    for L in range(2):
        if L==1: a("@wlg wqr")
        s.qkv(L,0); s.qkv(L,1); s.att(L); s.op(L,0); s.op(L,1); s.f1(L); s.f2(L)
    if STAMP:
        a("s_memtime s[98:99]\ns_memrealtime s[100:101]\ns_waitcnt lgkmcnt(0)\nv_mov_b32 v4, 0x57a3")
        for j in range(14): a(f"v_writelane_b32 v4, s{70+2*j}, {j}")
        a(f"""v_writelane_b32 v4, s98, 19
        v_writelane_b32 v4, s100, 20
        v_writelane_b32 v4, s{sBud}, 21
        v_writelane_b32 v4, s{sPure}, 22
        v_writelane_b32 v4, s0, 23
        s_lshl_b32 s60, s2, 2
        s_add_u32 s60, s60, s{sW}
        s_lshl_b32 s60, s60, 7
        s_add_u32 s60, s60, {TS}
        s_mov_b64 exec, 0xffffffff
        buffer_store_dword v4, v{vL4}, {WSR}, s60 offen""")
    a(f"s_endpgm\n@optb"); a(s.ool); a("@opte")

gen2.KERNELS=[("main_kernel",k_main,256,LDS_TOTAL,512)]
if __name__=="__main__":
    for x in sys.argv[2:]:
        if x.startswith("stamp"): STAMP=True; STL=int(x[5]); STO=int(x[7:] or 0)
        elif "=" in x:
            k,val=x.split("="); globals()[k]=int(val)
    p = sys.argv[1] if len(sys.argv)>1 and sys.argv[1]!="-" else "cdna_kernels/"+NAME+".s"
    o=gen2.build()
    if SINGLE: o=o.replace("kernel=main_kernel ","").replace("main_kernel",NAME+"_kernel")
    open(p,"w").write(o)
```

```python
import sys
import gen2
from gen2 import *
sPure=12; sBud=13; sXcc=14; sKF=15; sW=16; sG=17; sJ=18; sW8=19
sOwn=20; sFlS=21; sFlP=22; sStS=23; sHs=[24,25]; s7=26; s16=30; sONE=34; sKVd=36; sKVl=37
pQtr=38; pStL=40; pHl=42; pWQ=[44,46]; pW2=[48,50]; pW1=[52,54]; pKVd=56; pKVl=58
t0_,t1_,t2_,t3_=60,61,62,63; P0,P1,P2=64,66,68
vL16=1; vL16x=2; vL4=3; vOnes=4; vOne=5; vRs=[6,7]; vBX=8; vP=14; XR=[16,20]; Q=[24,28]
ACC=[32,64]; T=96; CS1R=120; vA=124
A0=256
def W1R(c,ks): return A0+128*c+4*ks
def W2R(i): return 128+4*i if i<32 else A0+4*(i-32)
def HWR(i): return A0+96+4*(i%16)
def WKR(ks): return A0+160+4*ks
def WQR(c,ks): return A0+192+32*c+4*ks
BQ=[32,160]; SQ=[24,200]; QACC=[64,32]; KACC=128; CSK=208; CSQR=210; OB=224; SX=24; sLast=3
XIDG=KVF+32*KB; sNon=1; WQL=65536; KVL=131072; JG=8; pJ=34; pQ2=12
STAMP=False; STL=0; STO=0; STAG=8; TOUCH=1; ATS=0; FORCEFB=0; NW0=4; GS=34; NB0=28; JE0=108; NB1=58; JE1=104; NT=0; NOW=0; WJ=0; FD=14; PI=113; PW=1; NA1=34; LOFF=0; PJ=45; ZR=0x100000; EARLYF=1; KFK=5; PFC=1; SINGLE=0; KVS=''
def flat(x):
    o=[]
    for y in x: o+= flat(y) if isinstance(y,list) else [y]
    return o

class M:
    def __init__(s,a): s.a=a; s.ool=[]; s.nst=0; s.cnt=0
    def stamp(s,L,name):
        if STAMP and L==STL:
            s.cnt+=1
            if s.cnt>STO and s.nst<12:
                s.nst+=1; s.a.stamps.append(name)
                return [f"s_memtime s[{72+2*s.nst}:{73+2*s.nst}]"]
        return []
    def base(s, pt, pb, c): return [f"s_add_u32 s{pt}, s{pb}, {c}", f"s_addc_u32 s{pt+1}, s{pb+1}, 0"]
    def loads(s, regs, voff, pb, const, pt, tag, fl=""):
        out=[]
        for i,r in enumerate(regs):
            it=s.base(pt,pb,const+i*1024+4096) if i%8==0 else []
            out.append(it+[f"global_load_dwordx4 {R(r)}, v{voff}, s[{pt}:{pt+1}] offset:{(i%8)*1024-4096} {fl} ;@{tag}{i}"])
        return out
    def dmas(s, n, voff, pb, const, sl, lconst, pt, tag, fl=""):
        out=[]
        for i in range(n):
            it=[f"s_add_u32 m0, s{sl}, {lconst+i*1024}"]+s.base(pt,pb,const+i*1024) if i%4==0 else []
            out.append(it+[f"global_load_lds_dwordx4 v{voff}, s[{pt}:{pt+1}] offset:{(i%4)*1024} {fl} ;@{tag}{i}"])
        return out
    def pub(s, stores, one=False):
        Ls=s.a.label("slow"); Lb=s.a.label("back")
        s.ool += [f"{Ls}:"] + (["s_mov_b64 exec, 1"] if one else []) + [x.replace("{F}","sc1").split(";@")[0] for x in stores] + (["s_mov_b64 exec, -1"] if one else []) + [f"s_branch {Lb}"]
        return [f"s_cmp_eq_u32 s{sPure}, 0", f"s_cbranch_scc1 {Ls}"]+[x.replace("{F}","") for x in stores]+[f"{Lb}:"]
    def flag(s, L, step, *tags):
        return [f"@wvm {' '.join(tags)}"] + s.pub([f"buffer_store_byte v{vOne}, off, {WSR}, s{sFlS} offset:{(8*L+step)*128} {{F}}"], one=True)
    def poll_i(s, L, step):
        return [f"buffer_load_dwordx2 {v(vP,2)}, off, {WSR}, s{sFlP} offset:{(8*L+step)*128} sc1 ;@poll"]
    def retry(s, ld, chk, okbr):
        Lr=s.a.label("retry"); Lb=s.a.label("back")
        s.ool += [f"{Lr}:", f"s_sub_u32 s{sBud}, s{sBud}, 1", f"s_cmp_lt_i32 s{sBud}, 0", f"s_cbranch_scc1 {Lb}", ld.split(";@")[0], "s_waitcnt vmcnt(0)"]+chk+[f"{okbr[0]} {Lb}", f"s_branch {Lr}"]
        return ["@wvm poll"]+chk+[f"{okbr[1]} {Lr}", f"{Lb}:"]
    def poll_c(s, L, step):
        return s.retry(s.poll_i(L,step)[0], [f"v_and_b32 v{vP}, v{vP}, v{vP+1}", f"v_readfirstlane_b32 s{t0_}, v{vP}", f"s_cmp_eq_u32 s{t0_}, 0x01010101"], ("s_cbranch_scc1","s_cbranch_scc0"))
    def block(s, L, step, allcu=False):
        Lr=s.a.label("blk"); Le=s.a.label("blke"); Lp=s.a.label("blkp"); off=(8*L+step)*128
        o=["s_waitcnt vmcnt(0)", f"s_cmp_eq_u32 s{sPure}, 0", f"s_cbranch_scc1 {Lp}", f"buffer_store_byte v{vOne}, off, {WSR}, s{sFlS} offset:{off}", f"s_branch {Lr}",
           f"{Lp}:", "s_mov_b64 exec, 1", f"buffer_store_byte v{vOne}, off, {WSR}, s{sFlS} offset:{off} sc1", "s_mov_b64 exec, -1",
           f"{Lr}:", f"s_sub_u32 s{sBud}, s{sBud}, 1", f"s_cmp_lt_i32 s{sBud}, 0", f"s_cbranch_scc1 {Le}"]
        if allcu:
            o+=[f"s_and_b32 s{t0_}, s{sFlP}, 0xffffffe0", f"v_and_b32 v{vP+1}, 28, v{vL4}", f"buffer_load_dword v{vP}, v{vP+1}, {WSR}, s{t0_} offen offset:{off} sc1", "s_waitcnt vmcnt(0)",
                f"v_cmp_ne_u32 vcc, 0x01010101, v{vP}", f"s_cbranch_vccnz {Lr}"]
        else:
            o+=[f"buffer_load_dwordx2 {v(vP,2)}, off, {WSR}, s{sFlP} offset:{off} sc1", "s_waitcnt vmcnt(0)", f"v_and_b32 v{vP}, v{vP}, v{vP+1}", f"v_readfirstlane_b32 s{t0_}, v{vP}",
                f"s_cmp_eq_u32 s{t0_}, 0x01010101", f"s_cbranch_scc0 {Lr}"]
        return o+[f"{Le}:"]
    def gate(s, L, step):
        Lg=s.a.label("gate"); Lb=s.a.label("back")
        s.ool+=[f"{Lg}:"]+s.block(L,step)+[f"s_branch {Lb}"]
        return [f"s_cmp_eq_u32 s{sPure}, 0", f"s_cbranch_scc1 {Lg}", f"{Lb}:"]
    def check(s, L, step, reg, reload, start, allcu=False, idn=None):
        Lr=s.a.label("redo"); Lb=s.a.label("back"); idn=8*L+step+1 if idn is None else idn
        s.ool+=[f"{Lr}:", f"s_cmp_eq_u32 s{sLast}, {idn}", f"s_cbranch_scc1 {Lb}", f"s_mov_b32 s{sLast}, {idn}"]
        if STAMP: s.ool+=[f"s_bitset1_b32 s0, {idn}"]
        s.ool+=s.block(L,step,allcu)+[x.split(";@")[0] for x in flat(reload)]+["s_waitcnt vmcnt(0) lgkmcnt(0)", f"s_branch {start}"]
        return [f"v_cmp_u_f32 vcc, v{reg}, v{reg}"], [f"s_cbranch_vccnz {Lr}", f"{Lb}:"]
    def kvpoll_i(s, L, t):
        return [f"v_lshlrev_b32 v{vP+1}, 7, v0", f"s_mov_b32 s{t3_}, {KVF+(2*L+t)*8192}", f"buffer_load_dword v{vP}, v{vP+1}, {WSR}, s{t3_} offen sc1 ;@poll"]
    def kvpoll_c(s):
        return s.retry(s.kvpoll_i(0,0)[2], [f"v_cmp_ne_u32 vcc, s{sNon}, v{vP}"], ("s_cbranch_vccz","s_cbranch_vccnz"))
    def red_addr(s, buf):
        if buf=="C": return [f"v_add_u32 v{vA+i}, s{s7+i}, v{vL16}" for i in range(4)]
        if buf=="P": return [f"v_add_u32 v{vA+i}, s{s16+i}, v{vL16}" for i in range(4)]
        return [[f"s_add_u32 s{t1_}, s{s16+i}, {LR}", f"v_add_u32 v{vA+i}, s{t1_}, v{vL16}"] for i in range(4)]
    def red_write(s, acc):
        return [f"ds_write_b128 v{vA}, {v(acc+8+4*i,4)} offset:{i*1024} ;@rw" for i in range(6)]
    def red_read(s):
        return [f"ds_read_b128 {v(T+4*i,4)}, v{vA+1+i//2} offset:{i*1024} ;@rr{i}" for i in (2,3,4,5,0,1)]
    def red_add(s, acc):
        o=[]
        for i in (2,3,4,5,0,1):
            o.append(f"@wlg rr{i}")
            for h in range(2): o.append(f"v_pk_add_f32 {v(acc+4*(i%2)+2*h,2)}, {v(acc+4*(i%2)+2*h,2)}, {v(T+4*i+2*h,2)}")
        return o
    def sum8(s, r):
        return [f"v_add_f32 v{r+i}, v{r+i}, v{r+i+4}" for i in range(4)]+[f"v_add_f32 v{r}, v{r}, v{r+2}", f"v_add_f32 v{r+1}, v{r+1}, v{r+3}", f"v_add_f32 v{r}, v{r}, v{r+1}"]
    def bext(s, p, t):
        return [f"v_mul_f32 v{t}, {f2u(-1/512):#x}, v{p}", f"v_cvt_pk_bf16_f32 v{vBX+2}, v{t}, v{t}", f"v_and_b32 v{vBX+3}, 0xffff0000, v{vBX+2}",
                f"v_sub_f32 v{t}, v{t}, v{vBX+3}", f"v_cvt_pk_bf16_f32 v{vBX+3}, v{t}, v{t}"]
    def stat_rd(s, r, slot, tag):
        return [f"v_add_u32 v{r+3}, {LC}, v{vL4}"]+[f"ds_read_b32 v{r+i}, v{r+3} offset:{i*CST+6144+256*slot} ;@{tag}" for i in range(4)]
    def stat_wr(s, p, t, slot):
        return [f"v_add_u32 v{t}, s{s7}, v{vL4}", f"ds_write_b32 v{t}, v{p} offset:{6144+256*slot} ;@rw"]
    def rstd(s, r, dst):
        return [f"v_add_f32 v{r}, v{r}, v{r+2}", f"v_add_f32 v{r+1}, v{r+1}, v{r+3}", f"v_add_f32 v{r}, v{r}, v{r+1}", f"v_mov_b32 v{r+1}, v{r}",
                f"v_permlane32_swap_b32 v{r}, v{r+1}", f"v_mul_f32 v{r+2}, {f2u(1/512):#x}, v{r}", f"v_mul_f32 v{r+1}, {f2u(1/512):#x}, v{r+1}",
                f"v_fma_f32 v{r+1}, -v{r+2}, v{r+2}, v{r+1}", f"v_max_f32 v{r+1}, 0, v{r+1}", f"v_add_f32 v{r+1}, {f2u(1e-5):#x}, v{r+1}", f"v_rsq_f32 v{dst}, v{r+1}"]
    def emit_x(s, acc, t, xoff, soff, tmp):
        o=[f"s_add_u32 s{t1_}, s{sOwn}, {xoff+t*32*KB}", f"s_add_u32 s{t2_}, s{sStS}, {soff+t*8*KB}"]
        o+=[f"v_cvt_pk_bf16_f32 v{XR[t]+i}, v{acc+2*i}, v{acc+2*i+1}" for i in range(4)]
        for i in range(4):
            o+=[f"v_dot2_f32_bf16 v{tmp}, v{XR[t]+i}, v{vOnes}, {'0' if i==0 else v(tmp)}", f"v_dot2_f32_bf16 v{tmp+1}, v{XR[t]+i}, v{XR[t]+i}, {'0' if i==0 else v(tmp+1)}"]
        o+=[f"v_permlane32_swap_b32 v{tmp}, v{tmp+1}", f"v_add_f32 v{tmp}, v{tmp}, v{tmp+1}"]
        o+=s.pub([f"buffer_store_dwordx4 {v(XR[t],4)}, v{vL16}, {WSR}, s{t1_} offen {{F}}", f"buffer_store_dword v{tmp}, v{vL16}, {WSR}, s{t2_} offen {{F}} ;@xst"])
        return o
    def qkv_loads(s, L, t):
        return s.loads([SQ[t],SQ[t]+4], vL16, pStL, L*LOFF+SA_+t*8*KB, P0, f"sq{t}_", "sc1") + s.loads([BQ[t]+4*i for i in range(8)], vL16, pQtr, L*LOFF+XA_+t*32*KB, P0, f"bq{t}_", "sc1")
    def cs_loads(s):
        return [[f"v_lshrrev_b32 v{vA+3}, 1, v{vL16x}", f"s_lshr_b32 s{t1_}, s{sW}, 1", f"s_lshl_b32 s{t2_}, s{sJ}, 1", f"s_add_u32 s{t1_}, s{t1_}, s{t2_}", f"s_lshl_b32 s{t1_}, s{t1_}, 9", f"s_add_u32 s{t1_}, s{t1_}, {CSQ}",
                f"buffer_load_dwordx2 {v(CSQR,2)}, v{vA+3}, {WSR}, s{t1_} offen", f"s_xor_b32 s{t1_}, s{t1_}, 512", f"buffer_load_dwordx2 {v(CSQR+2,2)}, v{vA+3}, {WSR}, s{t1_} offen",
                f"v_lshrrev_b32 v{vA+3}, 1, v{vL16}", f"s_mov_b32 s{t1_}, {CSKV}", f"buffer_load_dwordx2 {v(CSK,2)}, v{vA+3}, {WSR}, s{t1_} offen ;@csq"]]
    def wkv_loads(s):
        Lk=s.a.label("nokv")
        o=[f"s_cmp_ge_u32 s{sJ}, 2", f"s_cbranch_scc1 {Lk}", "@optb", f"s_add_u32 s{P2}, s4, s{sW8}", f"s_addc_u32 s{P2+1}, s5, 0"]
        return o+flat(s.loads([WKR(k) for k in range(8)], vL16, P2, WKVF, P2, "wk"))+["@opte", f"{Lk}:"]
    def ksplit(s, acc, Areg, Breg, btag, ext, pre=None, post=None, c0init="0", chk=None):
        sl=[]
        for i in range(16):
            c,ks=1-i//8,i%8
            p=([f"@wvm {btag}{ks}"] if c==1 and btag else [])+(pre(i) if pre else [])
            p.append(mf(acc+16*c, Areg(c,ks), Breg(ks), ("0" if c==1 else c0init) if ks==0 else None))
            p+=(post(i) if post else [])
            if ext and ks==7: sl.append(p); p=[mf(acc+16*c, CSQR, vBX+2-2*c)]
            sl.append(p)
        w=s.red_write(acc); n=len(sl)
        if chk: sl[n-6]+=chk[0]; sl[n-5]+=chk[1]
        for k in range(4): sl[n-4+k if chk else n-5+k]+=[w[2+k]]
        sl.append([]); sl.append(w[:2]+["@wlg rw","s_barrier"])
        return sl

    def qkv(s, L, t):
        a=s.a; acc=QACC[t]; kacc=KACC; sq=SQ[t]
        Ls=a.label("qst"); ck=(lambda r: s.check(L-1,6+t,r,s.qkv_loads(L,t),Ls)) if L>0 else (lambda r:([],[]))
        a(s.red_addr("C" if t==0 else "P"))
        a(f"{Ls}:")
        if L>0: a(f"@wvm sq{t}_1"); a(s.sum8(sq))
        E0=(L==0 and t==0)
        c=ck(sq); a(c[0]); a(s.stat_wr(sq, sq+1, 2+t)); a(s.bext(sq, sq+1)); a(c[1])
        Ln=a.label("nkv"); Lv=a.label("v"); X=sq+2
        OPT=(L==1 and EARLYF); Lf=a.label("kf")
        if not (OPT and t==1): a(f"s_mov_b32 s{sKF}, 0")
        a(f"s_cmp_lg_u32 s{sJ}, {t}\ns_cbranch_scc1 {Ln}\n@optb")
        PO,PS,VB,VI=(0,CST,LC,CST+4096) if E0 else (8192,16384,0,16384+12288)
        a(f"v_add_u32 v{X}, s{s7 if E0 else s16}, v{vL16}\ns_lshl_b32 s{t1_}, s{sW}, 11\ns_add_u32 s{t1_}, s{t1_}, {VB}\nv_add_u32 v{X+1}, s{t1_}, v{vL16}\nv_add_u32 v{X+2}, {VB}, v{vL16}")
        for ks in range(8):
            if L>0: a(f"@wvm bq{t}_{ks}")
            a(mf(kacc, WKR(ks), BQ[t]+4*ks, "0" if ks==0 else None))
        if L>0: a("@wvm csq")
        a(mf(kacc, CSK, vBX+2))
        c=ck(kacc); a(c[0]+c[1])
        if L>0: a(f"s_mov_b32 s{sLast}, {8*(L-1)+6+t+1}")
        for i in range(4): a(f"ds_write_b128 v{X}, {v(kacc+4*i,4)} offset:{PO+i*1024}")
        a(f"s_waitcnt lgkmcnt(0)\ns_barrier\ns_cmp_ge_u32 s{sW}, 2\ns_cbranch_scc1 {Ln}")
        a(s.stat_rd(T, 2+t, "st"))
        for i in range(8): a(f"ds_read_b128 {v(OB+4*i,4)}, v{X+1} offset:{(i//2)*PS+PO+(i%2)*1024} ;@kr{i}")
        a(f"""s_mul_i32 s{t1_}, s{sG}, {KVT}
        s_add_u32 s{t1_}, s{t1_}, {KVI+(2*L+t)*KVH}
        s_lshl_b32 s{sKF}, s{sG}, 8
        s_add_u32 s{sKF}, s{sKF}, {KVF+(2*L+t)*8192}""")
        a("@wlg st"); a(s.rstd(T, T+4)); a(f"v_mov_b32 v{T+5}, v{T+4}")
        for i in range(2,8):
            a(f"@wlg kr{i}")
            for h in range(2): a(f"v_pk_add_f32 {v(OB+4*(i%2)+2*h,2)}, {v(OB+4*(i%2)+2*h,2)}, {v(OB+4*i+2*h,2)}")
        for i in range(4): a(f"v_pk_mul_f32 {v(OB+2*i,2)}, {v(OB+2*i,2)}, {v(T+4,2)}")
        for i in range(4): a(f"v_cvt_pk_bf16_f32 v{OB+8+i}, v{OB+2*i}, v{OB+2*i+1}")
        a(f"""s_cmp_eq_u32 s{sW}, 1
        s_cbranch_scc1 {Lv}
        buffer_store_dwordx4 {v(OB+8,4)}, v{vL16}, {WSR}, s{t1_} offen sc1
        s_branch {Lf}
        {Lv}:
        v_bfe_u32 v{T}, v0, 3, 2
        v_mul_u32_u24 v{T}, 272, v{T}
        v_add_u32 v{T}, {VB}, v{T}
        v_and_b32 v{T+1}, 7, v0
        v_lshl_add_u32 v{T+1}, v{T+1}, 1, v{T}
        v_lshrrev_b32 v{T+2}, 5, v0
        v_lshl_add_u32 v{T+1}, v{T+2}, 6, v{T+1}""")
        for r in range(8):
            a(f"{'ds_write_b16' if r%2==0 else 'ds_write_b16_d16_hi'} v{T+1}, v{OB+8+r//2} offset:{VI+(8*(r//4)+r%4)*16}")
        for i in range(4): a(f"v_mov_b32 v{OB+i}, v{vOnes}")
        a(f"""ds_write_b128 v{T}, {v(OB,4)} offset:{VI+256}
        s_waitcnt lgkmcnt(0)
        ds_read_b128 {v(OB+12,4)}, v{X+2} offset:{VI}
        ds_read_b128 {v(OB+16,4)}, v{X+2} offset:{VI+1024}
        s_waitcnt lgkmcnt(0)
        buffer_store_dwordx4 {v(OB+12,4)}, v{vL16}, {WSR}, s{t1_} offen offset:1024 sc1
        s_mov_b64 exec, 15
        buffer_store_dwordx4 {v(OB+16,4)}, v{vL16}, {WSR}, s{t1_} offen offset:2048 sc1
        s_mov_b64 exec, -1
        s_add_u32 s{sKF}, s{sKF}, 128
        {Lf}:""")
        if OPT: a(f"v_mov_b32 v{vP}, s{sNon}\ns_mov_b64 exec, 1\nbuffer_store_dword v{vP}, off, {WSR}, s{sKF} sc1\ns_mov_b64 exec, -1")
        a(f"@opte\n{Ln}:")
        sl=s.ksplit(acc, WQR, lambda k:BQ[t]+4*k, f"bq{t}_" if L>0 else None, True, chk=ck(acc+16) if L>0 else None)
        if L>0: sl[7]+=["@wvm csq"]
        Lk=a.label("nkf")
        kf=f"""s_cmp_eq_u32 s{sKF}, 0
        s_cbranch_scc1 {Lk}
        @optb
        s_waitcnt vmcnt({4 if (t==0 and L>0) else 0})
        v_mov_b32 v{vP}, s{sNon}
        s_mov_b64 exec, 1
        buffer_store_dword v{vP}, off, {WSR}, s{sKF} sc1
        s_mov_b64 exec, -1
        @opte
        {Lk}:"""
        if E0: sl=s.pro3(kf); kf=""
        if OPT:
            s.kf2=kf.replace("s_waitcnt vmcnt(0)","").replace(f"s{sKF} sc1",f"s{sKF} offset:4 sc1"); kf=""
        if t==0 and L>0:
            ql=s.qkv_loads(L,1)
            sl[-2]+=s.flag(L-1, 7, "xst")+s.gate(L-1,7)+flat(ql[:4])
        a(sl); a(s.stamp(L,f"q{t}b"))
        a(s.stat_rd(sq+4, 2+t, "st")); a(s.red_read())
        a(kf)
        if t==1: a(s.kvpoll_i(L,0))
        e=[[x] for x in ["@wlg st"]+s.rstd(sq+4, sq)+[f"v_mul_f32 v{sq}, {f2u(0.25*LOG2E):#x}, v{sq}", f"v_mov_b32 v{sq+1}, v{sq}"]+s.red_add(acc)]
        if t==0 and L>0: weave(e, ql[4:])
        a(e)
        for i in range(4): a(f"v_pk_mul_f32 {v(acc+2*i,2)}, {v(acc+2*i,2)}, {v(sq,2)}")
        for i in range(4): a(f"v_cvt_pk_bf16_f32 v{Q[t]+i}, v{acc+2*i}, v{acc+2*i+1}")
        a(s.stamp(L,f"q{t}e"))

    def att_fin(s, L, t, O, W):
        a=s.a; Lf=a.label("fb"); Lb=a.label("fbback"); L1=a.label("p1"); L2=a.label("p2")
        sc=[f"v_rcp_f32 v{O+10}, v{O+8}", f"v_subrev_u32 v{O+9}, {f2u(2.0**-60):#x}, v{O+8}"]+[f"v_mul_f32 v{O+i}, v{O+10}, v{O+i}" for i in range(8)]
        o=sc+[f"v_cmp_lt_u32 vcc, {f2u(2.0**100)-f2u(2.0**-60):#x}, v{O+9}"]
        o+=[f"v_add_f32 v{O+12+i}, v{O+i}, v{O+4+i}" for i in range(4)]+[f"v_add_f32 v{O+12}, v{O+12}, v{O+13}", f"v_add_f32 v{O+14}, v{O+14}, v{O+15}", f"s_mov_b32 s{t1_}, 0x207", f"v_add_f32 v{O+12}, v{O+12}, v{O+14}",
           f"v_cmp_class_f32 s[{P2}:{P2+1}], v{O+12}, s{t1_}", f"s_add_u32 s{t1_}, s{sOwn}, {L*LOFF+O_+t*32*KB}", f"s_or_b64 vcc, vcc, s[{P2}:{P2+1}]", f"s_cbranch_vccnz {Lf}" if not FORCEFB else f"s_branch {Lf}", f"{Lb}:"]
        o+=[f"v_cvt_pk_bf16_f32 v{O+12+i}, v{O+2*i}, v{O+2*i+1}" for i in range(4)]
        o+=s.pub([f"buffer_store_dwordx4 {v(O+12,4)}, v{vL16}, {WSR}, s{t1_} offen {{F}} ;@ost{t}"])
        S=W; K=W+16; V=W+20; m=W+28; va=W+29; c1=P2; c2=P2+1
        f=[f"{Lf}:"]
        if L==1 and EARLYF:
            Lq=a.label("fq"); Lr=a.label("fr")
            f+=[f"v_lshlrev_b32 v{va}, 7, v0", f"s_mov_b32 s{c1}, {KVF+2*8192}", f"s_mov_b32 s{c2}, {KVF+3*8192}", f"{Lq}:", f"s_sub_u32 s{sBud}, s{sBud}, 1", f"s_cmp_lt_i32 s{sBud}, 0", f"s_cbranch_scc1 {Lr}",
                f"buffer_load_dword v{K}, v{va}, {WSR}, s{c1} offen offset:4 sc1", f"buffer_load_dword v{K+1}, v{va}, {WSR}, s{c2} offen offset:4 sc1", "s_waitcnt vmcnt(0)",
                f"v_xor_b32 v{K}, s{sNon}, v{K}", f"v_xor_b32 v{K+1}, s{sNon}, v{K+1}", f"v_or_b32 v{K}, v{K}, v{K+1}", f"v_cmp_ne_u32 vcc, 0, v{K}", f"s_cbranch_vccnz {Lq}", f"{Lr}:"]
        if STAMP: f+=[f"s_bitset1_b32 s0, {22+L}"]
        f+=[f"v_mov_b32 v{m}, 0xff800000", f"s_mov_b32 s{c1}, {KVI+2*L*KVH}", f"s_mov_b32 s{c2}, 64", f"{L1}:",
           f"buffer_load_dwordx4 {v(K,4)}, v{vL16}, {WSR}, s{c1} offen sc1", "s_waitcnt vmcnt(0)", mf(S,K,Q[t],"0")]
        f+=[f"v_max_f32 v{m}, v{m}, v{S+i}" for i in range(16)]
        nxt=lambda l:[f"s_add_u32 s{c1}, s{c1}, {KVT}", f"s_sub_u32 s{c2}, s{c2}, 1", f"s_cmp_lg_u32 s{c2}, 0", f"s_cbranch_scc1 {l}"]
        f+=nxt(L1)+[f"v_mov_b32 v{va}, v{m}", f"v_permlane32_swap_b32 v{m}, v{va}", f"v_max_f32 v{m}, v{m}, v{va}",
            f"v_and_b32 v{va}, 31, v0", f"v_min_u32 v{va}, 16, v{va}", f"v_lshlrev_b32 v{va}, 4, v{va}", f"v_lshrrev_b32 v{va+1}, 5, v0", f"v_mul_u32_u24 v{va+1}, 272, v{va+1}", f"v_add_u32 v{va}, v{va}, v{va+1}"]
        f+=[f"v_mov_b32 v{O+i}, 0" for i in range(16)]
        f+=[f"s_mov_b32 s{c1}, {KVI+2*L*KVH}", f"s_mov_b32 s{c2}, 64", f"{L2}:",
            f"buffer_load_dwordx4 {v(K,4)}, v{vL16}, {WSR}, s{c1} offen sc1", f"buffer_load_dwordx4 {v(V,4)}, v{va}, {WSR}, s{c1} offen offset:1024 sc1",
            f"buffer_load_dwordx4 {v(V+4,4)}, v{va}, {WSR}, s{c1} offen offset:{1024+544} sc1", "s_waitcnt vmcnt(0)", mf(S,K,Q[t],"0")]
        f+=[f"v_sub_f32 v{S+i}, v{S+i}, v{m}" for i in range(16)]+[f"v_exp_f32 v{S+i}, v{S+i}" for i in range(16)]
        f+=[f"v_smfmac_f32_32x32x32_bf16 {v(O,16)}, {v(V+4*u,4)}, {v(S+8*u,8)}, v{vA}" for u in range(2)]
        f+=nxt(L2)+sc+[f"s_branch {Lb}"]
        s.ool+=f
        return o
    def kv_dma(s, L, t):
        lb = LR if t==0 else LP
        out=[]
        for r in range(4): out+=s.dmas(4, vL16, pKVd, (2*L+t)*KVH+r*16384, sKVd, lb+r*16384, P1, f"kv{t}_{r}_", KVS)
        out+=s.dmas(1, vL16, pKVl, (2*L+t)*KVH+65536, sKVl, lb+65536, P1, f"kv{t}_4_", KVS)
        return out
    def att(s, L):
        a=s.a
        S=[32,48]; O=[64,80]; KR=[96,100]; VR=[104,112]; IDX=vA; vK=vA+1; vV=vA+2
        jobs=[(t,k) for k in range(32) for t in range(2)]+[(0,k) for k in range(32,32+STAG)]+[(t,k) for k in range(32+STAG,64) for t in range(2)]+[(1,k) for k in range(32,32+STAG)]
        N=len(jobs)
        kap=[0]
        for i in range(1,N): kap.append(kap[-1]+(jobs[i][1]!=jobs[i-1][1]))
        first={}
        for i in range(N): first.setdefault(kap[i], i)
        NK=kap[-1]+1
        def laddr(k): return (LR+k*KVT) if k<32 else (LP+(k-32)*KVT)
        base={"K":LR,"V":LR}
        def rd(kind, kp, u=0):
            kt=jobs[first[kp]][1]
            ad=laddr(kt)+(0 if kind=="K" else 1024+u*544); o=[]
            reg=vK if kind=="K" else vV
            if not (0<=ad-base[kind]<65536):
                nb=laddr(kt); o.append(f"v_add_u32 v{reg}, {(nb-base[kind])&0xffffffff:#x}, v{reg}"); base[kind]=nb
            dst=KR[kp%2] if kind=="K" else VR[kp%2]+4*u
            return o+[f"ds_read_b128 {v(dst,4)}, v{reg} offset:{ad-base[kind]} ;@{kind}{kp}_{u}"]
        def smf(i,u): return [f"@wlg V{kap[i]}_{u}", f"v_smfmac_f32_32x32x32_bf16 {v(O[jobs[i][0]],16)}, {v(VR[kap[i]%2]+4*u,4)}, {v(S[i%2]+8*u,8)}, v{IDX}"]
        def qk(i): return [f"@wlg K{kap[i]}_0", mf(S[i%2], KR[kap[i]%2], Q[jobs[i][0]], "0")]
        def ex(r0,r1): return [f"v_exp_f32 v{r}, v{r}" for r in range(r0,r1)]
        d0=s.kv_dma(L,0); d1=s.kv_dma(L,1)
        a(f"""v_mov_b32 v{IDX}, 0xdddddddd
        v_add_u32 v{vK}, {LR}, v{vL16}
        v_and_b32 v{vV}, 31, v0
        v_min_u32 v{vV}, 16, v{vV}
        v_lshlrev_b32 v{vV}, 4, v{vV}
        v_lshrrev_b32 v{vA+3}, 5, v0
        v_mul_u32_u24 v{vA+3}, 272, v{vA+3}
        v_add_u32 v{vV}, v{vV}, v{vA+3}
        v_add_u32 v{vV}, {LR}, v{vV}""")
        if ZR: a(f"s_mov_b32 s{t1_}, 0xffee0000\ns_mov_b32 exec_lo, s{t1_}\ns_mov_b32 exec_hi, s{t1_}\nv_add_u32 v{vV}, {ZR:#x}, v{vV}\ns_mov_b64 exec, -1")
        for i in range(32): a(f"v_mov_b32 v{O[0]+i}, 0")
        a(f"v_lshlrev_b32 v{OB+8}, 7, v0\nv_lshlrev_b32 v{OB+9}, 10, v0")
        for i in range(4): a(f"v_mov_b32 v{OB+i}, -1")
        touch=[]
        def pst(sb, c, n=1, dw=False):
            for k in range(n): touch.append(([f"s_add_u32 s{t1_}, s{sb}, {c}"] if k==0 else [])+[(f"buffer_store_dword v{OB}" if dw else f"buffer_store_dwordx4 {v(OB,4)}")+f", v{vL16}, {WSR}, s{t1_} offen offset:{k*1024} ;@pois"])
        assert LOFF==0 and SA_==S1_+16*KB
        touch.append([f"s_and_b32 s{t1_}, s{sStS}, 0xffffff00", f"s_and_b32 s{t2_}, s{sW8}, {0x6000 if L==0 else 0x2000}", f"s_add_u32 s{t1_}, s{t1_}, s{t2_}", f"s_add_u32 s{t1_}, s{t1_}, {S1_}", f"buffer_store_dwordx4 {v(OB,4)}, v{vL16}, {WSR}, s{t1_} offen"])
        for t in range(2):
            pst(sOwn, O_+t*32*KB)
            if L==0 or t==0: pst(sOwn, X1_+t*32*KB)
            for c in range(2): pst(sHs[c], t*112*KB, 2)
            if L==0: pst(sOwn, XA_+t*32*KB)
        if L==1: touch.append([f"s_lshl_b32 s{t1_}, s{sG}, 16", f"s_lshl_b32 s{t2_}, s{sJ}, 7", f"s_add_u32 s{t1_}, s{t1_}, s{t2_}", f"buffer_load_dword v{OB+6}, v{OB+9}, s[8:11], s{t1_} offen"])
        warm=[[f"s_bitcmp1_b32 s{sG}, 4", f"s_cselect_b64 s[{P2}:{P2+1}], s[{pW2[1]}:{pW2[1]+1}], s[{pW2[0]}:{pW2[0]+1}]", f"s_and_b32 s{t1_}, s{sG}, 8", f"s_lshl_b32 s{t1_}, s{t1_}, 10", f"s_add_u32 s{t1_}, s{t1_}, {12*KB}",
               f"s_add_u32 s{P2}, s{P2}, s{t1_}", f"s_addc_u32 s{P2+1}, s{P2+1}, 0", f"global_load_dword v{OB+6}, v{OB+8}, s[{P2}:{P2+1}] ;@warm"]]
        if L==0: warm.append([f"s_bitcmp1_b32 s{sG}, 3", f"s_cselect_b64 s[{P2}:{P2+1}], s[{pWQ[1]}:{pWQ[1]+1}], s[{pWQ[0]}:{pWQ[0]+1}]", f"global_load_dword v{OB+6}, v{OB+8}, s[{P2}:{P2+1}]"])
        if L==0: s.setup2(); a(s.job1()); a(s.kvpoll_i(0,0)[1]); a(s.stamp(L,"job"))
        if NOW: warm=[]
        if L==1: warm.append(touch.pop())
        if L==1 and PW: a(touch); touch=[]
        a(s.kvpoll_c()); a(s.stamp(L,"kvp"))
        a(d0[:7])
        a("@wvm kv0_0_3\ns_barrier"); a(s.stamp(L,"kv0"))
        if L==0: a(s.job2())
        elif EARLYF: a(s.kf2)
        a(rd("K",0)+rd("V",0,0)+rd("V",0,1)+rd("K",1)+qk(0))
        A=[[] for _ in range(N)]; B=[[] for _ in range(N)]; C=[[] for _ in range(N)]
        fr=[]
        for i in range(N):
            kp=kap[i]; isf=first[kp]==i; last=(i+1==N or kap[i+1]!=kp)
            if isf and last:
                if kp+1<NK: A[i]+=[f"@wlg K{kp+1}_0"]+rd("V",kp+1,0); B[i]+=rd("V",kp+1,1)
                if kp+2<NK: C[i]+=rd("K",kp+2)
            elif isf:
                A[i]+=rd("V",kp+1,0); B[i]+=rd("V",kp+1,1); fr.append((i,C[i]))
            else:
                A[i]+=[f"@wlg V{kp+1}_1"]; fr.append((i,B[i])); C[i]+=rd("K",kp+2)
        def put(items, j0, j1):
            sl=[l for (j,l) in fr if j0<=j<j1]
            if items: weave(sl, items)
        def at(j): return [l for (jj,l) in fr if jj>=j][0]
        put(d0[7:], 0, 5)
        at(9).extend(["@wvm kv0_4_0","s_barrier"])
        if L==0:
            Lx=a.label("nx")
            at(9).append(f"""s_cmp_lg_u32 s{sW}, 0
            s_cbranch_scc1 {Lx}
            @optb
            v_mov_b32 v{vP}, s{sXcc}
            s_lshl_b32 s{t1_}, s2, 7
            s_add_u32 s{t1_}, s{t1_}, {XIDG}
            s_mov_b64 exec, 1
            buffer_store_dword v{vP}, off, {WSR}, s{t1_} sc1
            s_mov_b64 exec, -1
            @opte
            {Lx}:""")
        at(12).extend(s.kvpoll_i(L,1))
        at(20).extend(s.kvpoll_c())
        ldx=f"buffer_load_dword v{vP}, v{vP+1}, {WSR}, s{t3_} offen sc1 ;@poll"
        put(d1, 21, 30)
        if L==0:
            at(GS-9).extend([f"s_add_u32 s{t3_}, s{sW8}, {XIDG}", ldx])
            at(GS).extend(s.retry(ldx, [f"v_xor_b32 v{vP}, s{sNon}, v{vP}", f"v_cmp_lt_u32 vcc, 15, v{vP}"], ("s_cbranch_vccz","s_cbranch_vccnz"))+["s_barrier"])
            at(GS).extend([f"v_and_b32 v{vP+1}, 7, v0", f"v_lshlrev_b32 v{vP+1}, 12, v{vP+1}", f"s_lshl_b32 s{t3_}, s{sG}, 7", f"s_add_u32 s{t3_}, s{t3_}, {XIDG}", ldx])
            at(44).extend(["@wvm poll", f"v_cmp_ne_u32 vcc, s{sXcc}, v{vP}", "s_cmp_eq_u64 vcc, 0", f"s_cselect_b32 s{sPure}, 1, 0"])
            warm.append([f"s_mul_i32 s{t1_}, s{sJ}, {7*512}", f"s_lshl_b32 s{t2_}, s{sW}, 10", f"s_add_u32 s{t1_}, s{t1_}, s{t2_}", f"s_add_u32 s{t1_}, s{t1_}, {CS1}", f"v_lshrrev_b32 v{vA+3}, 1, v{vL16}",
                f"buffer_load_dwordx2 {v(CS1R,2)}, v{vA+3}, {WSR}, s{t1_} offen", f"s_cmp_eq_u32 s{sW}, 3", f"s_cselect_b32 s{t2_}, 0, 512", f"s_add_u32 s{t1_}, s{t1_}, s{t2_}",
                f"buffer_load_dwordx2 {v(CS1R+2,2)}, v{vA+3}, {WSR}, s{t1_} offen"])
        w1=[]
        for c in range(2): w1+=s.loads([W1R(c,k) for k in range(32)], vL16, pW1[c], 0, P0, f"w1{c}_", "nt" if NT else "")
        at(44).extend(["@wvm kv1_4_0","s_barrier"])
        j2=64+STAG
        at(j2).append("s_barrier")
        wo=[]; w2=[]
        for c in range(2): wo+=s.dmas(8, vL16x, pWQ[c], WOF, s16, LR+c*8192, P1, f"wo{c}_", "nt" if NT else "")
        for c in range(2): w2+=s.loads([W2R(2*k+c) for k in range(12)], vL16x, pW2[c], 0, P0, f"w2{c}_", "nt" if NT else "")
        warm.append(s.pfc(OB+6, 2*KB))
        def mix(x,y):
            o=[[] for _ in range(max(len(x),len(y)))]; weave(o,x); weave(o,y); return o
        JE=JE0 if L==0 else JE1
        pe=PJ+len(touch)
        if L==0:
            put(w1[:2*(PJ-GS-1)], GS+1, PJ); put(touch, PJ, pe); put(w1[2*(PJ-GS-1):NB0], pe, 64); put(wo+w1[NB0:]+w2, j2+1, JE)
        else:
            put(w1[:8], 4, 12); put(w1[8:16], 13, 21); put(w1[16:NA1], 30, PJ); put(touch, PJ, pe); put(w1[NA1:NB1], pe, 64); put(wo+w1[NB1:]+w2, j2+1, JE)
        if WJ==0:
            at(JE-FD).extend(s.flag(2,L,"pois"))
            at(JE).extend(s.poll_i(2,L))
            put(warm, JE+1, JE+1+len(warm))
            at(JE+10).extend(s.poll_c(2,L))
        else:
            put(warm, WJ, 64)
            at(PI-FD).extend(s.flag(2,L,"pois")); at(PI).extend(s.poll_i(2,L)); at(PI+5).extend(s.poll_c(2,L))
        e0=N-STAG
        if ATS:
            for j in (10,20,32,44,60,72,88,100,110): A[j]+=s.stamp(L,f"j{j}")
        C[e0-1]+=s.stamp(L,"a0")+s.att_fin(L,0,O[0],OB)
        C[e0+3]+=s.flag(L,0,"ost0")
        ob=s.loads([OB+4*i for i in range(8)], vL16, pQtr, L*LOFF+O_, P0, "ob", "sc1")
        C[N-2]+=s.gate(L,0)+flat(ob[:2]); A[N-1]+=flat(ob[2:4]); B[N-1]+=flat(ob[4:6]); C[N-1]+=flat(ob[6:])
        for i in range(N):
            Sa=S[i%2]
            a(ex(Sa,Sa+2)+(smf(i-1,1) if i>0 else [])+A[i]+ex(Sa+2,Sa+5)+(qk(i+1) if i+1<N else [])+B[i]+ex(Sa+5,Sa+10)+smf(i,0)+C[i]+ex(Sa+10,Sa+16))
        a(f"s_add_u32 s{t1_}, s{s16}, {LR}\nv_add_u32 v6, s{t1_}, v{vL16}")
        a(smf(N-1,1)); a(s.stamp(L,"a1"))
        a("@wvm wo1_7"); a(s.op_rd(0,6))
        a(s.att_fin(L,1,O[1],32))

    def op_rd(s, i0, i1):
        return [f"ds_read_b128 {v(T+4*(i%6),4)}, v6 offset:{(1-i//8)*8192+(i%8)*1024} ;@oa{i}" for i in range(i0,i1)]
    def x_fetch(s, L, t):
        return s.loads([SX,SX+4], vL16, pStL, L*LOFF+S1_+t*8*KB, P1, "s1_", "sc1") + s.dmas(8, vL16, pQtr, L*LOFF+X1_+t*32*KB, sW8, LP+t*32*KB, P1, f"xd{t}_", "sc1")
    def op(s, L, t):
        a=s.a; acc=ACC[t]
        Ls=a.label("opst"); obl=lambda tt: s.loads([OB+4*i for i in range(8)], vL16, pQtr, L*LOFF+O_+tt*32*KB, P0, "ob", "sc1")
        sl=s.ksplit(acc, lambda c,k:T+4*(((1-c)*8+k)%6), lambda k:OB+4*k, "ob", False,
                    pre=lambda i:[f"@wlg oa{i}"], post=lambda i:(s.op_rd(i+6,i+7) if i+6<16 else []), c0init=None,
                    chk=s.check(L,t,acc+16,obl(t)+s.op_rd(0,6),Ls))
        ini=flat([[f"v_lshlrev_b32 v{acc+2*i}, 16, v{XR[t]+i}", f"v_and_b32 v{acc+2*i+1}, 0xffff0000, v{XR[t]+i}"] for i in range(4)])+[f"v_mov_b32 v{acc+8+i}, 0" for i in range(8)]
        weave(sl, ini+s.red_addr("C" if t==0 else "R"), 0, 7)
        nx = obl(1) if t==0 else s.x_fetch(L,0)
        sl[-2]+=(s.flag(L,1,"ost1")+s.gate(L,1) if t==0 else s.flag(L,2,"xst")+s.gate(L,2))+flat(nx[:3])
        a(f"{Ls}:"); a(sl); a(s.stamp(L,f"o{t}b"))
        a(s.red_read())
        e=s.red_add(acc)+(s.op_rd(0,6) if t==0 else [])+s.emit_x(acc, t, L*LOFF+X1_, L*LOFF+S1_, acc+8)
        k=e.index(f"s_cmp_eq_u32 s{sPure}, 0")
        sl=[[x] for x in e[:k]]+[e[k:]]
        a(nx[3:5]); weave(sl, nx[5:], 2, k); a(sl); a(s.stamp(L,f"o{t}e"))

    def silu(s, L, t, c, pk):
        acc=ACC[t]; E=T+16; sc=vA+2*t; out=[]
        for h in range(2):
            b=acc+16*c+8*h
            if pk:
                out+=[f"v_pk_mul_f32 {v(E+2*i,2)}, {v(b+2*i,2)}, {v(sc,2)}" for i in range(4)]
                out+=[f"v_exp_f32 v{E+i}, v{E+i}" for i in range(8)]
                out+=[f"v_pk_add_f32 {v(E+2*i,2)}, {v(E+2*i,2)}, s[{sONE}:{sONE+1}]" for i in range(4)]
                out+=[f"v_rcp_f32 v{E+i}, v{E+i}" for i in range(8)]
                out+=[f"v_pk_mul_f32 {v(E+2*i,2)}, {v(b+2*i,2)}, {v(E+2*i,2)}" for i in range(4)]
                out+=[f"v_cvt_pk_bf16_f32 v{b+i}, v{E+2*i}, v{E+2*i+1}" for i in range(4)]
            else:
                mu=[f"v_mul_f32 v{E+i}, v{sc}, v{b+i}" for i in range(8)]; exx=[f"v_exp_f32 v{E+i}, v{E+i}" for i in range(8)]
                ad=[f"v_add_f32 v{E+i}, 1.0, v{E+i}" for i in range(8)]; rc=[f"v_rcp_f32 v{E+i}, v{E+i}" for i in range(8)]
                m2=[f"v_mul_f32 v{E+i}, v{b+i}, v{E+i}" for i in range(8)]; cv=[f"v_cvt_pk_bf16_f32 v{b+i}, v{E+2*i}, v{E+2*i+1}" for i in range(4)]
                out+=[mu[0:5],[mu[5],exx[0],exx[1]],[mu[6],exx[2],exx[3]],[mu[7],exx[4],exx[5]],[ad[0],exx[6],exx[7]],
                      [ad[1],ad[2],ad[3],rc[0]],[ad[4],rc[1],rc[2]],[ad[5],rc[3],rc[4]],[ad[6],ad[7],m2[0],rc[5]],[m2[1],rc[6],rc[7]],
                      m2[2:7],[m2[7]]+cv]
            out.append([f"s_add_u32 s{t1_}, s{sHs[c]}, {L*LOFF+t*112*KB+h*1024}"]+s.pub([f"buffer_store_dwordx4 {v(b,4)}, v{vL16}, {WSR}, s{t1_} offen {{F}} ;@hst{t}"]))
        return out
    def f1_sync(s, L, t):
        c=([],[]); Ls=s.a.label("f1sy")
        if t==0: c=s.check(L,2,SX,s.x_fetch(L,0),Ls)
        return [f"{Ls}:","@wvm s1_1"]+s.sum8(SX)+c[0]+s.stat_wr(SX,SX+1,t)+[f"@wvm xd{t}_7","@wlg rw"]+c[1]+["s_barrier"]
    def f1(s, L):
        a=s.a
        def rd(n):
            q,ks=n//32,n%32
            return [f"ds_read_b128 {v(T+4*(n%4),4)}, v{vL16} offset:{LP+(q//2)*32*KB+ks*1024} ;@xb{n}"]
        a(s.f1_sync(L,0)); a(s.stamp(L,"f1s"))
        Ls=a.label("f1st"); a(f"{Ls}:")
        a(rd(0)+rd(1)+rd(2)+["@wlg xb0", "@wvm w11_31"])
        sl=[];
        for n in range(128):
            q,ks=n//32,n%32; t,c=q//2,q%2
            p=[mf(ACC[t]+16*c, W1R(c,ks), T+4*(n%4), "0" if ks==0 else None)]
            if n+3<128: p+=rd(n+3)
            if n+1<128: p+=[f"@wlg xb{n+1}"]
            sl.append(p)
        for q in range(4):
            sl[32*q+31]+=[mf(ACC[q//2]+16*(q%2), CS1R, vBX+2-2*(q%2))]+s.stamp(L,f"f1q{q}")
        def stat(t,X):
            r=s.rstd(X,vRs[t])
            return [s.stat_rd(X,t,"st"), [], ["@wlg st"]+r[:4], r[4:8], r[8:], s.bext(X,X+1), [f"v_mul_f32 v{vA+2*t}, {f2u(-LOG2E):#x}, v{vRs[t]}", f"v_mov_b32 v{vA+2*t+1}, v{vA+2*t}"]]
        weave(sl, stat(0,SX+4), 0, 8)
        allx=[[f"s_sub_u32 s{P2}, s{pQtr}, s{sW8}", f"s_subb_u32 s{P2+1}, s{pQtr+1}, 0", f"s_mov_b32 s{t1_}, 0"]]+s.dmas(32, vL16, P2, L*LOFF+X1_, t1_, LP, P1, "z", "sc1")
        c=s.check(L,2,ACC[0],allx,Ls,allcu=True,idn=20+L)
        sl[34]+=c[0]; sl[35]+=c[1]
        w2=[]
        for c in range(2): w2+=s.loads([W2R(2*k+c) for k in range(12,16)], vL16x, pW2[c], 12*KB, P0, f"w2b{c}_", "nt" if NT else "")
        sl[3]+=s.flag(L,3,"xst")
        weave(sl, w2[:4], 4, 12)
        sl[12]+=s.poll_i(L,3)
        weave(sl, w2[4:], 13, 22)
        sl[23]+=s.poll_c(L,3)
        weave(sl, s.x_fetch(L,1), 24, 44)
        wq=[]
        if L==0:
            for c in range(2): wq+=s.dmas(8, vL16x, pWQ[c], WQF, s16, LR+c*8192, P1, f"wq{c}_", "nt" if NT else "")
            weave(sl, wq[:10], 44, 66)
        weave(sl, s.silu(L,0,0,False), 36, 60)
        sl[60]+=s.f1_sync(L,1)
        weave(sl, stat(1,SX+4)[:5], 61, 65)
        sl[65]+=flat(stat(1,SX+4)[5:])
        weave(sl, s.silu(L,0,1,False), 66, 92)
        wc=[s.loads([W2R(32+2*kk+c) for kk in range(12)], vL16x, pW2[c], 16*KB, P0+4*c, f"w2c{c}_", "nt" if NT else "") for c in range(2)]
        weave(sl, wq[10:]+[wc[i%2][i//2] for i in range(24)], 66, 128 if L==0 else 114)
        weave(sl, s.silu(L,1,0,False), 98, 124)
        s.hl=[s.loads([HWR(28*t+k) for k in range(28)], vL16, pHl, L*LOFF+t*112*KB, P1, f"h{t}_", "sc1") for t in range(2)]
        s.h0=0 if L==0 else 6
        if L==1:
            sl[114]+=s.gate(L,4); weave(sl, s.hl[0][:6], 115, 128)
        a(sl)
    def f2(s, L):
        a=s.a
        hl=s.hl
        if L==0: a(s.gate(L,4))
        a(hl[0][s.h0:s.h0+2])
        sl=[[x] if isinstance(x,str) else x for x in s.silu(L,1,1,True)]
        weave(sl, hl[0][s.h0+2:s.h0+9])
        a(sl); a(s.stamp(L,"sil"))
        a(hl[0][s.h0+9:16])
        for t in range(2):
            acc=ACC[t]; sl=[]
            order=[(ks,c) for ks in range(22) for c in (1,0)]+[(ks,1) for ks in range(22,28)]+[(ks,0) for ks in range(22,28)]
            for (ks,c) in order:
                p=[]
                if c==1:
                    w=[f"h{t}_{ks}"]
                    if t==0: w+= [f"w2{cc}_{ks}" if ks<12 else (f"w2b{cc}_{ks-12}" if ks<16 else f"w2c{cc}_{ks-16}") for cc in range(2)]
                    p=[f"@wvm {' '.join(w)}"]
                p.append(mf(acc+16*c, W2R(2*ks+c), HWR(28*t+ks), "0" if ks==0 else None))
                if c==0 and ks+16<28: p+=hl[t][ks+16]
                sl.append(p)
            Ls=a.label("f2st")
            if t==0:
                sl[4]+=s.flag(L,4,"hst0")
                if L==0:
                    cp=[[f"s_add_u32 s{t1_}, s{s16}, {LR}", f"v_add_u32 v{vA}, s{t1_}, v{vL16}", "@wvm wq1_7"]]+[f"ds_read_b128 {R(WQR(c,k))}, v{vA} offset:{c*8192+k*1024} ;@wqr" for c in range(2) for k in range(8)]
                    weave(sl, cp, 6, 40)
                sl[24]+=s.gate(L,5)
                for k in range(10): sl[25+2*k]+=hl[1][k]
                sl[34]+=s.flag(L,5,"hst1")
            elif L==0:
                sl[24]+=s.wkv_loads()+s.gate(L,6)
                weave(sl, s.qkv_loads(1,0), 25, 45)
                sl[34]+=s.flag(L,6,"xst")
            sl[48]+=flat(s.red_addr("C" if t==0 else "P"))
            w=s.red_write(acc)
            c=s.check(L,4+t,acc+16,hl[t][:16],Ls)
            sl[52]+=c[0]; sl[53]+=c[1]+[w[2]]; sl[54]+=[w[3]]; sl[55]+=w[4:6]
            a(f"{Ls}:"); a(sl)
            if t==0: a(hl[1][10:12])
            a(w[:2]); a("@wlg rw\ns_barrier"); a(s.stamp(L,f"f2{t}b")); a(s.red_read())
            if t==0: a(hl[1][12:16])
            for i in range(4): a(f"v_lshlrev_b32 v{acc+8+2*i}, 16, v{XR[t]+i}\nv_and_b32 v{acc+8+2*i+1}, 0xffff0000, v{XR[t]+i}")
            a(s.red_add(acc))
            for i in range(8): a(f"v_fma_f32 v{acc+i}, v{vRs[t]}, v{acc+i}, v{acc+8+i}")
            if L==0:
                a(s.emit_x(acc, t, LOFF+XA_, LOFF+SA_, acc+8))
                if t==1: a(s.cs_loads())
            else:
                x=XR[t]
                for i in range(4): a(f"v_cvt_pk_bf16_f32 v{x+i}, v{acc+2*i}, v{acc+2*i+1}")
                a(f"""v_and_b32 v{acc}, 31, v0
                v_lshlrev_b32 v{acc}, 10, v{acc}
                v_lshrrev_b32 v{acc+1}, 5, v0
                v_lshl_add_u32 v{acc}, v{acc+1}, 4, v{acc}
                v_permlane32_swap_b32 v{x}, v{x+2}
                v_permlane32_swap_b32 v{x+1}, v{x+3}
                s_lshl_b32 s{t1_}, s{sJ}, 2
                s_add_u32 s{t1_}, s{t1_}, s{sW}
                s_lshl_b32 s{t1_}, s{t1_}, 5
                s_lshl_b32 s{t2_}, s{sG}, 16
                s_add_u32 s{t1_}, s{t1_}, s{t2_}
                s_add_u32 s{t1_}, s{t1_}, {t*32*KB}
                buffer_store_dwordx4 {v(x,4)}, v{acc}, s[8:11], s{t1_} offen""")
            a(s.stamp(L,f"f2{t}e"))

    def pfc(s, r, skip):
        if not PFC: return []
        Lp=s.a.label("pc")
        return [f"s_getpc_b64 s[{P2}:{P2+1}]", f"{Lp}:", f"s_lshr_b32 s{t1_}, s2, 3", f"s_lshl_b32 s{t1_}, s{t1_}, 2", f"s_add_u32 s{t1_}, s{t1_}, s{sW}", f"s_lshl_b32 s{t1_}, s{t1_}, 8", f"s_add_u32 s{t1_}, s{t1_}, {skip}",
                f"s_min_u32 s{t1_}, s{t1_}, {s.a.endl}-{Lp}-256", f"s_add_u32 s{P2}, s{P2}, s{t1_}", f"s_addc_u32 s{P2+1}, s{P2+1}, 0", f"global_load_dword v{r}, v{vL4}, s[{P2}:{P2+1}]"]
    def stats0(s, t):
        sq=SQ[t]; o=[]
        for i in range(32):
            if i%4==0: o+=[f"@wlg xl{t}_{i//4}"]
            o+=[f"v_dot2_f32_bf16 v{sq}, v{BQ[t]+i}, v{vOnes}, {'0' if i==0 else v(sq)}", f"v_dot2_f32_bf16 v{sq+1}, v{BQ[t]+i}, v{BQ[t]+i}, {'0' if i==0 else v(sq+1)}"]
        return o+[f"v_permlane32_swap_b32 v{sq}, v{sq+1}", f"v_add_f32 v{sq}, v{sq}, v{sq+1}"]
    def pro1(s, GR):
        a=s.a; pX,pQ,pK,pV,pD=42,48,50,52,66; X=144; Y=148
        Lk=a.label("nokv"); Ln=a.label("nn"); Lm=a.label("nm")
        if PFC:
            a(f"""s_getpc_b64 s[56:57]
            Lpc0:
            s_mov_b32 s58, {a.endl}-Lpc0
            s_mov_b32 s59, 0x20000
            s_lshl_b32 s60, s2, 9
            s_and_b32 s60, s60, 0x1f000
            v_lshlrev_b32 v1, 4, v0
            buffer_load_dwordx4 {v(OB,4)}, v1, s[56:59], s60 offen""")
        a(f"""s_load_dwordx2 s[{pX}:{pX+1}], s[0:1], 0
        s_load_dwordx4 s[{pQ}:{pQ+3}], s[0:1], 8
        s_load_dwordx2 s[{pV}:{pV+1}], s[0:1], 24
        s_load_dwordx2 s[{pD}:{pD+1}], s[0:1], 72
        s_load_dwordx2 s[4:5], s[0:1], 80
        s_load_dwordx2 s[8:9], s[0:1], 64
        s_cmp_lt_u32 s2, 80
        s_cselect_b32 s60, 32, 56
        s_cmp_ge_u32 s2, 136
        s_cselect_b32 s60, 48, s60
        s_load_dwordx2 s[{pJ}:{pJ+1}], s[0:1], s60
        s_memrealtime s[62:63]
        v_lshrrev_b32 v1, 6, v0
        v_readfirstlane_b32 s{sW}, v1
        v_and_b32 v0, 63, v0
        s_and_b32 s{sG}, s2, 31
        s_lshr_b32 s{sJ}, s2, 5
        v_lshlrev_b32 v{vL16}, 4, v0
        v_lshrrev_b32 v{Y}, 4, v0
        v_xor_b32 v{X}, v0, v{Y}
        v_and_b32 v{X}, 15, v{X}
        v_lshlrev_b32 v{X}, 4, v{X}
        v_lshl_add_u32 v{X}, v{Y}, 10, v{X}""")
        for q in range(1,4): a(f"v_xor_b32 v{X+q}, {q<<6}, v{X}\nv_add_u32 v{X+q}, {q*3072}, v{X+q}")
        a(f"""v_lshrrev_b32 v{Y+1}, 3, v0
        v_and_b32 v{Y}, 3, v{Y+1}
        v_lshlrev_b32 v{Y}, 1, v{Y}
        v_xor_b32 v{Y}, v0, v{Y}
        v_and_b32 v{Y}, 7, v{Y}
        v_lshlrev_b32 v{Y}, 4, v{Y}
        v_lshl_add_u32 v{Y}, v{Y+1}, 10, v{Y}""")
        for q in range(1,4): a(f"v_add_u32 v{Y+q}, {q*7168}, v{Y}")
        a(f"""s_lshl_b32 s{sW8}, s{sW}, 13
        s_lshl_b32 s{s16}, s{sW}, 14
        s_lshl_b32 s{sKVd}, s{sW}, 12
        s_lshl_b32 s60, s{sG}, 16
        s_lshl_b32 s61, s{sW}, 8
        s_add_u32 s61, s61, s60
        s_lshl_b32 s54, s{sW}, 17
        s_lshl_b32 s55, s{sJ}, 7
        s_add_u32 s54, s54, s55
        s_add_u32 s55, s{sW8}, {KVL}
        s_waitcnt lgkmcnt(0)
        s_or_b32 s56, s2, s{sW}
        s_cmp_lg_u32 s56, 0
        s_cbranch_scc1 {Ln}
        @optb
        s_lshl_b32 s62, s62, 4
        s_bitset1_b32 s62, 31
        v_mov_b32 v{vP}, s62
        v_mov_b32 v{vP+1}, 0
        s_mov_b64 exec, 1
        global_store_dword v{vP+1}, v{vP}, s[{pD}:{pD+1}] sc1
        s_mov_b64 exec, -1
        @opte
        {Ln}:
        s_mov_b32 s6, {WS_SIZE}
        s_mov_b32 s7, 0x20000""")
        Lt=a.label("nt")
        a(f"""s_cmp_ge_u32 s{sJ}, 2
        s_cbranch_scc1 {Lt}
        @optb
        s_mul_i32 s44, s{sJ}, {KVH}
        s_mul_i32 s45, s{sG}, {KVT}
        s_add_u32 s44, s44, s45
        s_add_u32 s44, s44, {KVI}
        s_lshl_b32 s45, s{sJ}, 13
        s_lshl_b32 s46, s{sG}, 8
        s_add_u32 s45, s45, s46
        s_add_u32 s45, s45, {KVF}
        s_cmp_eq_u32 s{sW}, 1
        s_cselect_b32 s44, s45, s44
        s_cselect_b32 s45, 2, 5
        v_lshlrev_b32 v{T+2}, s45, v0
        s_cmp_ge_u32 s{sW}, 2
        s_cbranch_scc1 {Lt}
        buffer_load_dword v{T+3}, v{T+2}, {WSR}, s44 offen sc1
        @opte
        {Lt}:""")
        a(f"""s_lshl_b32 s56, s{sJ}, 13
        s_add_u32 s56, s56, s60
        s_lshr_b32 s57, s{sG}, 3
        s_lshl_b32 s57, s57, 1
        s_and_b32 s58, s{sW}, 1
        s_add_u32 s57, s57, s58
        s_lshl_b32 s57, s57, 16
        s_lshl_b32 s58, s{sJ}, 7
        s_add_u32 s57, s57, s58
        s_cmp_lt_u32 s{sW}, 2
        s_cselect_b32 s56, s57, s56
        s_cselect_b32 s57, 10, 7
        s_cselect_b64 s[{P0}:{P0+1}], s[{pQ}:{pQ+1}], s[{pX}:{pX+1}]
        s_bitcmp1_b32 s2, 4
        s_cselect_b64 s[58:59], s[{pV}:{pV+1}], s[{pK}:{pK+1}]
        s_and_b32 s62, s2, 8
        s_lshl_b32 s62, s62, 10
        s_cmp_eq_u32 s{sW}, 3
        s_cselect_b32 s56, s62, s56
        s_cselect_b64 s[{P0}:{P0+1}], s[58:59], s[{P0}:{P0+1}]
        v_lshlrev_b32 v{T}, s57, v0
        v_add_u32 v{T}, s56, v{T}
        global_load_dword v{T+1}, v{T}, s[{P0}:{P0+1}]
        s_add_u32 s{P2}, s{pX}, s61
        s_addc_u32 s{P2+1}, s{pX+1}, 0
        s_add_u32 s{pQ2}, s{pQ}, s54
        s_addc_u32 s{pQ2+1}, s{pQ+1}, 0""")
        def xd(t):
            o=[]
            for i in range(8):
                o.append(([f"s_add_u32 m0, s{s16}, {t*8192+i*1024}"]+s.base(P0,P2,t*32768+i*4096) if i%4==0 else [])+[f"global_load_lds_dwordx4 v{X+i%4}, s[{P0}:{P0+1}] offset:{(i%4)*1024} ;@x{t}_{i}"])
            return o
        s.xd0=xd(0); s.xd1=xd(1); a(s.xd0)
        s.wqd=[([f"s_add_u32 m0, s{s16}, {WQL+i*1024}"]+s.base(P0,pQ2,i*8192) if i%4==0 else [])+[f"global_load_lds_dwordx4 v{Y+i%4}, s[{P0}:{P0+1}] offset:{(i%4)*1024} ;@wq{i}"] for i in range(16)]
        a(f"""
        s_mov_b32 s6, {WS_SIZE}
        s_mov_b32 s7, 0x20000
        v_lshlrev_b32 v{vL4}, 2, v0
        s_and_b32 s60, s{sW}, 1
        s_lshl_b32 s{sKVl}, s60, 10
        s_lshl_b32 s60, s60, 8
        v_xor_b32 v{vL16x}, s60, v{vL16}
        """)
    def setup2(s):
        a=s.a; GR=3
        a(f"""s_mov_b32 s10, {2*MB}
        s_mov_b32 s11, 0x20000
        s_lshl_b32 s{GR}, s{sG}, 20
        s_add_u32 s{GR}, s{GR}, {GBASE}
        s_add_u32 s{pQtr}, s{sW8}, s{GR}
        s_lshl_b32 s{pStL}, s{sW}, 11
        s_add_u32 s{pStL}, s{pStL}, s{GR}
        s_lshr_b32 s63, s{sW}, 1
        s_lshl_b32 s62, s{sJ}, 1
        s_add_u32 s63, s63, s62
        s_lshl_b32 s{pWQ[0]}, s63, 15
        s_add_u32 s{pWQ[0]}, s{pWQ[0]}, s{sW8}
        s_xor_b32 s{pWQ[1]}, s{pWQ[0]}, {32*KB}""")
        for p in (pQtr,pStL,pWQ[0],pWQ[1]): a(f"s_add_u32 s{p}, s4, s{p}\ns_addc_u32 s{p+1}, s5, 0")
        a(f"""s_lshl_b32 s60, s{sJ}, 2
        s_add_u32 s60, s60, s{sW}               ; 4j+w
        s_lshl_b32 s{sOwn}, s60, 10
        s_add_u32 s{sOwn}, s{sOwn}, s{GR}
        s_add_u32 s{sFlS}, s60, s{GR}
        s_add_u32 s{sFlS}, s{sFlS}, {FL_}
        s_lshl_b32 s{sFlP}, s{sW}, 3
        s_add_u32 s{sFlP}, s{sFlP}, s{GR}
        s_add_u32 s{sFlP}, s{sFlP}, {FL_}
        s_lshl_b32 s{sStS}, s{sJ}, 10
        s_lshl_b32 s60, s{sW}, 2
        s_add_u32 s{sStS}, s{sStS}, s60
        s_add_u32 s{sStS}, s{sStS}, s{GR}
        s_mul_i32 s60, s{sJ}, 7
        s_lshl_b32 s61, s{sW}, 1
        s_add_u32 s60, s60, s61                 ; F1 cb0 = 7j+2w
        s_lshl_b32 s{sHs[0]}, s60, 11
        s_add_u32 s{sHs[0]}, s{sHs[0]}, s{GR}
        s_add_u32 s{sHs[0]}, s{sHs[0]}, {H_}
        s_add_u32 s{sHs[1]}, s{sHs[0]}, 2048
        s_lshl_b32 s{pW1[0]}, s60, 15
        s_add_u32 s{pW1[0]}, s{pW1[0]}, {W1F}
        s_add_u32 s{pW1[1]}, s{pW1[0]}, {32*KB}
        s_cmp_eq_u32 s{sW}, 3
        s_cselect_b32 s{sHs[1]}, s{sHs[0]}, s{sHs[1]}
        s_cselect_b32 s{pW1[1]}, s{pW1[0]}, s{pW1[1]}
        s_mul_i32 s{pHl}, s{sW}, {28*KB}
        s_mul_i32 s{pW2[0]}, s63, {112*KB}
        s_xor_b32 s63, s63, 1
        s_mul_i32 s{pW2[1]}, s63, {112*KB}
        s_add_u32 s60, s{pHl}, {W2F}
        s_add_u32 s{pW2[0]}, s{pW2[0]}, s60
        s_add_u32 s{pW2[1]}, s{pW2[1]}, s60
        s_add_u32 s{pHl}, s{pHl}, s{GR}
        s_add_u32 s{pHl}, s{pHl}, {H_}
        s_lshl_b32 s{sKVd}, s{sW}, 12
        s_add_u32 s{pKVd}, s{sKVd}, {KVI}
        s_add_u32 s{pKVl}, s{sKVl}, {KVI}
""")
        for p in (pHl,pW2[0],pW2[1],pW1[0],pW1[1],pKVd,pKVl): a(f"s_add_u32 s{p}, s4, s{p}\ns_addc_u32 s{p+1}, s5, 0")
        a(f"s_mov_b32 s{sLast}, 0")
    def tra(s, r, sh):
        return f"""v_lshrrev_b32 v{r}, 5, v0
        v_bfe_u32 v{r+2}, v0, 2, 2
        v_lshl_add_u32 v{r}, v{r}, 2, v{r+2}
        v_lshlrev_b32 v{r}, {sh}, v{r}
        v_and_b32 v{r+1}, 3, v0
        v_lshl_add_u32 v{r}, v{r+1}, 3, v{r}
        v_bfe_u32 v{r+1}, v0, 4, 1"""
    def hilo(s, r, d):
        return [f"v_cvt_pk_bf16_f32 v{r+1}, v{r}, v{r}", f"v_and_b32 v{r+1}, 0xffff0000, v{r+1}", f"v_sub_f32 v{r+1}, v{r}, v{r+1}", f"v_cvt_pk_bf16_f32 v{r}, v{r}, v{r+1}",
                f"v_cndmask_b32 v{d}, 0, v{r}, vcc", f"v_cndmask_b32 v{d+1}, 0, v{r}, vcc"]
    def sw(s,r): return [f"v_permlane32_swap_b32 v{r}, v{r+2}", f"v_permlane32_swap_b32 v{r+1}, v{r+3}"]
    def xr(s,t): return [f"ds_read_b64 {v(BQ[t]+4*k+2*h,2)}, v{(152,216)[h]+k} offset:{t*8192} ;@xl{t}_{k}" for k in range(8) for h in range(2)]
    def pro2(s, GR):
        a=s.a; X=152; Y=192; ON=T+16; Z=T+20; U=214
        Lk=a.label("nokv"); Lm=a.label("m")
        a(f"""v_and_b32 v{X}, 31, v0
        v_lshrrev_b32 v{X+1}, 5, v0
        v_lshlrev_b32 v{U}, 10, v{X}
        v_lshl_add_u32 v{U}, v{X+1}, 4, v{U}
        s_lshl_b32 s60, s{sJ}, 7
        s_mul_i32 s61, s{sW}, {32-256}
        s_add_u32 s60, s60, s61
        s_add_u32 s60, s60, 1024
        v_add_u32 v{U}, s60, v{U}
        v_and_b32 v{X+2}, 15, v{X}
        v_lshl_add_u32 v{X+1}, v{X+2}, 1, v{X+1}
        v_lshlrev_b32 v{X+1}, 3, v{X+1}
        v_lshl_add_u32 v{X}, v{X}, 8, v{X+1}
        v_add_u32 v{X}, s{s16}, v{X}""")
        for k in range(1,8): a(f"v_xor_b32 v{X+k}, {k<<5}, v{X}")
        for k in range(8): a(f"v_xor_b32 v{216+k}, {(k<<5)+16}, v{X}")
        a(s.tra(Y,7))
        a(f"""v_xor_b32 v{Y+3}, s{sW}, v{Y+1}
        v_xor_b32 v{Y+3}, v{Y+3}, v{Y+2}
        v_lshl_add_u32 v{Y+3}, v{Y+3}, 5, v{Y}
        s_add_u32 s60, s{s16}, {WQL}
        v_add_u32 v{Y+3}, s60, v{Y+3}
        v_xor_b32 v{Y+4}, 64, v{Y+3}
        v_and_b32 v{Y+7}, 124, v{vL4}
        s_lshl_b32 s61, s{sW}, 6
        v_xor_b32 v{Y+5}, s61, v{Y+7}
        v_add_u32 v{Y+5}, {WQL}, v{Y+5}
        v_xor_b32 v{Y+6}, 128, v{Y+5}
        v_add_u32 v{Y+7}, {KVL}, v{Y+7}
        v_add_u32 v{Y}, s{s16}, v{Y+5}
        v_add_u32 v{Y+1}, s{s16}, v{Y+6}
        s_lshl_b32 s61, s{sW}, 7
        v_add_u32 v{Y+2}, s61, v{Y+7}
        s_add_u32 s61, s{sW8}, {KVL}""")
        for i in range(4): a(f"v_mov_b32 v{ON+i}, v{vOnes}")
        a(s.tra(Z,5)); a(f"v_lshl_add_u32 v{Z}, v{Z+1}, 12, v{Z}\nv_add_u32 v{Z}, s61, v{Z}")
        a(f"""s_cmp_lt_u32 s2, 80
        s_cselect_b32 s60, 64, 80
        s_sub_u32 s60, s2, s60
        s_lshl_b32 s60, s60, 15
        s_lshr_b32 s61, s{sW}, 1
        s_lshl_b32 s61, s61, 14
        s_add_u32 s60, s60, s61
        s_lshr_b32 s61, s{sKVl}, 1
        s_add_u32 s60, s60, s61
        s_sub_u32 s61, s2, 136
        s_lshl_b32 s61, s61, 6
        s_mul_i32 s62, s{sW}, {128*3584}
        s_add_u32 s61, s61, s62
        s_cmp_ge_u32 s2, 136
        s_cselect_b32 s60, s61, s60
        s_cselect_b32 s3, {16*3584}, 64
        s_movk_i32 s62, 1024
        s_cmovk_i32 s62, 3584
        s_sub_u32 s61, s2, 64
        s_cmp_ge_u32 s61, 128
        s_cmov_b32 s60, 0
        s_cmov_b32 s3, 0
        s_cmov_b32 s62, 0
        v_lshrrev_b32 v{U+1}, 2, v0
        v_mul_lo_u32 v{U+1}, v{U+1}, s62
        v_and_b32 v{T}, 48, v{vL16}
        v_add_u32 v{U+1}, v{U+1}, v{T}
        s_add_u32 s{pJ}, s{pJ}, s60
        s_addc_u32 s{pJ+1}, s{pJ+1}, 0
        v_mov_b32 v{vP+1}, 0
        global_load_dword v{vP}, v{vP+1}, s[66:67] sc1 ;@non""")
        a(s.stamp(0,"set"))
        st=lambda: [[x] for x in ["@wvm x0_7"]+s.xr(0)+s.stats0(0)]
        a(f"s_cmp_ge_u32 s{sJ}, 2\ns_cbranch_scc1 {Lk}\n@optb")
        for u in range(2):
            a(f"s_add_u32 m0, s{sW8}, {KVL+u*4096}\ns_add_u32 s{P0}, s{50+2*u}, s{sKVd}\ns_addc_u32 s{P0+1}, s{51+2*u}, 0")
            for i in range(4): a(f"global_load_lds_dwordx4 v{vL16}, s[{P0}:{P0+1}] offset:{i*1024} ;@wkd")
        o=st()+[["@wvm wkd"]]
        o+=[[f"ds_read_b64_tr_b16 {R(WKR(k)+2*h,2)}, v{Z} offset:{k*512+h*256} ;@wk{k}"] for k in range(8) for h in range(2)]
        weave(o, s.wqd[:8], 17)
        for k in range(8): o+=[[f"@wlg wk{k}", mf(KACC, ON, WKR(k), "0" if k==0 else None)]+(s.wqd[8+k//2] if k%2 else [])]
        a(o); a(f"s_barrier\nds_write_b32 v{Y+2}, v{KACC} ;@cw"); a(s.wqd[12:14]); a("@wlg cw\ns_barrier")
        for k in range(4): a(f"ds_read_b32 v{64+k}, v{Y+7} offset:{k*128} ;@cr")
        a(s.wqd[14:])
        a(f"v_cmp_gt_u32 vcc, 32, v0\n@wlg cr\nv_add_f32 v64, v64, v65\nv_add_f32 v66, v66, v67\nv_add_f32 v64, v64, v66"); a(s.hilo(64,CSK))
        a(f"s_branch {Lm}\n@opte\n{Lk}:"); a(s.wqd[:NW0])
        o=st(); weave(o, s.wqd[NW0:], 17); a(o)
        Lw=a.label("nw"); Lr=a.label("nr")
        a(f"""{Lm}:
        s_waitcnt lgkmcnt(0)
        s_mov_b32 s0, 0
        s_mov_b32 s{sPure}, 0
        s_mov_b32 s{sBud}, 100000""")
        a(["@wvm non", f"v_readfirstlane_b32 s{sNon}, v{vP}", f"s_cmp_lg_u32 s{sNon}, 0", f"s_cbranch_scc0 {Lr}", f"{Lw}:", f"s_or_b32 s{sXcc}, s{sXcc}, s{sNon}"])
        s.ool+=[f"{Lr}:", f"s_sub_u32 s{sBud}, s{sBud}, 1", f"s_cmp_lt_i32 s{sBud}, 0", f"s_cbranch_scc1 {Lw}", f"global_load_dword v{vP}, v{vP+1}, s[66:67] sc1", "s_waitcnt vmcnt(0)",
                f"v_readfirstlane_b32 s{sNon}, v{vP}", f"s_cmp_lg_u32 s{sNon}, 0", f"s_cbranch_scc1 {Lw}", f"s_branch {Lr}"]
        a(s.stamp(0,"st0"))
    def pro3(s, kf):
        a=s.a; pD=66; Y=192; ON=T+16; acc=QACC[0]; Lw=a.label("nw"); Lr=a.label("nr"); o=[]
        o+=s.stamp(0,"kvb"); U=214
        ld=s.xd1+[[f"global_load_dwordx4 {v(XR[0],4)}, v{U}, s[{P2}:{P2+1}] offset:-1024"], [f"v_add_u32 v{U}, 32768, v{U}", f"global_load_dwordx4 {v(XR[1],4)}, v{U}, s[{P2}:{P2+1}] offset:-1024 ;@xr"]]
        ld+=[[f"s_add_u32 m0, s{s16}, {WQL+1024+i*1024}", f"global_load_lds_dwordx4 v{U+1}, s[{pJ}:{pJ+1}]", f"s_add_u32 s{pJ}, s{pJ}, s3", f"s_addc_u32 s{pJ+1}, s{pJ+1}, 0"] for i in range(8)]
        for k in range(9):
            if k<8:
                o+=[f"@wvm wq{2*k+1}"]+[f"ds_read_b64_tr_b16 {R(WQR(c,k)+2*h,2)}, v{Y+3+c} offset:{k*2048+h*1024} ;@wt{k}" for c in range(2) for h in range(2)]
            if k>0:
                o+=[f"@wlg wt{k-1}"]+[mf(OB+16*c, ON, WQR(c,k-1), "0" if k==1 else None) for c in range(2)]+[mf(acc+16*c, WQR(c,k-1), BQ[0]+4*(k-1), "0" if k==1 else None) for c in range(2)]
            if k==KFK: o+=[kf.replace("vmcnt(0)",f"vmcnt({2*k})")]
            o+=ld[2*k]+ld[2*k+1]
        o+=s.stamp(0,"wq")
        o+=[f"s_mov_b32 s{sONE}, 1.0", f"s_mov_b32 s{sONE+1}, 1.0"]
        o+=[f"ds_write_b32 v{Y+c}, v{OB+16*c} ;@cw" for c in range(2)]+["@wvm xr"]+s.xr(1)+["@wlg cw", "s_barrier"]+s.stamp(0,"bB")
        o+=[f"ds_read_b32 v{OB+4*i+k}, v{Y+5+i} offset:{k*16384} ;@cr{i}" for i in range(2) for k in range(4)]
        o+=s.sw(XR[0])+s.sw(XR[1])+["v_cmp_gt_u32 vcc, 32, v0"]
        for i in range(2):
            r=OB+4*i
            o+=[f"@wlg cr{i}", f"v_add_f32 v{r}, v{r}, v{r+1}", f"v_add_f32 v{r+2}, v{r+2}, v{r+3}", f"v_add_f32 v{r}, v{r}, v{r+2}"]+s.hilo(r,CSQR+2*i)
        w=s.red_write(acc)
        o+=[mf(acc+16,CSQR,vBX), mf(acc,CSQR,vBX+2)]+s.stamp(0,"ext")+w[2:]+w[:2]+s.stamp(0,"rw")+s.stats0(1)+["@wlg rw","s_barrier"]
        return o
    def job1(s):
        a=s.a; Lj=a.label("nj"); ON=148; Z=152
        o=[f"""s_sub_u32 s60, s2, 64
        s_cmp_ge_u32 s60, 128
        s_cbranch_scc1 {Lj}
        @optb
        {s.tra(Z,6)}
        v_lshl_add_u32 v{Z}, v{Z+1}, 5, v{Z}
        s_add_u32 s60, s{s16}, {WQL}
        v_add_u32 v{Z}, s60, v{Z}
        s_waitcnt vmcnt(1)"""]+[f"ds_read_b64_tr_b16 {R(WKR(k)+2*h,2)}, v{Z} offset:{1024+k*1024+h*512}" for k in range(8) for h in range(2)]
        o+=["s_waitcnt lgkmcnt(0)", "s_cmp_lt_u32 s2, 136", f"s_cbranch_scc1 {Lj}"]+[f"v_mov_b32 v{ON+i}, v{vOnes}" for i in range(4)]
        o+=[mf(KACC, ON, WKR(k), "0" if k==0 else None) for k in range(8)]
        o+=[f"v_add_u32 v{Z}, s60, v{vL4}", f"v_add_u32 v{Z+1}, {WQL}, v{vL4}", f"ds_write_b32 v{Z}, v{KACC}", "s_waitcnt lgkmcnt(0)", "s_barrier"]
        o+=[f"ds_read_b32 v{Z+2+k}, v{Z+1} offset:{k*16384}" for k in range(4)]+["v_cmp_gt_u32 vcc, 32, v0", "s_waitcnt lgkmcnt(0)",
            f"v_add_f32 v{Z+2}, v{Z+2}, v{Z+3}", f"v_add_f32 v{Z+4}, v{Z+4}, v{Z+5}", f"v_add_f32 v{Z+2}, v{Z+2}, v{Z+4}"]+s.hilo(Z+2,CSK)
        return o+["@opte", f"{Lj}:", "s_waitcnt vmcnt(1)", "s_barrier"]
    def job2(s):
        a=s.a; Lj=a.label("nj"); Lg=a.label("ng"); Lz=a.label("nz"); L1=a.label("j1"); ON=148; T=144; o=[]
        cs=[y.replace("buffer_load","buffer_store").replace(f"v{vA+3},",f"v{T},").split(";@")[0]+(" sc1" if "_load" in y else "") for y in flat(s.cs_loads())]
        Lp=a.label("np")
        o+=[f"""s_cmp_ge_u32 s{sJ}, 2
        s_cbranch_scc1 {Lp}
        @optb
        s_mul_i32 s60, s{sJ}, {KVH}
        s_mul_i32 s61, s{sG}, {KVT}
        s_add_u32 s60, s60, s61
        s_lshl_b32 s61, s{sW}, 10
        s_add_u32 s60, s60, s61
        s_add_u32 s60, s60, {KVI+2*KVH}
        s_lshl_b32 s61, s{sJ}, 13
        s_lshl_b32 s62, s{sG}, 8
        s_add_u32 s61, s61, s62
        s_add_u32 s61, s61, {KVF+2*8192}
        s_cmp_eq_u32 s{sW}, 2
        s_cselect_b64 exec, 15, -1
        s_cmp_eq_u32 s{sW}, 3
        s_cselect_b32 s60, s61, s60
        s_cselect_b64 exec, 0xffff, exec
        buffer_store_dwordx4 {v(OB,4)}, v{vL16}, {WSR}, s60 offen sc1
        s_mov_b64 exec, -1
        @opte
        {Lp}:"""]
        o+=[f"s_cmp_gt_u32 s{sG}, 8", f"s_cbranch_scc1 {Lg}", "@optb", f"s_lshl_b32 s60, s{sG}, 10", f"v_add_u32 v{T}, s60, v{vL16x}", f"s_add_u32 s60, s60, s{sW8}", f"s_add_u32 s60, s60, {WKVF}"]
        for k in range(8):
            Ln=a.label("nk")
            o+=[f"s_cmp_lg_u32 s{sG}, {k}", f"s_cbranch_scc1 {Ln}"]+[f"global_store_dwordx4 v{T}, {R(WQR(c,k))}, s[{pWQ[c]}:{pWQ[c]+1}] sc1" for c in range(2)]
            o+=[f"s_cmp_lg_u32 s{sJ}, 0", f"s_cbranch_scc1 {Lg}", f"buffer_store_dwordx4 {R(WKR(k))}, v{vL16}, {WSR}, s60 offen sc1", f"s_branch {Lg}", f"{Ln}:"]
        assert WQF==0
        o+=cs[:-3]+[f"s_cmp_lg_u32 s{sJ}, 0", f"s_cbranch_scc1 {Lg}"]+cs[-3:]+["@opte", f"{Lg}:", f"s_cmp_lg_u32 s{sJ}, 6", f"s_cbranch_scc1 {Lz}", "@optb",
            f"s_lshl_b32 s61, s{sW}, 10", f"s_and_b32 s60, s{sFlP}, 0xffffff00", "s_add_u32 s61, s61, s60"]+[f"v_mov_b32 v{ON+i}, 0" for i in range(4)]
        o+=[f"""buffer_store_dwordx4 {v(ON,4)}, v{vL16}, {WSR}, s61 offen sc1
        @opte
        {Lz}:
        @optb
        s_movk_i32 s62, 1024
        s_sub_u32 s60, s2, 64
        s_cmp_ge_u32 s60, 128
        s_cbranch_scc1 {Lj}
        s_lshl_b32 s61, s2, 15
        s_add_u32 s61, s61, s{sW8}
        s_add_u32 s61, s61, {(W1F-136*32*KB)&0xffffffff:#x}
        s_lshl_b32 s63, s2, 9
        s_add_u32 s63, s63, {CS1-136*512}
        s_cmp_ge_u32 s2, 136
        s_cbranch_scc1 {L1}
        s_mov_b32 s62, {112*KB}
        s_mov_b32 s61, {W2F-80*2048}
        s_cmp_lt_u32 s2, 80
        s_cmov_b32 s62, {32*KB}
        s_cmov_b32 s61, {WOF-64*2048}
        s_lshl_b32 s63, s2, 11
        s_add_u32 s61, s61, s63
        s_lshr_b32 s63, s{sW}, 1
        s_lshl_b32 s63, s63, 10
        s_add_u32 s61, s61, s63
        s_and_b32 s63, s{sW}, 1
        s_lshl_b32 s63, s63, 3
        s_mul_i32 s63, s63, s62
        s_add_u32 s61, s61, s63
        {L1}:
        v_lshrrev_b32 v{T}, 1, v{vL16}"""]
        for k in range(8): o+=[f"buffer_store_dwordx4 {R(WKR(k))}, v{vL16}, {WSR}, s61 offen sc1", "s_add_u32 s61, s61, s62"]
        o+=["s_cmp_eq_u32 s62, 1024", f"s_cbranch_scc0 {Lj}", f"buffer_store_dwordx2 {v(CSK,2)}, v{T}, {WSR}, s63 offen sc1", "@opte", f"{Lj}:"]
        return o

def k_main(a):
    s=M(a)
    def p64(p, src): a(f"s_add_u32 s{p}, s4, s{src}\ns_addc_u32 s{p+1}, s5, 0")
    a(f"s_cmp_ge_u32 s2, 256\ns_cbranch_scc1 {a.endl}")
    if STAMP:
        for j in range(1,13): a(f"s_mov_b32 s{72+2*j}, 0")
        a("s_memrealtime s[70:71]\ns_memtime s[72:73]")
    GR=3
    s.pro1(GR)
    a(f"""    s_getreg_b32 s{sXcc}, hwreg(HW_REG_XCC_ID)
    s_and_b32 s{sXcc}, s{sXcc}, 15
    v_mov_b32 v{vOnes}, {ONES:#x}
    v_mov_b32 v{vOne}, 1""")
    for i in (0,1,4,5): a(f"v_mov_b32 v{vBX+i}, 0")
    for i in range(4): a(f"s_xor_b32 s60, s{sW}, {i}\ns_lshl_b32 s{s16+i}, s60, 14\ns_mul_i32 s60, s60, {CST}\ns_add_u32 s{s7+i}, s60, {LC}")
    s.pro2(GR)
    for L in range(2):
        if L==1: a("@wlg wqr")
        s.qkv(L,0); s.qkv(L,1); s.att(L); s.op(L,0); s.op(L,1); s.f1(L); s.f2(L)
    if STAMP:
        a("s_memtime s[98:99]\ns_memrealtime s[100:101]\ns_waitcnt lgkmcnt(0)\nv_mov_b32 v4, 0x57a3")
        for j in range(14): a(f"v_writelane_b32 v4, s{70+2*j}, {j}")
        a(f"""v_writelane_b32 v4, s98, 19
        v_writelane_b32 v4, s100, 20
        v_writelane_b32 v4, s{sBud}, 21
        v_writelane_b32 v4, s{sPure}, 22
        v_writelane_b32 v4, s0, 23
        s_lshl_b32 s60, s2, 2
        s_add_u32 s60, s60, s{sW}
        s_lshl_b32 s60, s60, 7
        s_add_u32 s60, s60, {TS}
        s_mov_b64 exec, 0xffffffff
        buffer_store_dword v4, v{vL4}, {WSR}, s60 offen""")
    a(f"s_endpgm\n@optb"); a(s.ool); a("@opte")

gen2.KERNELS=[("main_kernel",k_main,256,LDS_TOTAL,512)]
if __name__=="__main__":
    for x in sys.argv[2:]:
        if x.startswith("stamp"): STAMP=True; STL=int(x[5]); STO=int(x[7:] or 0)
        elif "=" in x:
            k,val=x.split("="); globals()[k]=int(val)
    p = sys.argv[1] if len(sys.argv)>1 and sys.argv[1]!="-" else "cdna_kernels/"+NAME+".s"
    o=gen2.build()
    if SINGLE: o=o.replace("kernel=main_kernel ","").replace("main_kernel",NAME+"_kernel")
    open(p,"w").write(o)
```

```python
import sys
import gen2
from gen2 import *
sPure=12; sBud=13; sXcc=14; sKF=15; sW=16; sG=17; sJ=18; sW8=19
sOwn=20; sFlS=21; sFlP=22; sStS=23; sHs=[24,25]; s7=26; s16=30; sONE=34; sKVd=36; sKVl=37
pQtr=38; pStL=40; pHl=42; pWQ=[44,46]; pW2=[48,50]; pW1=[52,54]; pKVd=56; pKVl=58
t0_,t1_,t2_,t3_=60,61,62,63; P0,P1,P2=64,66,68
vL16=1; vL16x=2; vL4=3; vOnes=4; vOne=5; vRs=[6,7]; vBX=8; vP=14; XR=[16,20]; Q=[24,28]
ACC=[32,64]; T=96; CS1R=120; vA=124
A0=256
def W1R(c,ks): return A0+128*c+4*ks
def W2R(i): return 128+4*i if i<32 else A0+4*(i-32)
def HWR(i): return A0+96+4*(i%16)
def WKR(ks): return A0+160+4*ks
def WQR(c,ks): return A0+192+32*c+4*ks
BQ=[32,160]; SQ=[24,200]; QACC=[64,32]; KACC=128; CSK=208; CSQR=210; OB=224; SX=24; sLast=3
XIDG=KVF+32*KB; sNon=1; WQL=65536; KVL=131072; JG=8; pJ=34; pQ2=12
STAMP=False; STL=0; STO=0; STAG=8; TOUCH=1; ATS=0; FORCEFB=0; NW0=4; GS=34; NB0=28; JE0=108; NB1=50; JE1=104; NT=0; PM=0; WP0=84; SE=40; HS=106; NH=12; NWR=0; XE=0; XN=4; NOW=1; WJ=0; FD=14; PI=113; PW=1; NA1=38; LOFF=0; PJ=45; ZR=0x100000; EARLYF=1; KFK=5; PFC=1; SINGLE=0; KVS=''
PERM=[k for k in range(28) if ((k//2)%7)%2==0]+[k for k in range(28) if ((k//2)%7)%2==1]
def flat(x):
    o=[]
    for y in x: o+= flat(y) if isinstance(y,list) else [y]
    return o

class M:
    def __init__(s,a): s.a=a; s.ool=[]; s.nst=0; s.cnt=0
    def stamp(s,L,name):
        if STAMP and L==STL:
            s.cnt+=1
            if s.cnt>STO and s.nst<12:
                s.nst+=1; s.a.stamps.append(name)
                return [f"s_memtime s[{72+2*s.nst}:{73+2*s.nst}]"]
        return []
    def base(s, pt, pb, c): return [f"s_add_u32 s{pt}, s{pb}, {c}", f"s_addc_u32 s{pt+1}, s{pb+1}, 0"]
    def loads(s, regs, voff, pb, const, pt, tag, fl=""):
        out=[]
        for i,r in enumerate(regs):
            it=s.base(pt,pb,const+i*1024+4096) if i%8==0 else []
            out.append(it+[f"global_load_dwordx4 {R(r)}, v{voff}, s[{pt}:{pt+1}] offset:{(i%8)*1024-4096} {fl} ;@{tag}{i}"])
        return out
    def loadp(s, regs, voff, pb, const, pt, tag, fl, p0):
        out=[]; b=None
        for i,r in enumerate(regs):
            o=PERM[p0+i]*1024; it=[]
            if b is None or not (-4096<=o-b<4096) or p0+i in (10,12,16): b=o+4096; it=s.base(pt,pb,const+b)
            out.append(it+[f"global_load_dwordx4 {R(r)}, v{voff}, s[{pt}:{pt+1}] offset:{o-b} {fl} ;@{tag}{i}"])
        return out
    def dmas(s, n, voff, pb, const, sl, lconst, pt, tag, fl=""):
        out=[]
        for i in range(n):
            it=[f"s_add_u32 m0, s{sl}, {lconst+i*1024}"]+s.base(pt,pb,const+i*1024) if i%4==0 else []
            out.append(it+[f"global_load_lds_dwordx4 v{voff}, s[{pt}:{pt+1}] offset:{(i%4)*1024} {fl} ;@{tag}{i}"])
        return out
    def pub(s, stores, one=False):
        Ls=s.a.label("slow"); Lb=s.a.label("back")
        s.ool += [f"{Ls}:"] + (["s_mov_b64 exec, 1"] if one else []) + [x.replace("{F}","sc1").split(";@")[0] for x in stores] + (["s_mov_b64 exec, -1"] if one else []) + [f"s_branch {Lb}"]
        return [f"s_cmp_eq_u32 s{sPure}, 0", f"s_cbranch_scc1 {Ls}"]+[x.replace("{F}","") for x in stores]+[f"{Lb}:"]
    def flag(s, L, step, *tags):
        return [f"@wvm {' '.join(tags)}"] + s.pub([f"buffer_store_byte v{vOne}, off, {WSR}, s{sFlS} offset:{(8*L+step)*128} {{F}}"], one=True)
    def poll_i(s, L, step):
        return [f"buffer_load_dwordx2 {v(vP,2)}, off, {WSR}, s{sFlP} offset:{(8*L+step)*128} sc1 ;@poll"]
    def retry(s, ld, chk, okbr):
        Lr=s.a.label("retry"); Lb=s.a.label("back")
        s.ool += [f"{Lr}:", f"s_sub_u32 s{sBud}, s{sBud}, 1", f"s_cmp_lt_i32 s{sBud}, 0", f"s_cbranch_scc1 {Lb}", ld.split(";@")[0], "s_waitcnt vmcnt(0)"]+chk+[f"{okbr[0]} {Lb}", f"s_branch {Lr}"]
        return ["@wvm poll"]+chk+[f"{okbr[1]} {Lr}", f"{Lb}:"]
    def poll_c(s, L, step):
        return s.retry(s.poll_i(L,step)[0], [f"v_and_b32 v{vP}, v{vP}, v{vP+1}", f"v_readfirstlane_b32 s{t0_}, v{vP}", f"s_cmp_eq_u32 s{t0_}, 0x01010101"], ("s_cbranch_scc1","s_cbranch_scc0"))
    def block(s, L, step, allcu=False):
        Lr=s.a.label("blk"); Le=s.a.label("blke"); Lp=s.a.label("blkp"); off=(8*L+step)*128
        o=["s_waitcnt vmcnt(0)", f"s_cmp_eq_u32 s{sPure}, 0", f"s_cbranch_scc1 {Lp}", f"buffer_store_byte v{vOne}, off, {WSR}, s{sFlS} offset:{off}", f"s_branch {Lr}",
           f"{Lp}:", "s_mov_b64 exec, 1", f"buffer_store_byte v{vOne}, off, {WSR}, s{sFlS} offset:{off} sc1", "s_mov_b64 exec, -1",
           f"{Lr}:", f"s_sub_u32 s{sBud}, s{sBud}, 1", f"s_cmp_lt_i32 s{sBud}, 0", f"s_cbranch_scc1 {Le}"]
        if allcu:
            o+=[f"s_and_b32 s{t0_}, s{sFlP}, 0xffffffe0", f"v_and_b32 v{vP+1}, 28, v{vL4}", f"buffer_load_dword v{vP}, v{vP+1}, {WSR}, s{t0_} offen offset:{off} sc1", "s_waitcnt vmcnt(0)",
                f"v_cmp_ne_u32 vcc, 0x01010101, v{vP}", f"s_cbranch_vccnz {Lr}"]
        else:
            o+=[f"buffer_load_dwordx2 {v(vP,2)}, off, {WSR}, s{sFlP} offset:{off} sc1", "s_waitcnt vmcnt(0)", f"v_and_b32 v{vP}, v{vP}, v{vP+1}", f"v_readfirstlane_b32 s{t0_}, v{vP}",
                f"s_cmp_eq_u32 s{t0_}, 0x01010101", f"s_cbranch_scc0 {Lr}"]
        return o+[f"{Le}:"]
    def gate(s, L, step, reload=[]):
        Lg=s.a.label("gate"); Lb=s.a.label("back")
        s.ool+=[f"{Lg}:"]+s.block(L,step)+[x.split(";@")[0] for x in flat(reload)]+["s_waitcnt vmcnt(0)", f"s_branch {Lb}"]
        return [f"s_cmp_eq_u32 s{sPure}, 0", f"s_cbranch_scc1 {Lg}", f"{Lb}:"]
    def check(s, L, step, reg, reload, start, allcu=False, idn=None):
        Lr=s.a.label("redo"); Lb=s.a.label("back"); idn=8*L+step+1 if idn is None else idn
        s.ool+=[f"{Lr}:", f"s_cmp_eq_u32 s{sLast}, {idn}", f"s_cbranch_scc1 {Lb}", f"s_mov_b32 s{sLast}, {idn}"]
        if STAMP: s.ool+=[f"s_bitset1_b32 s0, {idn}"]
        s.ool+=s.block(L,step,allcu)+[x.split(";@")[0] for x in flat(reload)]+["s_waitcnt vmcnt(0) lgkmcnt(0)", f"s_branch {start}"]
        return [f"v_cmp_u_f32 vcc, v{reg}, v{reg}"], [f"s_cbranch_vccnz {Lr}", f"{Lb}:"]
    def kvpoll_i(s, L, t):
        return [f"v_lshlrev_b32 v{vP+1}, 7, v0\nv_mov_b32 v{vP}, s{sNon}", f"s_lshl_b32 s{t3_}, s{sW}, 11\ns_add_u32 s{t3_}, s{t3_}, {KVF+(2*L+t)*8192}",
                f"s_mov_b64 exec, 0xffff\nbuffer_load_dword v{vP}, v{vP+1}, {WSR}, s{t3_} offen sc1 ;@poll\ns_mov_b64 exec, -1"]
    def kvpoll_c(s):
        return s.retry(s.kvpoll_i(0,0)[2].replace(" ;@poll",""), [f"v_cmp_ne_u32 vcc, s{sNon}, v{vP}"], ("s_cbranch_vccz","s_cbranch_vccnz"))+["s_barrier"]
    def red_addr(s, buf):
        if buf=="C": return [f"v_add_u32 v{vA+i}, s{s7+i}, v{vL16}" for i in range(4)]
        if buf=="P": return [f"v_add_u32 v{vA+i}, s{s16+i}, v{vL16}" for i in range(4)]
        return [[f"s_add_u32 s{t1_}, s{s16+i}, {LR}", f"v_add_u32 v{vA+i}, s{t1_}, v{vL16}"] for i in range(4)]
    def red_write(s, acc):
        return [f"ds_write_b128 v{vA}, {v(acc+8+4*i,4)} offset:{i*1024} ;@rw" for i in range(6)]
    def red_read(s):
        return [f"ds_read_b128 {v(T+4*i,4)}, v{vA+1+i//2} offset:{i*1024} ;@rr{i}" for i in (2,3,4,5,0,1)]
    def red_add(s, acc):
        o=[]
        for i in (2,3,4,5,0,1):
            o.append(f"@wlg rr{i}")
            for h in range(2): o.append(f"v_pk_add_f32 {v(acc+4*(i%2)+2*h,2)}, {v(acc+4*(i%2)+2*h,2)}, {v(T+4*i+2*h,2)}")
        return o
    def sum8(s, r):
        return [f"v_add_f32 v{r+i}, v{r+i}, v{r+i+4}" for i in range(4)]+[f"v_add_f32 v{r}, v{r}, v{r+2}", f"v_add_f32 v{r+1}, v{r+1}, v{r+3}", f"v_add_f32 v{r}, v{r}, v{r+1}"]
    def bext(s, p, t):
        return [f"v_mul_f32 v{t}, {f2u(-1/512):#x}, v{p}", f"v_cvt_pk_bf16_f32 v{vBX+2}, v{t}, v{t}", f"v_and_b32 v{vBX+3}, 0xffff0000, v{vBX+2}",
                f"v_sub_f32 v{t}, v{t}, v{vBX+3}", f"v_cvt_pk_bf16_f32 v{vBX+3}, v{t}, v{t}"]
    def stat_rd(s, r, slot, tag):
        return [f"v_add_u32 v{r+3}, {LC}, v{vL4}"]+[f"ds_read_b32 v{r+i}, v{r+3} offset:{i*CST+6144+256*slot} ;@{tag}" for i in range(4)]
    def stat_wr(s, p, t, slot):
        return [f"v_add_u32 v{t}, s{s7}, v{vL4}", f"ds_write_b32 v{t}, v{p} offset:{6144+256*slot} ;@rw"]
    def rstd(s, r, dst):
        return [f"v_add_f32 v{r}, v{r}, v{r+2}", f"v_add_f32 v{r+1}, v{r+1}, v{r+3}", f"v_add_f32 v{r}, v{r}, v{r+1}", f"v_mov_b32 v{r+1}, v{r}",
                f"v_permlane32_swap_b32 v{r}, v{r+1}", f"v_mul_f32 v{r+2}, {f2u(1/512):#x}, v{r}", f"v_mul_f32 v{r+1}, {f2u(1/512):#x}, v{r+1}",
                f"v_fma_f32 v{r+1}, -v{r+2}, v{r+2}, v{r+1}", f"v_max_f32 v{r+1}, 0, v{r+1}", f"v_add_f32 v{r+1}, {f2u(1e-5):#x}, v{r+1}", f"v_rsq_f32 v{dst}, v{r+1}"]
    def emit_x(s, acc, t, xoff, soff, tmp):
        o=[f"s_add_u32 s{t1_}, s{sOwn}, {xoff+t*32*KB}", f"s_add_u32 s{t2_}, s{sStS}, {soff+t*8*KB}"]
        o+=[f"v_cvt_pk_bf16_f32 v{XR[t]+i}, v{acc+2*i}, v{acc+2*i+1}" for i in range(4)]
        for i in range(4):
            o+=[f"v_dot2_f32_bf16 v{tmp}, v{XR[t]+i}, v{vOnes}, {'0' if i==0 else v(tmp)}", f"v_dot2_f32_bf16 v{tmp+1}, v{XR[t]+i}, v{XR[t]+i}, {'0' if i==0 else v(tmp+1)}"]
        o+=[f"v_permlane32_swap_b32 v{tmp}, v{tmp+1}", f"v_add_f32 v{tmp}, v{tmp}, v{tmp+1}"]
        o+=s.pub([f"buffer_store_dwordx4 {v(XR[t],4)}, v{vL16}, {WSR}, s{t1_} offen {{F}}", f"buffer_store_dword v{tmp}, v{vL16}, {WSR}, s{t2_} offen {{F}} ;@xst"])
        return o
    def qkv_loads(s, L, t):
        return s.loads([SQ[t],SQ[t]+4], vL16, pStL, L*LOFF+SA_+t*8*KB, P0, f"sq{t}_", "sc1") + s.loads([BQ[t]+4*i for i in range(8)], vL16, pQtr, L*LOFF+XA_+t*32*KB, P0, f"bq{t}_", "sc1")
    def cs_loads(s):
        return [[f"v_lshrrev_b32 v{vA+3}, 1, v{vL16x}", f"s_lshr_b32 s{t1_}, s{sW}, 1", f"s_lshl_b32 s{t2_}, s{sJ}, 1", f"s_add_u32 s{t1_}, s{t1_}, s{t2_}", f"s_lshl_b32 s{t1_}, s{t1_}, 9", f"s_add_u32 s{t1_}, s{t1_}, {CSQ}",
                f"buffer_load_dwordx2 {v(CSQR,2)}, v{vA+3}, {WSR}, s{t1_} offen", f"s_xor_b32 s{t1_}, s{t1_}, 512", f"buffer_load_dwordx2 {v(CSQR+2,2)}, v{vA+3}, {WSR}, s{t1_} offen",
                f"v_lshrrev_b32 v{vA+3}, 1, v{vL16}", f"s_mov_b32 s{t1_}, {CSKV}", f"buffer_load_dwordx2 {v(CSK,2)}, v{vA+3}, {WSR}, s{t1_} offen ;@csq"]]
    def wkv_loads(s):
        Lk=s.a.label("nokv")
        o=[f"s_cmp_ge_u32 s{sJ}, 2", f"s_cbranch_scc1 {Lk}", "@optb", f"s_add_u32 s{P2}, s4, s{sW8}", f"s_addc_u32 s{P2+1}, s5, 0"]
        return o+flat(s.loads([WKR(k) for k in range(8)], vL16, P2, WKVF, P2, "wk"))+["@opte", f"{Lk}:"]
    def ksplit(s, acc, Areg, Breg, btag, ext, pre=None, post=None, c0init="0", chk=None):
        sl=[]
        for i in range(16):
            c,ks=1-i//8,i%8
            p=([f"@wvm {btag}{ks}"] if c==1 and btag else [])+(pre(i) if pre else [])
            p.append(mf(acc+16*c, Areg(c,ks), Breg(ks), ("0" if c==1 else c0init) if ks==0 else None))
            p+=(post(i) if post else [])
            if ext and ks==7: sl.append(p); p=[mf(acc+16*c, CSQR, vBX+2-2*c)]
            sl.append(p)
        w=s.red_write(acc); n=len(sl)
        if chk: sl[n-6]+=chk[0]; sl[n-5]+=chk[1]
        for k in range(4): sl[n-4+k if chk else n-5+k]+=[w[2+k]]
        sl.append([]); sl.append(w[:2]+["@wlg rw","s_barrier"])
        return sl

    def qkv(s, L, t):
        a=s.a; acc=QACC[t]; kacc=KACC; sq=SQ[t]
        Ls=a.label("qst"); ck=(lambda r: s.check(L-1,6+t,r,s.qkv_loads(L,t),Ls)) if L>0 else (lambda r:([],[]))
        a(s.red_addr("C" if t==0 else "P"))
        a(f"{Ls}:")
        if L>0: a(f"@wvm sq{t}_1"); a(s.sum8(sq))
        E0=(L==0 and t==0)
        c=ck(sq); a(c[0]); a(s.stat_wr(sq, sq+1, 2+t)); a(s.bext(sq, sq+1)); a(c[1])
        Ln=a.label("nkv"); Lv=a.label("v"); X=sq+2
        OPT=(L==1 and EARLYF); Lf=a.label("kf")
        if not (OPT and t==1): a(f"s_mov_b32 s{sKF}, 0")
        a(f"s_cmp_lg_u32 s{sJ}, {t}\ns_cbranch_scc1 {Ln}\n@optb")
        PO,PS,VB,VI=(0,CST,LC,CST+4096) if E0 else (8192,16384,0,16384+12288)
        a(f"v_add_u32 v{X}, s{s7 if E0 else s16}, v{vL16}\ns_lshl_b32 s{t1_}, s{sW}, 11\ns_add_u32 s{t1_}, s{t1_}, {VB}\nv_add_u32 v{X+1}, s{t1_}, v{vL16}\nv_add_u32 v{X+2}, {VB}, v{vL16}")
        for ks in range(8):
            if L>0: a(f"@wvm bq{t}_{ks}")
            a(mf(kacc, WKR(ks), BQ[t]+4*ks, "0" if ks==0 else None))
        if L>0: a("@wvm csq")
        a(mf(kacc, CSK, vBX+2))
        c=ck(kacc); a(c[0]+c[1])
        if L>0: a(f"s_mov_b32 s{sLast}, {8*(L-1)+6+t+1}")
        for i in range(4): a(f"ds_write_b128 v{X}, {v(kacc+4*i,4)} offset:{PO+i*1024}")
        a(f"s_waitcnt lgkmcnt(0)\ns_barrier\ns_cmp_ge_u32 s{sW}, 2\ns_cbranch_scc1 {Ln}")
        KB_=160 if E0 else OB; VI-=PS
        a(s.stat_rd(T, 2+t, "st"))
        tl=[f"ds_read_b128 {v(KB_+4*i,4)}, v{X+1} offset:{(i//2)*PS+PO+(i%2)*1024} ;@kr{i}" for i in range(8)]
        tl+=[[f"s_mul_i32 s{t1_}, s{sG}, {KVT}", f"s_add_u32 s{t1_}, s{t1_}, {KVI+(2*L+t)*KVH}"], [f"s_lshl_b32 s{sKF}, s{sG}, 8", f"s_add_u32 s{sKF}, s{sKF}, {KVF+(2*L+t)*8192}"], "@wlg st"]+s.rstd(T, T+4)
        tl+=[f"s_mul_i32 s{t2_}, s{sW}, {PS}", f"v_add_u32 v{X+2}, s{t2_}, v{X+2}", f"s_add_u32 s{t2_}, s{t2_}, {VB}", f"v_bfe_u32 v{T}, v0, 3, 2", f"v_mul_u32_u24 v{T}, 272, v{T}", f"v_add_u32 v{T}, s{t2_}, v{T}",
             f"v_and_b32 v{T+1}, 7, v0", f"v_lshl_add_u32 v{T+1}, v{T+1}, 1, v{T}", f"v_lshrrev_b32 v{T+2}, 5, v0", f"v_lshl_add_u32 v{T+1}, v{T+2}, 6, v{T+1}"]
        for i in range(2,8): tl+=[f"@wlg kr{i}"]+[f"v_add_f32 v{KB_+4*(i%2)+h}, v{KB_+4*(i%2)+h}, v{KB_+4*i+h}" for h in range(4)]
        tl+=[f"v_mul_f32 v{KB_+i}, v{T+4}, v{KB_+i}" for i in range(8)]+[f"v_cvt_pk_bf16_f32 v{KB_+8+i}, v{KB_+2*i}, v{KB_+2*i+1}" for i in range(4)]
        fl=[f"v_mov_b32 v{vP}, s{sNon}", "s_mov_b64 exec, 1", f"buffer_store_dword v{vP}, off, {WSR}, s{sKF} sc1"] if OPT else []
        tl+=[[f"s_cmp_eq_u32 s{sW}, 1", f"s_cbranch_scc1 {Lv}", "@optb", f"buffer_store_dwordx4 {v(KB_+8,4)}, v{vL16}, {WSR}, s{t1_} offen sc1"]+fl+["s_mov_b64 exec, -1", "@opte", f"{Lv}:"]]
        tl+=[f"{'ds_write_b16' if r%2==0 else 'ds_write_b16_d16_hi'} v{T+1}, v{KB_+8+r//2} offset:{VI+(8*(r//4)+r%4)*16}" for r in range(8)]
        tl+=[f"v_mov_b32 v{KB_+i}, v{vOnes}" for i in range(4)]+[f"ds_write_b128 v{T}, {v(KB_,4)} offset:{VI+256}",
             f"ds_read_b128 {v(KB_+12,4)}, v{X+2} offset:{VI}", f"ds_read_b128 {v(KB_+16,4)}, v{X+2} offset:{VI+1024} ;@vr"]
        te=[f"s_cmp_eq_u32 s{sW}, 0", f"s_cbranch_scc1 {Lf}", "@optb", "@wlg vr", f"s_add_u32 s{sKF}, s{sKF}, 128", f"buffer_store_dwordx4 {v(KB_+12,4)}, v{vL16}, {WSR}, s{t1_} offen offset:1024 sc1", "s_mov_b64 exec, 15",
            f"buffer_store_dwordx4 {v(KB_+16,4)}, v{vL16}, {WSR}, s{t1_} offen offset:2048 sc1"]+fl+["s_mov_b64 exec, -1", "@opte", f"{Lf}:"]
        def mk(kv):
            if E0: return s.pro3a()
            sl=s.ksplit(acc, WQR, lambda k:BQ[t]+4*k, f"bq{t}_" if L>0 else None, True, chk=ck(acc+16) if L>0 and not kv else None)
            if L>0: sl[7]+=["@wvm csq"]
            return sl
        sl=mk(True); n=len(sl)-(10 if E0 else 2)
        weave(sl, tl, 0, n-2); sl[n-1]+=te
        Lj=a.label("kj")
        a(sl if E0 else sl[:-2]); a(f"s_branch {Lj}\n@opte\n{Ln}:")
        sl=mk(False)
        Lk=a.label("nkf")
        kf=f"""s_cmp_eq_u32 s{sKF}, 0
        s_cbranch_scc1 {Lk}
        @optb
        s_waitcnt vmcnt({4 if (t==0 and L>0) else 0})
        v_mov_b32 v{vP}, s{sNon}
        s_mov_b64 exec, 1
        buffer_store_dword v{vP}, off, {WSR}, s{sKF} sc1
        s_mov_b64 exec, -1
        @opte
        {Lk}:"""
        if E0: sl+=[[f"{Lj}:"]+s.pro3(kf)]; kf=""
        else: sl[-2]+=[f"{Lj}:"]
        if OPT:
            s.kf2=kf.replace("s_waitcnt vmcnt(0)","").replace(f"s{sKF} sc1",f"s{sKF} offset:4 sc1"); kf=""
        if t==0 and L>0:
            ql=s.qkv_loads(L,1)
            sl[-2]+=s.flag(L-1, 7, "xst")+s.gate(L-1,7)+flat(ql[:4])
        a(sl); a(s.stamp(L,f"q{t}b"))
        a(s.stat_rd(sq+4, 2+t, "st")); a(s.red_read())
        a(kf)
        if t==1: a(s.kvpoll_i(L,0))
        e=[[x] for x in ["@wlg st"]+s.rstd(sq+4, sq)+[f"v_mul_f32 v{sq}, {f2u(0.25*LOG2E):#x}, v{sq}", f"v_mov_b32 v{sq+1}, v{sq}"]+s.red_add(acc)]
        if t==0 and L>0: weave(e, ql[4:])
        a(e)
        for i in range(4): a(f"v_pk_mul_f32 {v(acc+2*i,2)}, {v(acc+2*i,2)}, {v(sq,2)}")
        for i in range(4): a(f"v_cvt_pk_bf16_f32 v{Q[t]+i}, v{acc+2*i}, v{acc+2*i+1}")
        a(s.stamp(L,f"q{t}e"))

    def att_fin(s, L, t, O, W):
        a=s.a; Lf=a.label("fb"); Lb=a.label("fbback"); L1=a.label("p1"); L2=a.label("p2")
        sc=[f"v_rcp_f32 v{O+10}, v{O+8}", f"v_subrev_u32 v{O+9}, {f2u(2.0**-60):#x}, v{O+8}"]+[f"v_mul_f32 v{O+i}, v{O+10}, v{O+i}" for i in range(8)]
        o=sc+[f"v_cmp_lt_u32 vcc, {f2u(2.0**100)-f2u(2.0**-60):#x}, v{O+9}"]
        o+=[f"v_add_f32 v{O+12+i}, v{O+i}, v{O+4+i}" for i in range(4)]+[f"v_add_f32 v{O+12}, v{O+12}, v{O+13}", f"v_add_f32 v{O+14}, v{O+14}, v{O+15}", f"s_mov_b32 s{t1_}, 0x207", f"v_add_f32 v{O+12}, v{O+12}, v{O+14}",
           f"v_cmp_class_f32 s[{P2}:{P2+1}], v{O+12}, s{t1_}", f"s_add_u32 s{t1_}, s{sOwn}, {L*LOFF+O_+t*32*KB}", f"s_or_b64 vcc, vcc, s[{P2}:{P2+1}]", f"s_cbranch_vccnz {Lf}" if not FORCEFB else f"s_branch {Lf}", f"{Lb}:"]
        o+=[f"v_cvt_pk_bf16_f32 v{O+12+i}, v{O+2*i}, v{O+2*i+1}" for i in range(4)]
        o+=s.pub([f"buffer_store_dwordx4 {v(O+12,4)}, v{vL16}, {WSR}, s{t1_} offen {{F}} ;@ost{t}"])
        S=W; K=W+16; V=W+20; m=W+28; va=W+29; c1=P2; c2=P2+1
        f=[f"{Lf}:"]
        if L==1 and EARLYF:
            Lq=a.label("fq"); Lr=a.label("fr")
            f+=[f"v_lshlrev_b32 v{va}, 7, v0", f"s_mov_b32 s{c1}, {KVF+2*8192}", f"s_mov_b32 s{c2}, {KVF+3*8192}", f"{Lq}:", f"s_sub_u32 s{sBud}, s{sBud}, 1", f"s_cmp_lt_i32 s{sBud}, 0", f"s_cbranch_scc1 {Lr}",
                f"buffer_load_dword v{K}, v{va}, {WSR}, s{c1} offen offset:4 sc1", f"buffer_load_dword v{K+1}, v{va}, {WSR}, s{c2} offen offset:4 sc1", "s_waitcnt vmcnt(0)",
                f"v_xor_b32 v{K}, s{sNon}, v{K}", f"v_xor_b32 v{K+1}, s{sNon}, v{K+1}", f"v_or_b32 v{K}, v{K}, v{K+1}", f"v_cmp_ne_u32 vcc, 0, v{K}", f"s_cbranch_vccnz {Lq}", f"{Lr}:"]
        if STAMP: f+=[f"s_bitset1_b32 s0, {22+L}"]
        f+=[f"v_mov_b32 v{m}, 0xff800000", f"s_mov_b32 s{c1}, {KVI+2*L*KVH}", f"s_mov_b32 s{c2}, 64", f"{L1}:",
           f"buffer_load_dwordx4 {v(K,4)}, v{vL16}, {WSR}, s{c1} offen sc1", "s_waitcnt vmcnt(0)", mf(S,K,Q[t],"0")]
        f+=[f"v_max_f32 v{m}, v{m}, v{S+i}" for i in range(16)]
        nxt=lambda l:[f"s_add_u32 s{c1}, s{c1}, {KVT}", f"s_sub_u32 s{c2}, s{c2}, 1", f"s_cmp_lg_u32 s{c2}, 0", f"s_cbranch_scc1 {l}"]
        f+=nxt(L1)+[f"v_mov_b32 v{va}, v{m}", f"v_permlane32_swap_b32 v{m}, v{va}", f"v_max_f32 v{m}, v{m}, v{va}",
            f"v_and_b32 v{va}, 31, v0", f"v_min_u32 v{va}, 16, v{va}", f"v_lshlrev_b32 v{va}, 4, v{va}", f"v_lshrrev_b32 v{va+1}, 5, v0", f"v_mul_u32_u24 v{va+1}, 272, v{va+1}", f"v_add_u32 v{va}, v{va}, v{va+1}"]
        f+=[f"v_mov_b32 v{O+i}, 0" for i in range(16)]
        f+=[f"s_mov_b32 s{c1}, {KVI+2*L*KVH}", f"s_mov_b32 s{c2}, 64", f"{L2}:",
            f"buffer_load_dwordx4 {v(K,4)}, v{vL16}, {WSR}, s{c1} offen sc1", f"buffer_load_dwordx4 {v(V,4)}, v{va}, {WSR}, s{c1} offen offset:1024 sc1",
            f"buffer_load_dwordx4 {v(V+4,4)}, v{va}, {WSR}, s{c1} offen offset:{1024+544} sc1", "s_waitcnt vmcnt(0)", mf(S,K,Q[t],"0")]
        f+=[f"v_sub_f32 v{S+i}, v{S+i}, v{m}" for i in range(16)]+[f"v_exp_f32 v{S+i}, v{S+i}" for i in range(16)]
        f+=[f"v_smfmac_f32_32x32x32_bf16 {v(O,16)}, {v(V+4*u,4)}, {v(S+8*u,8)}, v{vA}" for u in range(2)]
        f+=nxt(L2)+sc+[f"s_branch {Lb}"]
        s.ool+=f
        return o
    def kv_dma(s, L, t):
        lb = LR if t==0 else LP
        out=[]
        for r in range(4): out+=s.dmas(4, vL16, pKVd, (2*L+t)*KVH+r*16384, sKVd, lb+r*16384, P1, f"kv{t}_{r}_", KVS)
        out+=s.dmas(1, vL16, pKVl, (2*L+t)*KVH+65536, sKVl, lb+65536, P1, f"kv{t}_4_", KVS)
        return out
    def att(s, L):
        a=s.a
        S=[32,48]; O=[64,80]; KR=[96,100]; VR=[104,112]; IDX=vA; vK=vA+1; vV=vA+2
        jobs=[(t,k) for k in range(32) for t in range(2)]+[(0,k) for k in range(32,32+STAG)]+[(t,k) for k in range(32+STAG,64) for t in range(2)]+[(1,k) for k in range(32,32+STAG)]
        N=len(jobs)
        kap=[0]
        for i in range(1,N): kap.append(kap[-1]+(jobs[i][1]!=jobs[i-1][1]))
        first={}
        for i in range(N): first.setdefault(kap[i], i)
        NK=kap[-1]+1
        def laddr(k): return (LR+k*KVT) if k<32 else (LP+(k-32)*KVT)
        base={"K":LR,"V":LR}
        def rd(kind, kp, u=0):
            kt=jobs[first[kp]][1]
            ad=laddr(kt)+(0 if kind=="K" else 1024+u*544); o=[]
            reg=vK if kind=="K" else vV
            if not (0<=ad-base[kind]<65536):
                nb=laddr(kt); o.append(f"v_add_u32 v{reg}, {(nb-base[kind])&0xffffffff:#x}, v{reg}"); base[kind]=nb
            dst=KR[kp%2] if kind=="K" else VR[kp%2]+4*u
            return o+[f"ds_read_b128 {v(dst,4)}, v{reg} offset:{ad-base[kind]} ;@{kind}{kp}_{u}"]
        def smf(i,u): return [f"@wlg V{kap[i]}_{u}", f"v_smfmac_f32_32x32x32_bf16 {v(O[jobs[i][0]],16)}, {v(VR[kap[i]%2]+4*u,4)}, {v(S[i%2]+8*u,8)}, v{IDX}"]
        def qk(i): return [f"@wlg K{kap[i]}_0", mf(S[i%2], KR[kap[i]%2], Q[jobs[i][0]], "0")]
        def ex(r0,r1): return [f"v_exp_f32 v{r}, v{r}" for r in range(r0,r1)]
        d0=s.kv_dma(L,0); d1=s.kv_dma(L,1)
        if L==0:
            a(s.job1()); a(s.stamp(L,"job"))
            for p,q in ((pKVd,sKVd),(pKVl,sKVl)): a(f"s_add_u32 s{p}, s{q}, {KVI}\ns_add_u32 s{p}, s4, s{p}\ns_addc_u32 s{p+1}, s5, 0")
        a(s.kvpoll_c()); a(s.stamp(L,"kvp"))
        a(d0[:4])
        if L==0: s.setup2()
        a(d0[4:6])
        a(f"""v_mov_b32 v{IDX}, 0xdddddddd
        v_add_u32 v{vK}, {LR}, v{vL16}
        v_and_b32 v{vV}, 31, v0
        v_min_u32 v{vV}, 16, v{vV}
        v_lshlrev_b32 v{vV}, 4, v{vV}
        v_lshrrev_b32 v{vA+3}, 5, v0
        v_mul_u32_u24 v{vA+3}, 272, v{vA+3}
        v_add_u32 v{vV}, v{vV}, v{vA+3}
        v_add_u32 v{vV}, {LR}, v{vV}""")
        if ZR: a(f"s_mov_b32 s{t1_}, 0xffee0000\ns_mov_b32 exec_lo, s{t1_}\ns_mov_b32 exec_hi, s{t1_}\nv_add_u32 v{vV}, {ZR:#x}, v{vV}\ns_mov_b64 exec, -1")
        for i in range(32): a(f"v_mov_b32 v{O[0]+i}, 0")
        a(f"v_lshlrev_b32 v{OB+8}, 7, v0\nv_lshlrev_b32 v{OB+9}, 10, v0")
        for i in range(4): a(f"v_mov_b32 v{OB+i}, -1")
        touch=[]
        def pst(sb, c, n=1, dw=False):
            for k in range(n): touch.append(([f"s_add_u32 s{t1_}, s{sb}, {c}"] if k==0 else [])+[(f"buffer_store_dword v{OB}" if dw else f"buffer_store_dwordx4 {v(OB,4)}")+f", v{vL16}, {WSR}, s{t1_} offen offset:{k*1024} {('','nt','sc1','sc0 sc1','sc0')[PM]} ;@pois"])
        assert LOFF==0 and SA_==S1_+16*KB
        touch.append([f"s_and_b32 s{t1_}, s{sStS}, 0xffffff00", f"s_and_b32 s{t2_}, s{sW8}, {0x6000 if L==0 else 0x2000}", f"s_add_u32 s{t1_}, s{t1_}, s{t2_}", f"s_add_u32 s{t1_}, s{t1_}, {S1_}", f"buffer_store_dwordx4 {v(OB,4)}, v{vL16}, {WSR}, s{t1_} offen"])
        for t in range(2):
            pst(sOwn, O_+t*32*KB)
            if L==0 or t==0: pst(sOwn, X1_+t*32*KB)
            for c in range(2): pst(sHs[c], t*112*KB, 2)
            if L==0: pst(sOwn, XA_+t*32*KB)
        if L==1: touch.append([f"s_lshl_b32 s{t1_}, s{sG}, 16", f"s_lshl_b32 s{t2_}, s{sJ}, 7", f"s_add_u32 s{t1_}, s{t1_}, s{t2_}", f"buffer_load_dword v{OB+6}, v{OB+9}, s[8:11], s{t1_} offen"])
        warm=[[f"s_bitcmp1_b32 s{sG}, 4", f"s_cselect_b64 s[{P2}:{P2+1}], s[{pW2[1]}:{pW2[1]+1}], s[{pW2[0]}:{pW2[0]+1}]", f"s_and_b32 s{t1_}, s{sG}, 8", f"s_lshl_b32 s{t1_}, s{t1_}, 10", f"s_add_u32 s{t1_}, s{t1_}, {12*KB}",
               f"s_add_u32 s{P2}, s{P2}, s{t1_}", f"s_addc_u32 s{P2+1}, s{P2+1}, 0", f"global_load_dword v{OB+6}, v{OB+8}, s[{P2}:{P2+1}] ;@warm"]]
        if L==0: warm.append([f"s_bitcmp1_b32 s{sG}, 3", f"s_cselect_b64 s[{P2}:{P2+1}], s[{pWQ[1]}:{pWQ[1]+1}], s[{pWQ[0]}:{pWQ[0]+1}]", f"global_load_dword v{OB+6}, v{OB+8}, s[{P2}:{P2+1}]"])
        wp=[]
        for x in warm:
            for q in range(4): wp.append((x[:-1] if q==0 else [])+[f"s_bfm_b64 exec, 16, {16*q}", x[-1], "s_mov_b64 exec, -1"])
        if NOW: warm=[]
        if NOW<2: wp=[]
        if L==1: warm.append(touch.pop())
        a(d0[6:8])
        a("@wvm kv0_0_3\ns_barrier"); a(s.stamp(L,"kv0"))
        if L==0: a(s.job2())
        elif EARLYF: a(s.kf2)
        a(rd("K",0)+rd("V",0,0)+rd("V",0,1)+rd("K",1)+qk(0))
        A=[[] for _ in range(N)]; B=[[] for _ in range(N)]; C=[[] for _ in range(N)]
        fr=[]
        for i in range(N):
            kp=kap[i]; isf=first[kp]==i; last=(i+1==N or kap[i+1]!=kp)
            if isf and last:
                if kp+1<NK: A[i]+=[f"@wlg K{kp+1}_0"]+rd("V",kp+1,0); B[i]+=rd("V",kp+1,1)
                if kp+2<NK: C[i]+=rd("K",kp+2)
            elif isf:
                A[i]+=rd("V",kp+1,0); B[i]+=rd("V",kp+1,1); fr.append((i,C[i]))
            else:
                A[i]+=[f"@wlg V{kp+1}_1"]; fr.append((i,B[i])); C[i]+=rd("K",kp+2)
        def put(items, j0, j1):
            sl=[l for (j,l) in fr if j0<=j<j1]
            if items: weave(sl, items)
        def at(j): return [l for (jj,l) in fr if jj>=j][0]
        put(d0[8:], 0, 5)
        at(9).extend(["@wvm kv0_4_0","s_barrier"])
        if L==0:
            Lx=a.label("nx")
            at(9).append(f"""s_cmp_lg_u32 s{sW}, 0
            s_cbranch_scc1 {Lx}
            @optb
            v_mov_b32 v{vP}, s{sXcc}
            s_lshl_b32 s{t1_}, s2, 7
            s_add_u32 s{t1_}, s{t1_}, {XIDG}
            s_mov_b64 exec, 1
            buffer_store_dword v{vP}, off, {WSR}, s{t1_} sc1
            s_mov_b64 exec, -1
            @opte
            {Lx}:""")
        at(12).extend(s.kvpoll_i(L,1))
        at(20).extend(s.kvpoll_c())
        ldx=f"buffer_load_dword v{vP}, v{vP+1}, {WSR}, s{t3_} offen sc1 ;@poll"
        put(d1, 21, 30)
        if L==0:
            at(GS-9).extend([f"s_add_u32 s{t3_}, s{sW8}, {XIDG}", ldx])
            at(GS).extend(s.retry(ldx, [f"v_xor_b32 v{vP}, s{sNon}, v{vP}", f"v_cmp_lt_u32 vcc, 15, v{vP}"], ("s_cbranch_vccz","s_cbranch_vccnz"))+["s_barrier"])
            at(GS).extend([f"v_and_b32 v{vP+1}, 7, v0", f"v_lshlrev_b32 v{vP+1}, 12, v{vP+1}", f"s_lshl_b32 s{t3_}, s{sG}, 7", f"s_add_u32 s{t3_}, s{t3_}, {XIDG}", ldx])
            at(44).extend(["@wvm poll", f"v_cmp_ne_u32 vcc, s{sXcc}, v{vP}", "s_cmp_eq_u64 vcc, 0", f"s_cselect_b32 s{sPure}, 1, 0"])
            warm.append([f"s_mul_i32 s{t1_}, s{sJ}, {7*512}", f"s_lshl_b32 s{t2_}, s{sW}, 10", f"s_add_u32 s{t1_}, s{t1_}, s{t2_}", f"s_add_u32 s{t1_}, s{t1_}, {CS1}", f"v_lshrrev_b32 v{vA+3}, 1, v{vL16}",
                f"buffer_load_dwordx2 {v(CS1R,2)}, v{vA+3}, {WSR}, s{t1_} offen", f"s_cmp_eq_u32 s{sW}, 3", f"s_cselect_b32 s{t2_}, 0, 512", f"s_add_u32 s{t1_}, s{t1_}, s{t2_}",
                f"buffer_load_dwordx2 {v(CS1R+2,2)}, v{vA+3}, {WSR}, s{t1_} offen"])
        w1=[]
        for c in range(2): w1+=s.loads([W1R(c,k) for k in range(32)], vL16, pW1[c], 0, P0, f"w1{c}_", "nt" if NT else "")
        at(44).extend(["@wvm kv1_4_0","s_barrier"])
        j2=64+STAG
        at(j2).append("s_barrier")
        wo=[]; w2=[]
        for c in range(2): wo+=s.dmas(8, vL16x, pWQ[c], WOF, s16, LR+c*8192, P1, f"wo{c}_", "nt" if NT else "")
        for c in range(2): w2+=s.loads([W2R(2*k+c) for k in range(12)], vL16x, pW2[c], 0, P0, f"w2{c}_")
        warm.append(s.pfc(OB+6, 2*KB))
        def mix(x,y):
            o=[[] for _ in range(max(len(x),len(y)))]; weave(o,x); weave(o,y); return o
        JE=JE0 if L==0 else JE1
        pe=PJ+len(touch)
        if L==0:
            put(w1[:2*(PJ-GS-1)], GS+1, PJ); put(touch, PJ, pe); put(w1[2*(PJ-GS-1):NB0], pe, 64); put(wo+w1[NB0:]+w2, j2+1, JE); put(wp, WP0, JE)
        else:
            put(w1[:8], 4, 12); put(w1[8:16], 13, 21); put(w1[16:NA1], 30, PJ); put(touch, PJ, pe); put(w1[NA1:NB1], pe, 64); put(wo+w1[NB1:]+w2, j2+1, JE); put(wp, WP0, JE)
        if WJ==0:
            at(JE-FD).extend(s.flag(2,L,"pois"))
            at(JE).extend(s.poll_i(2,L))
            put(warm, JE+1, JE+1+len(warm))
            at(JE+10).extend(s.poll_c(2,L))
        else:
            put(warm, WJ, 64)
            at(PI-FD).extend(s.flag(2,L,"pois")); at(PI).extend(s.poll_i(2,L)); at(PI+5).extend(s.poll_c(2,L))
        e0=N-STAG
        if ATS==1:
            for j in (10,20,32,44,60,72,88,100,110): A[j]+=s.stamp(L,f"j{j}")
        C[e0-1]+=s.stamp(L,"a0")+s.att_fin(L,0,O[0],OB)
        C[e0+3]+=s.flag(L,0,"ost0")
        ob=s.loads([OB+4*i for i in range(8)], vL16, pQtr, L*LOFF+O_, P0, "ob", "sc1")
        C[N-2]+=s.gate(L,0)+flat(ob[:2]); A[N-1]+=flat(ob[2:4]); B[N-1]+=flat(ob[4:6]); C[N-1]+=flat(ob[6:])
        for i in range(N):
            Sa=S[i%2]
            a(ex(Sa,Sa+2)+(smf(i-1,1) if i>0 else [])+A[i]+ex(Sa+2,Sa+5)+(qk(i+1) if i+1<N else [])+B[i]+ex(Sa+5,Sa+10)+smf(i,0)+C[i]+ex(Sa+10,Sa+16))
        a(f"s_add_u32 s{t1_}, s{s16}, {LR}\nv_add_u32 v6, s{t1_}, v{vL16}")
        a(smf(N-1,1)); a(s.stamp(L,"a1"))
        a("@wvm wo1_7"); a(s.op_rd(0,6))
        a(s.att_fin(L,1,O[1],32))

    def op_rd(s, i0, i1):
        return [f"ds_read_b128 {v(T+4*(i%6),4)}, v6 offset:{(1-i//8)*8192+(i%8)*1024} ;@oa{i}" for i in range(i0,i1)]
    def x_fetch(s, L, t):
        return s.loads([SX,SX+4], vL16, pStL, L*LOFF+S1_+t*8*KB, P1, "s1_", "sc1") + s.dmas(8, vL16, pQtr, L*LOFF+X1_+t*32*KB, sW8, LP+t*32*KB, P1, f"xd{t}_", "sc1")
    def op(s, L, t):
        a=s.a; acc=ACC[t]
        Ls=a.label("opst"); obl=lambda tt: s.loads([OB+4*i for i in range(8)], vL16, pQtr, L*LOFF+O_+tt*32*KB, P0, "ob", "sc1")
        sl=s.ksplit(acc, lambda c,k:T+4*(((1-c)*8+k)%6), lambda k:OB+4*k, "ob", False,
                    pre=lambda i:[f"@wlg oa{i}"], post=lambda i:(s.op_rd(i+6,i+7) if i+6<16 else []), c0init=None,
                    chk=s.check(L,t,acc+16,obl(t)+s.op_rd(0,6),Ls))
        ini=flat([[f"v_lshlrev_b32 v{acc+2*i}, 16, v{XR[t]+i}", f"v_and_b32 v{acc+2*i+1}, 0xffff0000, v{XR[t]+i}"] for i in range(4)])+[f"v_mov_b32 v{acc+8+i}, 0" for i in range(8)]
        weave(sl, ini+s.red_addr("C" if t==0 else "R"), 0, 7)
        nx = obl(1) if t==0 else s.x_fetch(L,0)
        if t==1 and XE:
            sl[XE]+=s.gate(L,2); weave(sl, nx[:XN], XE, 16); sl[-2]+=s.flag(L,2,"xst"); nx=[[]]*3+nx[XN:]
        else:
            sl[-2]+=(s.flag(L,1,"ost1")+s.gate(L,1) if t==0 else s.flag(L,2,"xst")+s.gate(L,2))+flat(nx[:3])
        a(f"{Ls}:"); a(sl); a(s.stamp(L,f"o{t}b"))
        a(s.red_read())
        e=s.red_add(acc)+(s.op_rd(0,6) if t==0 else [])+s.emit_x(acc, t, L*LOFF+X1_, L*LOFF+S1_, acc+8)
        k=e.index(f"s_cmp_eq_u32 s{sPure}, 0")
        sl=[[x] for x in e[:k]]+[e[k:]]
        a(nx[3:5]); weave(sl, nx[5:], 2, k); a(sl); a(s.stamp(L,f"o{t}e"))

    def silu(s, L, t, c, pk):
        acc=ACC[t]; E=T+16; sc=vA+2*t; out=[]
        for h in range(2):
            b=acc+16*c+8*h
            if pk:
                out+=[f"v_pk_mul_f32 {v(E+2*i,2)}, {v(b+2*i,2)}, {v(sc,2)}" for i in range(4)]
                out+=[f"v_exp_f32 v{E+i}, v{E+i}" for i in range(8)]
                out+=[f"v_pk_add_f32 {v(E+2*i,2)}, {v(E+2*i,2)}, s[{sONE}:{sONE+1}]" for i in range(4)]
                out+=[f"v_rcp_f32 v{E+i}, v{E+i}" for i in range(8)]
                out+=[f"v_pk_mul_f32 {v(E+2*i,2)}, {v(b+2*i,2)}, {v(E+2*i,2)}" for i in range(4)]
                out+=[f"v_cvt_pk_bf16_f32 v{b+i}, v{E+2*i}, v{E+2*i+1}" for i in range(4)]
            else:
                mu=[f"v_mul_f32 v{E+i}, v{sc}, v{b+i}" for i in range(8)]; exx=[f"v_exp_f32 v{E+i}, v{E+i}" for i in range(8)]
                ad=[f"v_add_f32 v{E+i}, 1.0, v{E+i}" for i in range(8)]; rc=[f"v_rcp_f32 v{E+i}, v{E+i}" for i in range(8)]
                m2=[f"v_mul_f32 v{E+i}, v{b+i}, v{E+i}" for i in range(8)]; cv=[f"v_cvt_pk_bf16_f32 v{b+i}, v{E+2*i}, v{E+2*i+1}" for i in range(4)]
                out+=[mu[0:5],[mu[5],exx[0],exx[1]],[mu[6],exx[2],exx[3]],[mu[7],exx[4],exx[5]],[ad[0],exx[6],exx[7]],
                      [ad[1],ad[2],ad[3],rc[0]],[ad[4],rc[1],rc[2]],[ad[5],rc[3],rc[4]],[ad[6],ad[7],m2[0],rc[5]],[m2[1],rc[6],rc[7]],
                      m2[2:7],[m2[7]]+cv]
            out.append([f"s_add_u32 s{t1_}, s{sHs[c]}, {L*LOFF+t*112*KB+h*1024}"]+s.pub([f"buffer_store_dwordx4 {v(b,4)}, v{vL16}, {WSR}, s{t1_} offen {{F}} ;@hst{t}"]))
        return out
    def f1_sync(s, L, t):
        c=([],[]); Ls=s.a.label("f1sy")
        if t==0: c=s.check(L,2,SX,s.x_fetch(L,0),Ls)
        return [f"{Ls}:","@wvm s1_1"]+s.sum8(SX)+c[0]+s.stat_wr(SX,SX+1,t)+[f"@wvm xd{t}_7","@wlg rw"]+c[1]+["s_barrier"]
    def f1(s, L):
        a=s.a
        def rd(n):
            q,ks=n//32,n%32
            return [f"ds_read_b128 {v(T+4*(n%4),4)}, v{vL16} offset:{LP+(q//2)*32*KB+ks*1024} ;@xb{n}"]
        a(s.f1_sync(L,0)); a(s.stamp(L,"f1s"))
        Ls=a.label("f1st"); a(f"{Ls}:")
        a(rd(0)+rd(1)+rd(2)+["@wlg xb0", "@wvm w11_31"])
        sl=[];
        for n in range(128):
            q,ks=n//32,n%32; t,c=q//2,q%2
            p=[mf(ACC[t]+16*c, W1R(c,ks), T+4*(n%4), "0" if ks==0 else None)]
            if n+3<128: p+=rd(n+3)
            if n+1<128: p+=[f"@wlg xb{n+1}"]
            sl.append(p)
        for q in range(4):
            sl[32*q+31]+=[mf(ACC[q//2]+16*(q%2), CS1R, vBX+2-2*(q%2))]+s.stamp(L,f"f1q{q}")
        def stat(t,X):
            r=s.rstd(X,vRs[t])
            return [s.stat_rd(X,t,"st"), [], ["@wlg st"]+r[:4], r[4:8], r[8:], s.bext(X,X+1), [f"v_mul_f32 v{vA+2*t}, {f2u(-LOG2E):#x}, v{vRs[t]}", f"v_mov_b32 v{vA+2*t+1}, v{vA+2*t}"]]
        weave(sl, stat(0,SX+4), 0, 8)
        allx=[[f"s_sub_u32 s{P2}, s{pQtr}, s{sW8}", f"s_subb_u32 s{P2+1}, s{pQtr+1}, 0", f"s_mov_b32 s{t1_}, 0"]]+s.dmas(32, vL16, P2, L*LOFF+X1_, t1_, LP, P1, "z", "sc1")
        c=s.check(L,2,ACC[0],allx,Ls,allcu=True,idn=20+L)
        sl[34]+=c[0]; sl[35]+=c[1]
        w2=[]
        for c in range(2): w2+=s.loads([W2R(2*k+c) for k in range(12,16)], vL16x, pW2[c], 12*KB, P0, f"w2b{c}_")
        sl[3]+=s.flag(L,3,"xst")
        weave(sl, w2[:4], 4, 12)
        sl[12]+=s.poll_i(L,3)
        weave(sl, w2[4:], 13, 22)
        sl[23]+=s.poll_c(L,3)
        weave(sl, s.x_fetch(L,1), 24, 42)
        wq=[]
        if L==0:
            for c in range(2): wq+=s.dmas(8, vL16x, pWQ[c], WQF, s16, LR+c*8192, P1, f"wq{c}_", "nt" if NT else "")
            weave(sl, wq[:12], 42, 66)
        weave(sl, s.silu(L,0,0,False), 36, 60)
        sl[60]+=s.f1_sync(L,1)
        weave(sl, stat(1,SX+4)[:5], 61, 65)
        sl[65]+=flat(stat(1,SX+4)[5:])
        weave(sl, s.silu(L,0,1,False), 66, 92)
        wc=[s.loads([W2R(32+2*kk+c) for kk in range(12)], vL16x, pW2[c], 16*KB, P0+4*c, f"w2c{c}_") for c in range(2)]
        wcl=[wc[i%2][i//2] for i in range(24)]
        s.wcr=wcl[24-NWR:]
        weave(sl, wq[12:]+wcl[:24-NWR], 66, HS)
        weave(sl, s.silu(L,1,0,False), 98, 124)
        s.hl=[s.loadp([HWR(28*t+k) for k in range(28)], vL16, pHl, t*112*KB, P1, f"h{t}_", "sc1", 0) for t in range(2)]
        sl[HS]+=s.gate(L,4); weave(sl, s.hl[0][:NH], HS, 128)
        a(sl)
    def f2(s, L):
        a=s.a
        hl=s.hl
        for t in range(2):
            acc=ACC[t]; sl=[]
            order=[(ks,c) for ks in range(22) for c in (1,0)]+[(ks,1) for ks in range(22,28)]+[(ks,0) for ks in range(22,28)]
            for (ks,c) in order:
                p=[]
                if c==1:
                    w=[f"h{t}_{ks}"]
                    if t==0: w+= [f"w2{cc}_{ks}" if ks<12 else (f"w2b{cc}_{ks-12}" if ks<16 else f"w2c{cc}_{ks-16}") for cc in range(2)]
                    p=[f"@wvm {' '.join(w)}"]
                p.append(mf(acc+16*c, W2R(2*ks+c), HWR(28*t+ks), "0" if ks==0 else None))
                if t==1 and c==0 and ks+16<28: p+=hl[t][ks+16]
                sl.append(p)
            Ls=a.label("f2st")
            if t==0:
                mm=[[x for x in p if "mfma" in x] for p in sl]
                for i,k in enumerate(range(NH,28)): sl[max(i*24//(28-NH), 2*(k-16)+1)]+=hl[0][k]
                weave(sl, s.silu(L,1,1,False), 1, SE)
                sl[SE+2]+=s.flag(L,4,"hst0")
                if L==0:
                    cp=[[f"s_add_u32 s{t1_}, s{s16}, {LR}", f"v_add_u32 v{vA}, s{t1_}, v{vL16}", "@wvm wq1_7"]]+[f"ds_read_b128 {R(WQR(c,k))}, v{vA} offset:{c*8192+k*1024} ;@wqr" for c in range(2) for k in range(8)]
                    weave(sl, cp, SE-4, 48)
                for k in range(10): sl[25+2*k]+=hl[1][k]
                sl[44]+=s.gate(L,5,hl[1][:10])
            else: sl[2]+=s.flag(L,5,"hst1")
            if t==1 and L==0:
                sl[24]+=s.wkv_loads()+s.gate(L,6)
                weave(sl, s.qkv_loads(1,0), 25, 45)
                sl[34]+=s.flag(L,6,"xst")
            if ATS==2:
                for q in (7,15,23,31,39,47,55): sl[q]+=s.stamp(L,f"s{q}")
            sl[48]+=flat(s.red_addr("C" if t==0 else "P"))
            w=s.red_write(acc)
            if t==0:
                c=s.check(L,4,acc+16,hl[0][:16]+["s_waitcnt vmcnt(0)"]+mm[:32]+hl[0][16:]+["s_waitcnt vmcnt(0)"]+mm[32:54]+hl[1][:10],Ls)
                c=(c[0],c[1]+[f"{Ls}:"])
            else:
                c=s.check(L,5,acc+16,hl[1][:16],Ls); a(f"{Ls}:")
            sl[52]+=c[0]; sl[53]+=c[1]+[w[2]]; sl[54]+=[w[3]]; sl[55]+=w[4:6]
            a(sl)
            if t==0: a(hl[1][10:12])
            a(w[:2]); a("@wlg rw\ns_barrier"); a(s.stamp(L,f"f2{t}b")); a(s.red_read())
            if t==0: a(hl[1][12:16])
            for i in range(4): a(f"v_lshlrev_b32 v{acc+8+2*i}, 16, v{XR[t]+i}\nv_and_b32 v{acc+8+2*i+1}, 0xffff0000, v{XR[t]+i}")
            a(s.red_add(acc))
            for i in range(8): a(f"v_fma_f32 v{acc+i}, v{vRs[t]}, v{acc+i}, v{acc+8+i}")
            if L==0:
                a(s.emit_x(acc, t, LOFF+XA_, LOFF+SA_, acc+8))
                if t==1: a(s.cs_loads())
            else:
                x=XR[t]
                for i in range(4): a(f"v_cvt_pk_bf16_f32 v{x+i}, v{acc+2*i}, v{acc+2*i+1}")
                a(f"""v_and_b32 v{acc}, 31, v0
                v_lshlrev_b32 v{acc}, 10, v{acc}
                v_lshrrev_b32 v{acc+1}, 5, v0
                v_lshl_add_u32 v{acc}, v{acc+1}, 4, v{acc}
                v_permlane32_swap_b32 v{x}, v{x+2}
                v_permlane32_swap_b32 v{x+1}, v{x+3}
                s_lshl_b32 s{t1_}, s{sJ}, 2
                s_add_u32 s{t1_}, s{t1_}, s{sW}
                s_lshl_b32 s{t1_}, s{t1_}, 5
                s_lshl_b32 s{t2_}, s{sG}, 16
                s_add_u32 s{t1_}, s{t1_}, s{t2_}
                s_add_u32 s{t1_}, s{t1_}, {t*32*KB}
                buffer_store_dwordx4 {v(x,4)}, v{acc}, s[8:11], s{t1_} offen""")
            a(s.stamp(L,f"f2{t}e"))

    def pfc(s, r, skip):
        if not PFC: return []
        Lp=s.a.label("pc")
        return [f"s_getpc_b64 s[{P2}:{P2+1}]", f"{Lp}:", f"s_lshr_b32 s{t1_}, s2, 3", f"s_lshl_b32 s{t1_}, s{t1_}, 2", f"s_add_u32 s{t1_}, s{t1_}, s{sW}", f"s_lshl_b32 s{t1_}, s{t1_}, 8", f"s_add_u32 s{t1_}, s{t1_}, {skip}",
                f"s_min_u32 s{t1_}, s{t1_}, {s.a.endl}-{Lp}-256", f"s_add_u32 s{P2}, s{P2}, s{t1_}", f"s_addc_u32 s{P2+1}, s{P2+1}, 0", f"global_load_dword v{r}, v{vL4}, s[{P2}:{P2+1}]"]
    def stats0(s, t):
        sq=SQ[t]; o=[]
        for i in range(32):
            if i%4==0: o+=[f"@wlg xl{t}_{i//4}"]
            o+=[f"v_dot2_f32_bf16 v{sq}, v{BQ[t]+i}, v{vOnes}, {'0' if i==0 else v(sq)}", f"v_dot2_f32_bf16 v{sq+1}, v{BQ[t]+i}, v{BQ[t]+i}, {'0' if i==0 else v(sq+1)}"]
        return o+[f"v_permlane32_swap_b32 v{sq}, v{sq+1}", f"v_add_f32 v{sq}, v{sq}, v{sq+1}"]
    def pro1(s, GR):
        a=s.a; pX,pQ,pK,pV,pD=42,48,50,52,66; X=144; Y=148
        Lk=a.label("nokv"); Ln=a.label("nn"); Lm=a.label("nm")
        if PFC:
            a(f"""s_getpc_b64 s[56:57]
            Lpc0:
            s_mov_b32 s58, {a.endl}-Lpc0
            s_mov_b32 s59, 0x20000
            s_lshl_b32 s60, s2, 9
            s_and_b32 s60, s60, 0x1f000
            v_lshlrev_b32 v1, 4, v0
            buffer_load_dwordx4 {v(OB,4)}, v1, s[56:59], s60 offen""")
        a(f"""s_load_dwordx2 s[{pX}:{pX+1}], s[0:1], 0
        s_load_dwordx4 s[{pQ}:{pQ+3}], s[0:1], 8
        s_load_dwordx2 s[{pV}:{pV+1}], s[0:1], 24
        s_load_dwordx2 s[{pD}:{pD+1}], s[0:1], 72
        s_load_dwordx2 s[4:5], s[0:1], 80
        s_load_dwordx2 s[8:9], s[0:1], 64
        s_cmp_lt_u32 s2, 80
        s_cselect_b32 s60, 32, 56
        s_cmp_ge_u32 s2, 136
        s_cselect_b32 s60, 48, s60
        s_load_dwordx2 s[{pJ}:{pJ+1}], s[0:1], s60
        s_memrealtime s[62:63]
        v_lshrrev_b32 v1, 6, v0
        v_readfirstlane_b32 s{sW}, v1
        v_and_b32 v0, 63, v0
        s_and_b32 s{sG}, s2, 31
        s_lshr_b32 s{sJ}, s2, 5
        v_lshlrev_b32 v{vL16}, 4, v0
        v_lshrrev_b32 v{Y}, 4, v0
        v_xor_b32 v{X}, v0, v{Y}
        v_and_b32 v{X}, 15, v{X}
        v_lshlrev_b32 v{X}, 4, v{X}
        v_lshl_add_u32 v{X}, v{Y}, 10, v{X}""")
        for q in range(1,4): a(f"v_xor_b32 v{X+q}, {q<<6}, v{X}\nv_add_u32 v{X+q}, {q*3072}, v{X+q}")
        a(f"""v_lshrrev_b32 v{Y+1}, 3, v0
        v_and_b32 v{Y}, 3, v{Y+1}
        v_lshlrev_b32 v{Y}, 1, v{Y}
        v_xor_b32 v{Y}, v0, v{Y}
        v_and_b32 v{Y}, 7, v{Y}
        v_lshlrev_b32 v{Y}, 4, v{Y}
        v_lshl_add_u32 v{Y}, v{Y+1}, 10, v{Y}""")
        for q in range(1,4): a(f"v_add_u32 v{Y+q}, {q*7168}, v{Y}")
        a(f"""s_lshl_b32 s{sW8}, s{sW}, 13
        s_lshl_b32 s{s16}, s{sW}, 14
        s_lshl_b32 s{sKVd}, s{sW}, 12
        s_lshl_b32 s60, s{sG}, 16
        s_lshl_b32 s61, s{sW}, 8
        s_add_u32 s61, s61, s60
        s_lshl_b32 s54, s{sW}, 17
        s_lshl_b32 s55, s{sJ}, 7
        s_add_u32 s54, s54, s55
        s_add_u32 s55, s{sW8}, {KVL}
        s_waitcnt lgkmcnt(0)
        s_or_b32 s56, s2, s{sW}
        s_cmp_lg_u32 s56, 0
        s_cbranch_scc1 {Ln}
        @optb
        s_lshl_b32 s62, s62, 4
        s_bitset1_b32 s62, 31
        v_mov_b32 v{vP}, s62
        v_mov_b32 v{vP+1}, 0
        s_mov_b64 exec, 1
        global_store_dword v{vP+1}, v{vP}, s[{pD}:{pD+1}] sc1
        s_mov_b64 exec, -1
        @opte
        {Ln}:
        s_mov_b32 s6, {WS_SIZE}
        s_mov_b32 s7, 0x20000""")
        Lt=a.label("nt")
        a(f"""s_cmp_ge_u32 s{sJ}, 2
        s_cbranch_scc1 {Lt}
        @optb
        s_mul_i32 s44, s{sJ}, {KVH}
        s_mul_i32 s45, s{sG}, {KVT}
        s_add_u32 s44, s44, s45
        s_add_u32 s44, s44, {KVI}
        s_lshl_b32 s45, s{sJ}, 13
        s_lshl_b32 s46, s{sG}, 8
        s_add_u32 s45, s45, s46
        s_add_u32 s45, s45, {KVF}
        s_cmp_eq_u32 s{sW}, 1
        s_cselect_b32 s44, s45, s44
        s_cselect_b32 s45, 2, 5
        v_lshlrev_b32 v{T+2}, s45, v0
        s_cmp_ge_u32 s{sW}, 2
        s_cbranch_scc1 {Lt}
        buffer_load_dword v{T+3}, v{T+2}, {WSR}, s44 offen sc1
        @opte
        {Lt}:""")
        a(f"""s_lshl_b32 s56, s{sJ}, 13
        s_add_u32 s56, s56, s60
        s_lshr_b32 s57, s{sG}, 3
        s_lshl_b32 s57, s57, 1
        s_and_b32 s58, s{sW}, 1
        s_add_u32 s57, s57, s58
        s_lshl_b32 s57, s57, 16
        s_lshl_b32 s58, s{sJ}, 7
        s_add_u32 s57, s57, s58
        s_cmp_lt_u32 s{sW}, 2
        s_cselect_b32 s56, s57, s56
        s_cselect_b32 s57, 10, 7
        s_cselect_b64 s[{P0}:{P0+1}], s[{pQ}:{pQ+1}], s[{pX}:{pX+1}]
        s_bitcmp1_b32 s2, 4
        s_cselect_b64 s[58:59], s[{pV}:{pV+1}], s[{pK}:{pK+1}]
        s_and_b32 s62, s2, 8
        s_lshl_b32 s62, s62, 10
        s_cmp_eq_u32 s{sW}, 3
        s_cselect_b32 s56, s62, s56
        s_cselect_b64 s[{P0}:{P0+1}], s[58:59], s[{P0}:{P0+1}]
        v_lshlrev_b32 v{T}, s57, v0
        v_add_u32 v{T}, s56, v{T}
        global_load_dword v{T+1}, v{T}, s[{P0}:{P0+1}]
        s_add_u32 s{P2}, s{pX}, s61
        s_addc_u32 s{P2+1}, s{pX+1}, 0
        s_add_u32 s{pQ2}, s{pQ}, s54
        s_addc_u32 s{pQ2+1}, s{pQ+1}, 0""")
        def xd(t):
            o=[]
            for i in range(8):
                o.append(([f"s_add_u32 m0, s{s16}, {t*8192+i*1024}"]+s.base(P0,P2,t*32768+i*4096) if i%4==0 else [])+[f"global_load_lds_dwordx4 v{X+i%4}, s[{P0}:{P0+1}] offset:{(i%4)*1024} ;@x{t}_{i}"])
            return o
        s.xd0=xd(0); s.xd1=xd(1); a(s.xd0)
        s.wqd=[([f"s_add_u32 m0, s{s16}, {WQL+i*1024}"]+s.base(P0,pQ2,i*8192) if i%4==0 else [])+[f"global_load_lds_dwordx4 v{Y+i%4}, s[{P0}:{P0+1}] offset:{(i%4)*1024} ;@wq{i}"] for i in range(16)]
        a(f"""
        s_mov_b32 s6, {WS_SIZE}
        s_mov_b32 s7, 0x20000
        v_lshlrev_b32 v{vL4}, 2, v0
        s_and_b32 s60, s{sW}, 1
        s_lshl_b32 s{sKVl}, s60, 10
        s_lshl_b32 s60, s60, 8
        v_xor_b32 v{vL16x}, s60, v{vL16}
        """)
    def setup2(s):
        a=s.a; GR=3
        a(f"""s_mov_b32 s10, {2*MB}
        s_mov_b32 s11, 0x20000
        s_lshl_b32 s{GR}, s{sG}, 20
        s_add_u32 s{GR}, s{GR}, {GBASE}
        s_add_u32 s{pQtr}, s{sW8}, s{GR}
        s_lshl_b32 s{pStL}, s{sW}, 11
        s_add_u32 s{pStL}, s{pStL}, s{GR}
        s_lshr_b32 s63, s{sW}, 1
        s_lshl_b32 s62, s{sJ}, 1
        s_add_u32 s63, s63, s62
        s_lshl_b32 s{pWQ[0]}, s63, 15
        s_add_u32 s{pWQ[0]}, s{pWQ[0]}, s{sW8}
        s_xor_b32 s{pWQ[1]}, s{pWQ[0]}, {32*KB}""")
        for p in (pQtr,pStL,pWQ[0],pWQ[1]): a(f"s_add_u32 s{p}, s4, s{p}\ns_addc_u32 s{p+1}, s5, 0")
        a(f"""s_lshl_b32 s60, s{sJ}, 2
        s_add_u32 s60, s60, s{sW}               ; 4j+w
        s_lshl_b32 s{sOwn}, s60, 10
        s_add_u32 s{sOwn}, s{sOwn}, s{GR}
        s_add_u32 s{sFlS}, s60, s{GR}
        s_add_u32 s{sFlS}, s{sFlS}, {FL_}
        s_lshl_b32 s{sFlP}, s{sW}, 3
        s_add_u32 s{sFlP}, s{sFlP}, s{GR}
        s_add_u32 s{sFlP}, s{sFlP}, {FL_}
        s_lshl_b32 s{sStS}, s{sJ}, 10
        s_lshl_b32 s60, s{sW}, 2
        s_add_u32 s{sStS}, s{sStS}, s60
        s_add_u32 s{sStS}, s{sStS}, s{GR}
        s_mul_i32 s60, s{sJ}, 7
        s_lshl_b32 s61, s{sW}, 1
        s_add_u32 s60, s60, s61                 ; F1 cb0 = 7j+2w
        s_lshl_b32 s{sHs[0]}, s60, 11
        s_add_u32 s{sHs[0]}, s{sHs[0]}, s{GR}
        s_add_u32 s{sHs[0]}, s{sHs[0]}, {H_}
        s_add_u32 s{sHs[1]}, s{sHs[0]}, 2048
        s_lshl_b32 s{pW1[0]}, s60, 15
        s_add_u32 s{pW1[0]}, s{pW1[0]}, {W1F}
        s_add_u32 s{pW1[1]}, s{pW1[0]}, {32*KB}
        s_cmp_eq_u32 s{sW}, 3
        s_cselect_b32 s{sHs[1]}, s{sHs[0]}, s{sHs[1]}
        s_cselect_b32 s{pW1[1]}, s{pW1[0]}, s{pW1[1]}
        s_mul_i32 s{pHl}, s{sW}, {28*KB}
        s_mul_i32 s{pW2[0]}, s63, {112*KB}
        s_xor_b32 s63, s63, 1
        s_mul_i32 s{pW2[1]}, s63, {112*KB}
        s_add_u32 s60, s{pHl}, {W2F}
        s_add_u32 s{pW2[0]}, s{pW2[0]}, s60
        s_add_u32 s{pW2[1]}, s{pW2[1]}, s60
        s_add_u32 s{pHl}, s{pHl}, s{GR}
        s_add_u32 s{pHl}, s{pHl}, {H_}
""")
        for p in (pHl,pW2[0],pW2[1],pW1[0],pW1[1]): a(f"s_add_u32 s{p}, s4, s{p}\ns_addc_u32 s{p+1}, s5, 0")
        a(f"s_mov_b32 s{sLast}, 0")
    def tra(s, r, sh):
        return f"""v_lshrrev_b32 v{r}, 5, v0
        v_bfe_u32 v{r+2}, v0, 2, 2
        v_lshl_add_u32 v{r}, v{r}, 2, v{r+2}
        v_lshlrev_b32 v{r}, {sh}, v{r}
        v_and_b32 v{r+1}, 3, v0
        v_lshl_add_u32 v{r}, v{r+1}, 3, v{r}
        v_bfe_u32 v{r+1}, v0, 4, 1"""
    def hilo(s, r, d):
        return [f"v_cvt_pk_bf16_f32 v{r+1}, v{r}, v{r}", f"v_and_b32 v{r+1}, 0xffff0000, v{r+1}", f"v_sub_f32 v{r+1}, v{r}, v{r+1}", f"v_cvt_pk_bf16_f32 v{r}, v{r}, v{r+1}",
                f"v_cndmask_b32 v{d}, 0, v{r}, vcc", f"v_cndmask_b32 v{d+1}, 0, v{r}, vcc"]
    def sw(s,r): return [f"v_permlane32_swap_b32 v{r}, v{r+2}", f"v_permlane32_swap_b32 v{r+1}, v{r+3}"]
    def xr(s,t): return [f"ds_read_b64 {v(BQ[t]+4*k+2*h,2)}, v{(152,216)[h]+k} offset:{t*8192} ;@xl{t}_{k}" for k in range(8) for h in range(2)]
    def pro2(s, GR):
        a=s.a; X=152; Y=192; ON=T+16; Z=T+20; U=214
        Lk=a.label("nokv"); Lm=a.label("m")
        a(f"""v_and_b32 v{X}, 31, v0
        v_lshrrev_b32 v{X+1}, 5, v0
        v_lshlrev_b32 v{U}, 10, v{X}
        v_lshl_add_u32 v{U}, v{X+1}, 4, v{U}
        s_lshl_b32 s60, s{sJ}, 7
        s_mul_i32 s61, s{sW}, {32-256}
        s_add_u32 s60, s60, s61
        s_add_u32 s60, s60, 1024
        v_add_u32 v{U}, s60, v{U}
        v_and_b32 v{X+2}, 15, v{X}
        v_lshl_add_u32 v{X+1}, v{X+2}, 1, v{X+1}
        v_lshlrev_b32 v{X+1}, 3, v{X+1}
        v_lshl_add_u32 v{X}, v{X}, 8, v{X+1}
        v_add_u32 v{X}, s{s16}, v{X}""")
        for k in range(1,8): a(f"v_xor_b32 v{X+k}, {k<<5}, v{X}")
        for k in range(8): a(f"v_xor_b32 v{216+k}, {(k<<5)+16}, v{X}")
        a(s.tra(Y,7))
        a(f"""v_xor_b32 v{Y+3}, s{sW}, v{Y+1}
        v_xor_b32 v{Y+3}, v{Y+3}, v{Y+2}
        v_lshl_add_u32 v{Y+3}, v{Y+3}, 5, v{Y}
        s_add_u32 s60, s{s16}, {WQL}
        v_add_u32 v{Y+3}, s60, v{Y+3}
        v_xor_b32 v{Y+4}, 64, v{Y+3}
        v_and_b32 v{Y+7}, 124, v{vL4}
        s_lshl_b32 s61, s{sW}, 6
        v_xor_b32 v{Y+5}, s61, v{Y+7}
        v_add_u32 v{Y+5}, {WQL}, v{Y+5}
        v_xor_b32 v{Y+6}, 128, v{Y+5}
        v_add_u32 v{Y+7}, {KVL}, v{Y+7}
        v_add_u32 v{Y}, s{s16}, v{Y+5}
        v_add_u32 v{Y+1}, s{s16}, v{Y+6}
        s_lshl_b32 s61, s{sW}, 7
        v_add_u32 v{Y+2}, s61, v{Y+7}
        s_add_u32 s61, s{sW8}, {KVL}""")
        for i in range(4): a(f"v_mov_b32 v{ON+i}, v{vOnes}")
        a(s.tra(Z,5)); a(f"v_lshl_add_u32 v{Z}, v{Z+1}, 12, v{Z}\nv_add_u32 v{Z}, s61, v{Z}")
        a(f"""s_cmp_lt_u32 s2, 80
        s_cselect_b32 s60, 64, 80
        s_sub_u32 s60, s2, s60
        s_lshl_b32 s60, s60, 15
        s_lshr_b32 s61, s{sW}, 1
        s_lshl_b32 s61, s61, 14
        s_add_u32 s60, s60, s61
        s_lshr_b32 s61, s{sKVl}, 1
        s_add_u32 s60, s60, s61
        s_sub_u32 s61, s2, 136
        s_lshl_b32 s61, s61, 6
        s_mul_i32 s62, s{sW}, {128*3584}
        s_add_u32 s61, s61, s62
        s_cmp_ge_u32 s2, 136
        s_cselect_b32 s60, s61, s60
        s_cselect_b32 s3, {16*3584}, 64
        s_movk_i32 s62, 1024
        s_cmovk_i32 s62, 3584
        s_sub_u32 s61, s2, 64
        s_cmp_ge_u32 s61, 128
        s_cmov_b32 s60, 0
        s_cmov_b32 s3, 0
        s_cmov_b32 s62, 0
        v_lshrrev_b32 v{U+1}, 2, v0
        v_mul_lo_u32 v{U+1}, v{U+1}, s62
        v_and_b32 v{T}, 48, v{vL16}
        v_add_u32 v{U+1}, v{U+1}, v{T}
        s_add_u32 s{pJ}, s{pJ}, s60
        s_addc_u32 s{pJ+1}, s{pJ+1}, 0
        v_mov_b32 v{vP+1}, 0
        global_load_dword v{vP}, v{vP+1}, s[66:67] sc1 ;@non""")
        a(s.stamp(0,"set"))
        st=lambda: [[x] for x in ["@wvm x0_7"]+s.xr(0)+s.stats0(0)]
        a(f"s_cmp_ge_u32 s{sJ}, 2\ns_cbranch_scc1 {Lk}\n@optb")
        for u in range(2):
            a(f"s_add_u32 m0, s{sW8}, {KVL+u*4096}\ns_add_u32 s{P0}, s{50+2*u}, s{sKVd}\ns_addc_u32 s{P0+1}, s{51+2*u}, 0")
            for i in range(4): a(f"global_load_lds_dwordx4 v{vL16}, s[{P0}:{P0+1}] offset:{i*1024} ;@wkd")
        o=st()+[["@wvm wkd"]]
        o+=[[f"ds_read_b64_tr_b16 {R(WKR(k)+2*h,2)}, v{Z} offset:{k*512+h*256} ;@wk{k}"] for k in range(8) for h in range(2)]
        weave(o, s.wqd[:8], 17)
        for k in range(8): o+=[[f"@wlg wk{k}", mf(KACC, ON, WKR(k), "0" if k==0 else None)]+(s.wqd[8+k//2] if k%2 else [])]
        a(o); a(f"s_barrier\nds_write_b32 v{Y+2}, v{KACC} ;@cw"); a(s.wqd[12:14]); a("@wlg cw\ns_barrier")
        for k in range(4): a(f"ds_read_b32 v{64+k}, v{Y+7} offset:{k*128} ;@cr")
        a(s.wqd[14:])
        a(f"v_cmp_gt_u32 vcc, 32, v0\n@wlg cr\nv_add_f32 v64, v64, v65\nv_add_f32 v66, v66, v67\nv_add_f32 v64, v64, v66"); a(s.hilo(64,CSK))
        a(f"s_branch {Lm}\n@opte\n{Lk}:"); a(s.wqd[:NW0])
        o=st(); weave(o, s.wqd[NW0:], 17); a(o)
        Lw=a.label("nw"); Lr=a.label("nr")
        a(f"""{Lm}:
        s_waitcnt lgkmcnt(0)
        s_mov_b32 s0, 0
        s_mov_b32 s{sPure}, 0
        s_mov_b32 s{sBud}, 100000""")
        a(["@wvm non", f"v_readfirstlane_b32 s{sNon}, v{vP}", f"s_cmp_lg_u32 s{sNon}, 0", f"s_cbranch_scc0 {Lr}", f"{Lw}:", f"s_or_b32 s{sXcc}, s{sXcc}, s{sNon}"])
        s.ool+=[f"{Lr}:", f"s_sub_u32 s{sBud}, s{sBud}, 1", f"s_cmp_lt_i32 s{sBud}, 0", f"s_cbranch_scc1 {Lw}", f"global_load_dword v{vP}, v{vP+1}, s[66:67] sc1", "s_waitcnt vmcnt(0)",
                f"v_readfirstlane_b32 s{sNon}, v{vP}", f"s_cmp_lg_u32 s{sNon}, 0", f"s_cbranch_scc1 {Lw}", f"s_branch {Lr}"]
        a(s.stamp(0,"st0"))
    def pro3a(s):
        Y=192; ON=T+16; acc=QACC[0]; U=214; o=[]
        ld=s.xd1+[[f"global_load_dwordx4 {v(XR[0],4)}, v{U}, s[{P2}:{P2+1}] offset:-1024"], [f"v_add_u32 v{U}, 32768, v{U}", f"global_load_dwordx4 {v(XR[1],4)}, v{U}, s[{P2}:{P2+1}] offset:-1024 ;@xr"]]
        ld+=[[f"s_add_u32 m0, s{s16}, {WQL+1024+i*1024}", f"global_load_lds_dwordx4 v{U+1}, s[{pJ}:{pJ+1}]", f"s_add_u32 s{pJ}, s{pJ}, s3", f"s_addc_u32 s{pJ+1}, s{pJ+1}, 0"] for i in range(8)]
        for k in range(9):
            p=[]
            if k<8: p=[f"@wvm wq{2*k+1}"]+[f"ds_read_b64_tr_b16 {R(WQR(c,k)+2*h,2)}, v{Y+3+c} offset:{k*2048+h*1024} ;@wt{k}" for c in range(2) for h in range(2)]
            if k==0: o+=[p+ld[0]+ld[1]]; continue
            m=[mf(OB+16*c, ON, WQR(c,k-1), "0" if k==1 else None) for c in range(2)]+[mf(acc+16*c, WQR(c,k-1), BQ[0]+4*(k-1), "0" if k==1 else None) for c in range(2)]
            o+=[p+[f"@wlg wt{k-1}", m[0]], [m[1]]+ld[2*k], [m[2]], [m[3]]+ld[2*k+1]]
        return o
    def pro3(s, kf):
        a=s.a; Y=192; acc=QACC[0]; o=[]
        o+=s.stamp(0,"wq")
        o+=[f"s_mov_b32 s{sONE}, 1.0", f"s_mov_b32 s{sONE+1}, 1.0"]
        o+=[f"ds_write_b32 v{Y+c}, v{OB+16*c} ;@cw" for c in range(2)]+["@wvm xr"]+s.xr(1)+["@wlg cw", "s_barrier"]+s.stamp(0,"bB")
        o+=[f"ds_read_b32 v{OB+4*i+k}, v{Y+5+i} offset:{k*16384} ;@cr{i}" for i in range(2) for k in range(4)]
        o+=s.sw(XR[0])+s.sw(XR[1])+["v_cmp_gt_u32 vcc, 32, v0"]
        for i in range(2):
            r=OB+4*i
            o+=[f"@wlg cr{i}", f"v_add_f32 v{r}, v{r}, v{r+1}", f"v_add_f32 v{r+2}, v{r+2}, v{r+3}", f"v_add_f32 v{r}, v{r}, v{r+2}"]+s.hilo(r,CSQR+2*i)
        w=s.red_write(acc)
        o+=[mf(acc+16,CSQR,vBX), mf(acc,CSQR,vBX+2)]+s.stamp(0,"ext")+w[2:]+w[:2]+[kf]+s.stamp(0,"rw")+s.stats0(1)+["@wlg rw","s_barrier"]
        return o
    def job1(s):
        a=s.a; Lj=a.label("nj"); ON=148; Z=152
        o=[f"""s_sub_u32 s60, s2, 64
        s_cmp_ge_u32 s60, 128
        s_cbranch_scc1 {Lj}
        @optb
        {s.tra(Z,6)}
        v_lshl_add_u32 v{Z}, v{Z+1}, 5, v{Z}
        s_add_u32 s60, s{s16}, {WQL}
        v_add_u32 v{Z}, s60, v{Z}
        s_waitcnt vmcnt(1)"""]+[f"ds_read_b64_tr_b16 {R(WKR(k)+2*h,2)}, v{Z} offset:{1024+k*1024+h*512}" for k in range(8) for h in range(2)]
        o+=["s_waitcnt lgkmcnt(0)", "s_cmp_lt_u32 s2, 136", f"s_cbranch_scc1 {Lj}"]+[f"v_mov_b32 v{ON+i}, v{vOnes}" for i in range(4)]
        o+=[mf(KACC, ON, WKR(k), "0" if k==0 else None) for k in range(8)]
        o+=[f"v_add_u32 v{Z}, s60, v{vL4}", f"v_add_u32 v{Z+1}, {WQL}, v{vL4}", f"ds_write_b32 v{Z}, v{KACC}", "s_waitcnt lgkmcnt(0)", "s_barrier"]
        o+=[f"ds_read_b32 v{Z+2+k}, v{Z+1} offset:{k*16384}" for k in range(4)]+["v_cmp_gt_u32 vcc, 32, v0", "s_waitcnt lgkmcnt(0)",
            f"v_add_f32 v{Z+2}, v{Z+2}, v{Z+3}", f"v_add_f32 v{Z+4}, v{Z+4}, v{Z+5}", f"v_add_f32 v{Z+2}, v{Z+2}, v{Z+4}"]+s.hilo(Z+2,CSK)
        return o+["@opte", f"{Lj}:"]
    def job2(s):
        a=s.a; Lj=a.label("nj"); Lg=a.label("ng"); Lz=a.label("nz"); L1=a.label("j1"); ON=148; T=144; o=[]
        cs=[y.replace("buffer_load","buffer_store").replace(f"v{vA+3},",f"v{T},").split(";@")[0]+(" sc1" if "_load" in y else "") for y in flat(s.cs_loads())]
        Lp=a.label("np")
        o+=[f"""s_cmp_ge_u32 s{sJ}, 2
        s_cbranch_scc1 {Lp}
        @optb
        s_mul_i32 s60, s{sJ}, {KVH}
        s_mul_i32 s61, s{sG}, {KVT}
        s_add_u32 s60, s60, s61
        s_lshl_b32 s61, s{sW}, 10
        s_add_u32 s60, s60, s61
        s_add_u32 s60, s60, {KVI+2*KVH}
        s_lshl_b32 s61, s{sJ}, 13
        s_lshl_b32 s62, s{sG}, 8
        s_add_u32 s61, s61, s62
        s_add_u32 s61, s61, {KVF+2*8192}
        s_cmp_eq_u32 s{sW}, 2
        s_cselect_b64 exec, 15, -1
        s_cmp_eq_u32 s{sW}, 3
        s_cselect_b32 s60, s61, s60
        s_cselect_b64 exec, 0xffff, exec
        buffer_store_dwordx4 {v(OB,4)}, v{vL16}, {WSR}, s60 offen sc1
        s_mov_b64 exec, -1
        @opte
        {Lp}:"""]
        o+=[f"s_cmp_gt_u32 s{sG}, 8", f"s_cbranch_scc1 {Lg}", "@optb", f"s_lshl_b32 s60, s{sG}, 10", f"v_add_u32 v{T}, s60, v{vL16x}", f"s_add_u32 s60, s60, s{sW8}", f"s_add_u32 s60, s60, {WKVF}"]
        for k in range(8):
            Ln=a.label("nk")
            o+=[f"s_cmp_lg_u32 s{sG}, {k}", f"s_cbranch_scc1 {Ln}"]+[f"global_store_dwordx4 v{T}, {R(WQR(c,k))}, s[{pWQ[c]}:{pWQ[c]+1}] sc1" for c in range(2)]
            o+=[f"s_cmp_lg_u32 s{sJ}, 0", f"s_cbranch_scc1 {Lg}", f"buffer_store_dwordx4 {R(WKR(k))}, v{vL16}, {WSR}, s60 offen sc1", f"s_branch {Lg}", f"{Ln}:"]
        assert WQF==0
        o+=cs[:-3]+[f"s_cmp_lg_u32 s{sJ}, 0", f"s_cbranch_scc1 {Lg}"]+cs[-3:]+["@opte", f"{Lg}:", f"s_cmp_lg_u32 s{sJ}, 6", f"s_cbranch_scc1 {Lz}", "@optb",
            f"s_lshl_b32 s61, s{sW}, 10", f"s_and_b32 s60, s{sFlP}, 0xffffff00", "s_add_u32 s61, s61, s60"]+[f"v_mov_b32 v{ON+i}, 0" for i in range(4)]
        o+=[f"""buffer_store_dwordx4 {v(ON,4)}, v{vL16}, {WSR}, s61 offen sc1
        @opte
        {Lz}:
        @optb
        s_movk_i32 s62, 1024
        s_sub_u32 s60, s2, 64
        s_cmp_ge_u32 s60, 128
        s_cbranch_scc1 {Lj}
        s_lshl_b32 s61, s2, 15
        s_add_u32 s61, s61, s{sW8}
        s_add_u32 s61, s61, {(W1F-136*32*KB)&0xffffffff:#x}
        s_lshl_b32 s63, s2, 9
        s_add_u32 s63, s63, {CS1-136*512}
        s_cmp_ge_u32 s2, 136
        s_cbranch_scc1 {L1}
        s_sub_u32 s60, s2, 80
        s_mul_i32 s61, s60, 37
        s_lshr_b32 s61, s61, 8
        s_mul_i32 s62, s61, 7
        s_sub_u32 s60, s60, s62
        s_and_b32 s62, s61, 1
        s_lshr_b32 s61, s61, 1
        s_mul_i32 s61, s61, 28
        s_add_u32 s61, s61, s60
        s_mul_i32 s63, s62, 6
        s_add_u32 s63, s63, 15
        s_lshl_b32 s62, s62, 3
        s_bitcmp1_b32 s60, 0
        s_cselect_b32 s62, s63, s62
        s_add_u32 s61, s61, s62
        s_lshl_b32 s61, s61, 10
        s_add_u32 s61, s61, {W2F}
        s_lshl_b32 s63, s2, 11
        s_add_u32 s63, s63, {WOF-64*2048}
        s_mov_b32 s62, {112*KB}
        s_cmp_lt_u32 s2, 80
        s_cmov_b32 s62, {32*KB}
        s_cmov_b32 s61, s63
        s_lshr_b32 s63, s{sW}, 1
        s_lshl_b32 s63, s63, 10
        s_add_u32 s61, s61, s63
        s_and_b32 s63, s{sW}, 1
        s_lshl_b32 s63, s63, 3
        s_mul_i32 s63, s63, s62
        s_add_u32 s61, s61, s63
        {L1}:
        v_lshrrev_b32 v{T}, 1, v{vL16}"""]
        for k in range(8): o+=[f"buffer_store_dwordx4 {R(WKR(k))}, v{vL16}, {WSR}, s61 offen sc1", "s_add_u32 s61, s61, s62"]
        o+=["s_cmp_eq_u32 s62, 1024", f"s_cbranch_scc0 {Lj}", f"buffer_store_dwordx2 {v(CSK,2)}, v{T}, {WSR}, s63 offen sc1", "@opte", f"{Lj}:"]
        return o

def k_main(a):
    s=M(a)
    def p64(p, src): a(f"s_add_u32 s{p}, s4, s{src}\ns_addc_u32 s{p+1}, s5, 0")
    a(f"s_cmp_ge_u32 s2, 256\ns_cbranch_scc1 {a.endl}")
    if STAMP:
        for j in range(1,13): a(f"s_mov_b32 s{72+2*j}, 0")
        a("s_memrealtime s[70:71]\ns_memtime s[72:73]")
    GR=3
    s.pro1(GR)
    a(f"""    s_getreg_b32 s{sXcc}, hwreg(HW_REG_XCC_ID)
    s_and_b32 s{sXcc}, s{sXcc}, 15
    v_mov_b32 v{vOnes}, {ONES:#x}
    v_mov_b32 v{vOne}, 1""")
    for i in (0,1,4,5): a(f"v_mov_b32 v{vBX+i}, 0")
    for i in range(4): a(f"s_xor_b32 s60, s{sW}, {i}\ns_lshl_b32 s{s16+i}, s60, 14\ns_mul_i32 s60, s60, {CST}\ns_add_u32 s{s7+i}, s60, {LC}")
    s.pro2(GR)
    for L in range(2):
        if L==1: a("@wlg wqr")
        s.qkv(L,0); s.qkv(L,1); s.att(L); s.op(L,0); s.op(L,1); s.f1(L); s.f2(L)
    if STAMP:
        a("s_memtime s[98:99]\ns_memrealtime s[100:101]\ns_waitcnt lgkmcnt(0)\nv_mov_b32 v4, 0x57a3")
        for j in range(14): a(f"v_writelane_b32 v4, s{70+2*j}, {j}")
        a(f"""v_writelane_b32 v4, s98, 19
        v_writelane_b32 v4, s100, 20
        v_writelane_b32 v4, s{sBud}, 21
        v_writelane_b32 v4, s{sPure}, 22
        v_writelane_b32 v4, s0, 23
        s_lshl_b32 s60, s2, 2
        s_add_u32 s60, s60, s{sW}
        s_lshl_b32 s60, s60, 7
        s_add_u32 s60, s60, {TS}
        s_mov_b64 exec, 0xffffffff
        buffer_store_dword v4, v{vL4}, {WSR}, s60 offen""")
    a(f"s_endpgm\n@optb"); a(s.ool); a("@opte")

gen2.KERNELS=[("main_kernel",k_main,256,LDS_TOTAL,512)]
if __name__=="__main__":
    for x in sys.argv[2:]:
        if x.startswith("stamp"): STAMP=True; STL=int(x[5]); STO=int(x[7:] or 0)
        elif "=" in x:
            k,val=x.split("="); globals()[k]=int(val)
    p = sys.argv[1] if len(sys.argv)>1 and sys.argv[1]!="-" else "cdna_kernels/"+NAME+".s"
    o=gen2.build()
    if SINGLE: o=o.replace("kernel=main_kernel ","").replace("main_kernel",NAME+"_kernel")
    open(p,"w").write(o)
```

```python
import sys
import gen2
from gen2 import *
sPure=12; sBud=13; sXcc=14; sKF=15; sW=16; sG=17; sJ=18; sW8=19
sOwn=20; sFlS=21; sFlP=22; sStS=23; sHs=[24,25]; s7=26; s16=30; sONE=34; sKVd=36; sKVl=37
pQtr=38; pStL=40; pHl=42; pWQ=[44,46]; pW2=[48,50]; pW1=[52,54]; pKVd=56; pKVl=58
t0_,t1_,t2_,t3_=60,61,62,63; P0,P1,P2=64,66,68
vL16=1; vL16x=2; vL4=3; vOnes=4; vOne=5; vRs=[6,7]; vBX=8; vP=14; XR=[16,20]; Q=[24,28]
ACC=[32,64]; T=96; CS1R=120; vA=124
A0=256
def W1R(c,ks): return A0+128*c+4*ks
def W2R(i): return 128+4*i if i<32 else A0+4*(i-32)
def HWR(i): return A0+96+4*(i%16)
def WKR(ks): return A0+160+4*ks
def WQR(c,ks): return A0+192+32*c+4*ks
BQ=[32,160]; SQ=[24,200]; QACC=[64,32]; KACC=128; CSK=208; CSQR=210; OB=224; SX=24; sLast=3
XIDG=KVF+32*KB; sNon=1; WQL=65536; KVL=131072; JG=8; pJ=34; pQ2=12
STAMP=False; STL=0; STO=0; STAG=6; TOUCH=1; ATS=0; FORCEFB=0; NW0=4; GS=30; NB0=36; JE0=108; NB1=50; JE1=104; NT=0; FORCER=0; F1P=0; PF0=0; W3=3; WKU=1; QN=5; PM=0; WP0=84; SE=40; HS=106; NH=12; NWR=0; XE=12; XN=3; QS=26; NOW=1; WJ=0; FD=14; PI=113; PW=1; NA1=38; LOFF=0; PJ=45; ZR=0x100000; EARLYF=1; KFK=5; PFC=1; SINGLE=0; KVS=''
PERM=[k for k in range(28) if ((k//2)%7)%2==0]+[k for k in range(28) if ((k//2)%7)%2==1]
def flat(x):
    o=[]
    for y in x: o+= flat(y) if isinstance(y,list) else [y]
    return o

class M:
    def __init__(s,a): s.a=a; s.ool=[]; s.nst=0; s.cnt=0
    def stamp(s,L,name):
        if STAMP and STL>=8:
            if name in ("set","kv0","a1","f1s","f1q3","f21e"):
                s.nst+=1; s.a.stamps.append(name); return [f"{'s_memrealtime' if STL==9 else 's_memtime'} s[{72+2*s.nst}:{73+2*s.nst}]"]
            return []
        if STAMP and L==STL:
            s.cnt+=1
            if s.cnt>STO and s.nst<12:
                s.nst+=1; s.a.stamps.append(name)
                return [f"s_memtime s[{72+2*s.nst}:{73+2*s.nst}]"]
        return []
    def base(s, pt, pb, c): return [f"s_add_u32 s{pt}, s{pb}, {c}", f"s_addc_u32 s{pt+1}, s{pb+1}, 0"]
    def loads(s, regs, voff, pb, const, pt, tag, fl=""):
        out=[]
        for i,r in enumerate(regs):
            it=s.base(pt,pb,const+i*1024+4096) if i%8==0 else []
            out.append(it+[f"global_load_dwordx4 {R(r)}, v{voff}, s[{pt}:{pt+1}] offset:{(i%8)*1024-4096} {fl} ;@{tag}{i}"])
        return out
    def loadp(s, regs, voff, pb, const, pt, tag, fl, p0):
        out=[]; b=None
        for i,r in enumerate(regs):
            o=PERM[p0+i]*1024; it=[]
            if b is None or not (-4096<=o-b<4096) or p0+i in (10,12,16): b=o+4096; it=s.base(pt,pb,const+b)
            out.append(it+[f"global_load_dwordx4 {R(r)}, v{voff}, s[{pt}:{pt+1}] offset:{o-b} {fl} ;@{tag}{i}"])
        return out
    def dmas(s, n, voff, pb, const, sl, lconst, pt, tag, fl=""):
        out=[]
        for i in range(n):
            it=[f"s_add_u32 m0, s{sl}, {lconst+i*1024}"]+s.base(pt,pb,const+i*1024) if i%4==0 else []
            out.append(it+[f"global_load_lds_dwordx4 v{voff}, s[{pt}:{pt+1}] offset:{(i%4)*1024} {fl} ;@{tag}{i}"])
        return out
    def pub(s, stores, one=False):
        Ls=s.a.label("slow"); Lb=s.a.label("back")
        s.ool += [f"{Ls}:"] + (["s_mov_b64 exec, 1"] if one else []) + [x.replace("{F}","sc1").split(";@")[0] for x in stores] + (["s_mov_b64 exec, -1"] if one else []) + [f"s_branch {Lb}"]
        return [f"s_cmp_eq_u32 s{sPure}, 0", f"s_cbranch_scc1 {Ls}"]+[x.replace("{F}","") for x in stores]+[f"{Lb}:"]
    def flag(s, L, step, *tags):
        return [f"@wvm {' '.join(tags)}"] + s.pub([f"buffer_store_byte v{vOne}, off, {WSR}, s{sFlS} offset:{(8*L+step)*128} {{F}}"], one=True)
    def poll_i(s, L, step):
        return [f"buffer_load_dwordx2 {v(vP,2)}, off, {WSR}, s{sFlP} offset:{(8*L+step)*128} sc1 ;@poll"]
    def retry(s, ld, chk, okbr):
        Lr=s.a.label("retry"); Lb=s.a.label("back")
        s.ool += [f"{Lr}:", f"s_sub_u32 s{sBud}, s{sBud}, 1", f"s_cmp_lt_i32 s{sBud}, 0", f"s_cbranch_scc1 {Lb}", ld.split(";@")[0], "s_waitcnt vmcnt(0)"]+chk+[f"{okbr[0]} {Lb}", f"s_branch {Lr}"]
        return ["@wvm poll"]+chk+[f"{okbr[1]} {Lr}", f"{Lb}:"]
    def poll_c(s, L, step):
        return s.retry(s.poll_i(L,step)[0], [f"v_and_b32 v{vP}, v{vP}, v{vP+1}", f"v_readfirstlane_b32 s{t0_}, v{vP}", f"s_cmp_eq_u32 s{t0_}, 0x01010101"], ("s_cbranch_scc1","s_cbranch_scc0"))
    def block(s, L, step, allcu=False):
        Lr=s.a.label("blk"); Le=s.a.label("blke"); Lp=s.a.label("blkp"); off=(8*L+step)*128
        o=["s_waitcnt vmcnt(0)", f"s_cmp_eq_u32 s{sPure}, 0", f"s_cbranch_scc1 {Lp}", f"buffer_store_byte v{vOne}, off, {WSR}, s{sFlS} offset:{off}", f"s_branch {Lr}",
           f"{Lp}:", "s_mov_b64 exec, 1", f"buffer_store_byte v{vOne}, off, {WSR}, s{sFlS} offset:{off} sc1", "s_mov_b64 exec, -1",
           f"{Lr}:", f"s_sub_u32 s{sBud}, s{sBud}, 1", f"s_cmp_lt_i32 s{sBud}, 0", f"s_cbranch_scc1 {Le}"]
        if allcu:
            o+=[f"s_and_b32 s{t0_}, s{sFlP}, 0xffffffe0", f"v_and_b32 v{vP+1}, 28, v{vL4}", f"buffer_load_dword v{vP}, v{vP+1}, {WSR}, s{t0_} offen offset:{off} sc1", "s_waitcnt vmcnt(0)",
                f"v_cmp_ne_u32 vcc, 0x01010101, v{vP}", f"s_cbranch_vccnz {Lr}"]
        else:
            o+=[f"buffer_load_dwordx2 {v(vP,2)}, off, {WSR}, s{sFlP} offset:{off} sc1", "s_waitcnt vmcnt(0)", f"v_and_b32 v{vP}, v{vP}, v{vP+1}", f"v_readfirstlane_b32 s{t0_}, v{vP}",
                f"s_cmp_eq_u32 s{t0_}, 0x01010101", f"s_cbranch_scc0 {Lr}"]
        return o+[f"{Le}:"]
    def gate(s, L, step, reload=[]):
        Lg=s.a.label("gate"); Lb=s.a.label("back")
        s.ool+=[f"{Lg}:"]+s.block(L,step)+[x.split(";@")[0] for x in flat(reload)]+["s_waitcnt vmcnt(0)", f"s_branch {Lb}"]
        return [f"s_cmp_eq_u32 s{sPure}, 0", f"s_cbranch_scc1 {Lg}", f"{Lb}:"]
    def check(s, L, step, reg, reload, start, allcu=False, idn=None):
        Lr=s.a.label("redo"); Lb=s.a.label("back"); idn=8*L+step+1 if idn is None else idn
        s.ool+=[f"{Lr}:", f"s_cmp_eq_u32 s{sLast}, {idn}", f"s_cbranch_scc1 {Lb}", f"s_mov_b32 s{sLast}, {idn}"]
        if STAMP: s.ool+=[f"s_bitset1_b32 s0, {idn}"]
        s.ool+=s.block(L,step,allcu)+[x.split(";@")[0] for x in flat(reload)]+["s_waitcnt vmcnt(0) lgkmcnt(0)", f"s_branch {start}"]
        return [f"v_cmp_{'o' if FORCER else 'u'}_f32 vcc, v{reg}, v{reg}"], [f"s_cbranch_vccnz {Lr}", f"{Lb}:"]
    def kvpoll_i(s, L, t):
        return [f"v_lshlrev_b32 v{vP+1}, 7, v0\nv_mov_b32 v{vP}, s{sNon}", f"s_lshl_b32 s{t3_}, s{sW}, 11\ns_add_u32 s{t3_}, s{t3_}, {KVF+(2*L+t)*8192}",
                f"s_mov_b64 exec, 0xffff\nbuffer_load_dword v{vP}, v{vP+1}, {WSR}, s{t3_} offen sc1 ;@poll\ns_mov_b64 exec, -1"]
    def kvpoll_c(s):
        return s.retry(s.kvpoll_i(0,0)[2].replace(" ;@poll",""), [f"v_cmp_ne_u32 vcc, s{sNon}, v{vP}"], ("s_cbranch_vccz","s_cbranch_vccnz"))+["s_barrier"]
    def red_addr(s, buf):
        if buf=="C": return [f"v_add_u32 v{vA+i}, s{s7+i}, v{vL16}" for i in range(4)]
        if buf=="P": return [f"v_add_u32 v{vA+i}, s{s16+i}, v{vL16}" for i in range(4)]
        return [[f"s_add_u32 s{t1_}, s{s16+i}, {LR}", f"v_add_u32 v{vA+i}, s{t1_}, v{vL16}"] for i in range(4)]
    def red_write(s, acc):
        return [f"ds_write_b128 v{vA}, {v(acc+8+4*i,4)} offset:{i*1024} ;@rw" for i in range(6)]
    def red_read(s):
        return [f"ds_read_b128 {v(T+4*i,4)}, v{vA+1+i//2} offset:{i*1024} ;@rr{i}" for i in (2,3,4,5,0,1)]
    def red_add(s, acc):
        o=[]
        for i in (2,3,4,5,0,1):
            o.append(f"@wlg rr{i}")
            for h in range(2): o.append(f"v_pk_add_f32 {v(acc+4*(i%2)+2*h,2)}, {v(acc+4*(i%2)+2*h,2)}, {v(T+4*i+2*h,2)}")
        return o
    def sum8(s, r):
        return [f"v_add_f32 v{r+i}, v{r+i}, v{r+i+4}" for i in range(4)]+[f"v_add_f32 v{r}, v{r}, v{r+2}", f"v_add_f32 v{r+1}, v{r+1}, v{r+3}", f"v_add_f32 v{r}, v{r}, v{r+1}"]
    def bext(s, p, t):
        return [f"v_mul_f32 v{t}, {f2u(-1/512):#x}, v{p}", f"v_cvt_pk_bf16_f32 v{vBX+2}, v{t}, v{t}", f"v_and_b32 v{vBX+3}, 0xffff0000, v{vBX+2}",
                f"v_sub_f32 v{t}, v{t}, v{vBX+3}", f"v_cvt_pk_bf16_f32 v{vBX+3}, v{t}, v{t}"]
    def stat_rd(s, r, slot, tag):
        return [f"v_add_u32 v{r+3}, {LC}, v{vL4}"]+[f"ds_read_b32 v{r+i}, v{r+3} offset:{i*CST+6144+256*slot} ;@{tag}" for i in range(4)]
    def stat_wr(s, p, t, slot):
        return [f"v_add_u32 v{t}, s{s7}, v{vL4}", f"ds_write_b32 v{t}, v{p} offset:{6144+256*slot} ;@rw"]
    def rstd(s, r, dst):
        return [f"v_add_f32 v{r}, v{r}, v{r+2}", f"v_add_f32 v{r+1}, v{r+1}, v{r+3}", f"v_add_f32 v{r}, v{r}, v{r+1}", f"v_mov_b32 v{r+1}, v{r}",
                f"v_permlane32_swap_b32 v{r}, v{r+1}", f"v_mul_f32 v{r+2}, {f2u(1/512):#x}, v{r}", f"v_mul_f32 v{r+1}, {f2u(1/512):#x}, v{r+1}",
                f"v_fma_f32 v{r+1}, -v{r+2}, v{r+2}, v{r+1}", f"v_max_f32 v{r+1}, 0, v{r+1}", f"v_add_f32 v{r+1}, {f2u(1e-5):#x}, v{r+1}", f"v_rsq_f32 v{dst}, v{r+1}"]
    def emit_x(s, acc, t, xoff, soff, tmp):
        o=[f"s_add_u32 s{t1_}, s{sOwn}, {xoff+t*32*KB}", f"s_add_u32 s{t2_}, s{sStS}, {soff+t*8*KB}"]
        o+=[f"v_cvt_pk_bf16_f32 v{XR[t]+i}, v{acc+2*i}, v{acc+2*i+1}" for i in range(4)]
        for i in range(4):
            o+=[f"v_dot2_f32_bf16 v{tmp}, v{XR[t]+i}, v{vOnes}, {'0' if i==0 else v(tmp)}", f"v_dot2_f32_bf16 v{tmp+1}, v{XR[t]+i}, v{XR[t]+i}, {'0' if i==0 else v(tmp+1)}"]
        o+=[f"v_permlane32_swap_b32 v{tmp}, v{tmp+1}", f"v_add_f32 v{tmp}, v{tmp}, v{tmp+1}"]
        o+=s.pub([f"buffer_store_dwordx4 {v(XR[t],4)}, v{vL16}, {WSR}, s{t1_} offen {{F}}", f"buffer_store_dword v{tmp}, v{vL16}, {WSR}, s{t2_} offen {{F}} ;@xst"])
        return o
    def qkv_loads(s, L, t):
        return s.loads([SQ[t],SQ[t]+4], vL16, pStL, L*LOFF+SA_+t*8*KB, P0, f"sq{t}_", "sc1") + s.loads([BQ[t]+4*i for i in range(8)], vL16, pQtr, L*LOFF+XA_+t*32*KB, P0, f"bq{t}_", "sc1")
    def cs_loads(s):
        return [[f"v_lshrrev_b32 v{vA+3}, 1, v{vL16x}", f"s_lshr_b32 s{t1_}, s{sW}, 1", f"s_lshl_b32 s{t2_}, s{sJ}, 1", f"s_add_u32 s{t1_}, s{t1_}, s{t2_}", f"s_lshl_b32 s{t1_}, s{t1_}, 9", f"s_add_u32 s{t1_}, s{t1_}, {CSQ}",
                f"buffer_load_dwordx2 {v(CSQR,2)}, v{vA+3}, {WSR}, s{t1_} offen", f"s_xor_b32 s{t1_}, s{t1_}, 512", f"buffer_load_dwordx2 {v(CSQR+2,2)}, v{vA+3}, {WSR}, s{t1_} offen",
                f"v_lshrrev_b32 v{vA+3}, 1, v{vL16}", f"s_mov_b32 s{t1_}, {CSKV}", f"buffer_load_dwordx2 {v(CSK,2)}, v{vA+3}, {WSR}, s{t1_} offen ;@csq"]]
    def wkv_loads(s):
        Lk=s.a.label("nokv")
        o=[f"s_cmp_ge_u32 s{sJ}, 2", f"s_cbranch_scc1 {Lk}", "@optb", f"s_add_u32 s{P2}, s4, s{sW8}", f"s_addc_u32 s{P2+1}, s5, 0"]
        return o+flat(s.loads([WKR(k) for k in range(8)], vL16, P2, WKVF, P2, "wk"))+["@opte", f"{Lk}:"]
    def ksplit(s, acc, Areg, Breg, btag, ext, pre=None, post=None, c0init="0", chk=None):
        sl=[]
        for i in range(16):
            c,ks=1-i//8,i%8
            p=([f"@wvm {btag}{ks}"] if c==1 and btag else [])+(pre(i) if pre else [])
            p.append(mf(acc+16*c, Areg(c,ks), Breg(ks), ("0" if c==1 else c0init) if ks==0 else None))
            p+=(post(i) if post else [])
            if ext and ks==7: sl.append(p); p=[mf(acc+16*c, CSQR, vBX+2-2*c)]
            sl.append(p)
        w=s.red_write(acc); n=len(sl)
        if chk: sl[n-6]+=chk[0]; sl[n-5]+=chk[1]
        for k in range(4): sl[n-4+k if chk else n-5+k]+=[w[2+k]]
        sl.append([]); sl.append(w[:2]+["@wlg rw","s_barrier"])
        return sl

    def qkv(s, L, t):
        a=s.a; acc=QACC[t]; kacc=KACC; sq=SQ[t]
        Ls=a.label("qst"); ck=(lambda r: s.check(L-1,6+t,r,s.qkv_loads(L,t),Ls)) if L>0 else (lambda r:([],[]))
        a(s.red_addr("C" if t==0 else "P"))
        a(f"{Ls}:")
        if L>0: a(f"@wvm sq{t}_1"); a(s.sum8(sq))
        if L>0 and t==1: a(s.flag(L-1, 7, "xst"))
        E0=(L==0 and t==0)
        c=ck(sq); a(c[0]); a(s.stat_wr(sq, sq+1, 2+t)); a(s.bext(sq, sq+1)); a(c[1])
        Ln=a.label("nkv"); Lv=a.label("v"); X=sq+2
        OPT=(L==1 and EARLYF); Lf=a.label("kf")
        if not (OPT and t==1): a(f"s_mov_b32 s{sKF}, 0")
        a(f"s_cmp_lg_u32 s{sJ}, {t}\ns_cbranch_scc1 {Ln}\n@optb")
        PO,PS,VB,VI=(0,CST,LC,CST+4096) if E0 else (8192,16384,0,16384+12288)
        a(f"v_add_u32 v{X}, s{s7 if E0 else s16}, v{vL16}\ns_lshl_b32 s{t1_}, s{sW}, 11\ns_add_u32 s{t1_}, s{t1_}, {VB}\nv_add_u32 v{X+1}, s{t1_}, v{vL16}\nv_add_u32 v{X+2}, {VB}, v{vL16}")
        for ks in range(8):
            if L>0: a(f"@wvm bq{t}_{ks}")
            a(mf(kacc, WKR(ks), BQ[t]+4*ks, "0" if ks==0 else None))
        if L>0: a("@wvm csq")
        a(mf(kacc, CSK, vBX+2))
        c=ck(kacc); a(c[0]+c[1])
        if L>0: a(f"s_mov_b32 s{sLast}, {8*(L-1)+6+t+1}")
        for i in range(4): a(f"ds_write_b128 v{X}, {v(kacc+4*i,4)} offset:{PO+i*1024}")
        a(f"s_waitcnt lgkmcnt(0)\ns_barrier\ns_cmp_ge_u32 s{sW}, 2\ns_cbranch_scc1 {Ln}")
        KB_=160 if E0 else OB; VI-=PS
        a(s.stat_rd(T, 2+t, "st"))
        tl=[f"ds_read_b128 {v(KB_+4*i,4)}, v{X+1} offset:{(i//2)*PS+PO+(i%2)*1024} ;@kr{i}" for i in range(8)]
        tl+=[[f"s_mul_i32 s{t1_}, s{sG}, {KVT}", f"s_add_u32 s{t1_}, s{t1_}, {KVI+(2*L+t)*KVH}"], [f"s_lshl_b32 s{sKF}, s{sG}, 8", f"s_add_u32 s{sKF}, s{sKF}, {KVF+(2*L+t)*8192}"], "@wlg st"]+s.rstd(T, T+4)
        tl+=[f"s_mul_i32 s{t2_}, s{sW}, {PS}", f"v_add_u32 v{X+2}, s{t2_}, v{X+2}", f"s_add_u32 s{t2_}, s{t2_}, {VB}", f"v_bfe_u32 v{T}, v0, 3, 2", f"v_mul_u32_u24 v{T}, 272, v{T}", f"v_add_u32 v{T}, s{t2_}, v{T}",
             f"v_and_b32 v{T+1}, 7, v0", f"v_lshl_add_u32 v{T+1}, v{T+1}, 1, v{T}", f"v_lshrrev_b32 v{T+2}, 5, v0", f"v_lshl_add_u32 v{T+1}, v{T+2}, 6, v{T+1}"]
        for i in range(2,8): tl+=[f"@wlg kr{i}"]+[f"v_add_f32 v{KB_+4*(i%2)+h}, v{KB_+4*(i%2)+h}, v{KB_+4*i+h}" for h in range(4)]
        tl+=[f"v_mul_f32 v{KB_+i}, v{T+4}, v{KB_+i}" for i in range(8)]+[f"v_cvt_pk_bf16_f32 v{KB_+8+i}, v{KB_+2*i}, v{KB_+2*i+1}" for i in range(4)]
        fl=[f"v_mov_b32 v{vP}, s{sNon}", "s_mov_b64 exec, 1", f"buffer_store_dword v{vP}, off, {WSR}, s{sKF} sc1"] if OPT else []
        tl+=[[f"s_cmp_eq_u32 s{sW}, 1", f"s_cbranch_scc1 {Lv}", "@optb", f"buffer_store_dwordx4 {v(KB_+8,4)}, v{vL16}, {WSR}, s{t1_} offen sc1"]+fl+["s_mov_b64 exec, -1", "@opte", f"{Lv}:"]]
        tl+=[f"{'ds_write_b16' if r%2==0 else 'ds_write_b16_d16_hi'} v{T+1}, v{KB_+8+r//2} offset:{VI+(8*(r//4)+r%4)*16}" for r in range(8)]
        tl+=[f"v_mov_b32 v{KB_+i}, v{vOnes}" for i in range(4)]+[f"ds_write_b128 v{T}, {v(KB_,4)} offset:{VI+256}",
             f"ds_read_b128 {v(KB_+12,4)}, v{X+2} offset:{VI}", f"ds_read_b128 {v(KB_+16,4)}, v{X+2} offset:{VI+1024} ;@vr"]
        te=[f"s_cmp_eq_u32 s{sW}, 0", f"s_cbranch_scc1 {Lf}", "@optb", "@wlg vr", f"s_add_u32 s{sKF}, s{sKF}, 128", f"buffer_store_dwordx4 {v(KB_+12,4)}, v{vL16}, {WSR}, s{t1_} offen offset:1024 sc1", "s_mov_b64 exec, 15",
            f"buffer_store_dwordx4 {v(KB_+16,4)}, v{vL16}, {WSR}, s{t1_} offen offset:2048 sc1"]+fl+["s_mov_b64 exec, -1", "@opte", f"{Lf}:"]
        def mk(kv):
            if E0: return s.pro3a()
            sl=s.ksplit(acc, WQR, lambda k:BQ[t]+4*k, f"bq{t}_" if L>0 else None, True, chk=ck(acc+16) if L>0 and not kv else None)
            if L>0: sl[7]+=["@wvm csq"]
            return sl
        sl=mk(True); n=len(sl)-(10 if E0 else 2)
        weave(sl, tl, 0, n-2); sl[n-1]+=te
        Lj=a.label("kj")
        a(sl if E0 else sl[:-2]); a(f"s_branch {Lj}\n@opte\n{Ln}:")
        sl=mk(False)
        Lk=a.label("nkf")
        kf=f"""s_cmp_eq_u32 s{sKF}, 0
        s_cbranch_scc1 {Lk}
        @optb
        s_waitcnt vmcnt({4 if (t==0 and L>0) else 0})
        v_mov_b32 v{vP}, s{sNon}
        s_mov_b64 exec, 1
        buffer_store_dword v{vP}, off, {WSR}, s{sKF} sc1
        s_mov_b64 exec, -1
        @opte
        {Lk}:"""
        if E0: sl+=[[f"{Lj}:"]+s.pro3(kf)]; kf=""
        else: sl[-2]+=[f"{Lj}:"]
        if OPT:
            s.kf2=kf.replace("s_waitcnt vmcnt(0)","").replace(f"s{sKF} sc1",f"s{sKF} offset:4 sc1"); kf=""
        if t==0 and L>0:
            ql=s.qkv_loads(L,1)
            sl[-2]+=s.gate(L-1,7)+flat(ql[:QN])
        a(sl); a(s.stamp(L,f"q{t}b"))
        a(s.stat_rd(sq+4, 2+t, "st")); a(s.red_read())
        a(kf)
        if t==1: a(s.kvpoll_i(L,0))
        e=[[x] for x in ["@wlg st"]+s.rstd(sq+4, sq)+[f"v_mul_f32 v{sq}, {f2u(0.25*LOG2E):#x}, v{sq}", f"v_mov_b32 v{sq+1}, v{sq}"]+s.red_add(acc)]
        if t==0 and L>0: weave(e, ql[QN:], 0, 12)
        a(e)
        for i in range(4): a(f"v_pk_mul_f32 {v(acc+2*i,2)}, {v(acc+2*i,2)}, {v(sq,2)}")
        for i in range(4): a(f"v_cvt_pk_bf16_f32 v{Q[t]+i}, v{acc+2*i}, v{acc+2*i+1}")
        a(s.stamp(L,f"q{t}e"))

    def att_fin(s, L, t, O, W):
        a=s.a; Lf=a.label("fb"); Lb=a.label("fbback"); L1=a.label("p1"); L2=a.label("p2")
        sc=[f"v_rcp_f32 v{O+10}, v{O+8}", f"v_subrev_u32 v{O+9}, {f2u(2.0**-60):#x}, v{O+8}"]+[f"v_mul_f32 v{O+i}, v{O+10}, v{O+i}" for i in range(8)]
        o=sc+[f"v_cmp_lt_u32 vcc, {f2u(2.0**100)-f2u(2.0**-60):#x}, v{O+9}"]
        o+=[f"v_add_f32 v{O+12+i}, v{O+i}, v{O+4+i}" for i in range(4)]+[f"v_add_f32 v{O+12}, v{O+12}, v{O+13}", f"v_add_f32 v{O+14}, v{O+14}, v{O+15}", f"s_mov_b32 s{t1_}, 0x207", f"v_add_f32 v{O+12}, v{O+12}, v{O+14}",
           f"v_cmp_class_f32 s[{P2}:{P2+1}], v{O+12}, s{t1_}", f"s_add_u32 s{t1_}, s{sOwn}, {L*LOFF+O_+t*32*KB}", f"s_or_b64 vcc, vcc, s[{P2}:{P2+1}]", f"s_cbranch_vccnz {Lf}" if not FORCEFB else f"s_branch {Lf}", f"{Lb}:"]
        o+=[f"v_cvt_pk_bf16_f32 v{O+12+i}, v{O+2*i}, v{O+2*i+1}" for i in range(4)]
        o+=s.pub([f"buffer_store_dwordx4 {v(O+12,4)}, v{vL16}, {WSR}, s{t1_} offen {{F}} ;@ost{t}"])
        S=W; K=W+16; V=W+20; m=W+28; va=W+29; c1=P2; c2=P2+1
        f=[f"{Lf}:"]
        if L==1 and EARLYF:
            Lq=a.label("fq"); Lr=a.label("fr")
            f+=[f"v_lshlrev_b32 v{va}, 7, v0", f"s_mov_b32 s{c1}, {KVF+2*8192}", f"s_mov_b32 s{c2}, {KVF+3*8192}", f"{Lq}:", f"s_sub_u32 s{sBud}, s{sBud}, 1", f"s_cmp_lt_i32 s{sBud}, 0", f"s_cbranch_scc1 {Lr}",
                f"buffer_load_dword v{K}, v{va}, {WSR}, s{c1} offen offset:4 sc1", f"buffer_load_dword v{K+1}, v{va}, {WSR}, s{c2} offen offset:4 sc1", "s_waitcnt vmcnt(0)",
                f"v_xor_b32 v{K}, s{sNon}, v{K}", f"v_xor_b32 v{K+1}, s{sNon}, v{K+1}", f"v_or_b32 v{K}, v{K}, v{K+1}", f"v_cmp_ne_u32 vcc, 0, v{K}", f"s_cbranch_vccnz {Lq}", f"{Lr}:"]
        if STAMP: f+=[f"s_bitset1_b32 s0, {22+L}"]
        f+=[f"v_mov_b32 v{m}, 0xff800000", f"s_mov_b32 s{c1}, {KVI+2*L*KVH}", f"s_mov_b32 s{c2}, 64", f"{L1}:",
           f"buffer_load_dwordx4 {v(K,4)}, v{vL16}, {WSR}, s{c1} offen sc1", "s_waitcnt vmcnt(0)", mf(S,K,Q[t],"0")]
        f+=[f"v_max_f32 v{m}, v{m}, v{S+i}" for i in range(16)]
        nxt=lambda l:[f"s_add_u32 s{c1}, s{c1}, {KVT}", f"s_sub_u32 s{c2}, s{c2}, 1", f"s_cmp_lg_u32 s{c2}, 0", f"s_cbranch_scc1 {l}"]
        f+=nxt(L1)+[f"v_mov_b32 v{va}, v{m}", f"v_permlane32_swap_b32 v{m}, v{va}", f"v_max_f32 v{m}, v{m}, v{va}",
            f"v_and_b32 v{va}, 31, v0", f"v_min_u32 v{va}, 16, v{va}", f"v_lshlrev_b32 v{va}, 4, v{va}", f"v_lshrrev_b32 v{va+1}, 5, v0", f"v_mul_u32_u24 v{va+1}, 272, v{va+1}", f"v_add_u32 v{va}, v{va}, v{va+1}"]
        f+=[f"v_mov_b32 v{O+i}, 0" for i in range(16)]
        f+=[f"s_mov_b32 s{c1}, {KVI+2*L*KVH}", f"s_mov_b32 s{c2}, 64", f"{L2}:",
            f"buffer_load_dwordx4 {v(K,4)}, v{vL16}, {WSR}, s{c1} offen sc1", f"buffer_load_dwordx4 {v(V,4)}, v{va}, {WSR}, s{c1} offen offset:1024 sc1",
            f"buffer_load_dwordx4 {v(V+4,4)}, v{va}, {WSR}, s{c1} offen offset:{1024+544} sc1", "s_waitcnt vmcnt(0)", mf(S,K,Q[t],"0")]
        f+=[f"v_sub_f32 v{S+i}, v{S+i}, v{m}" for i in range(16)]+[f"v_exp_f32 v{S+i}, v{S+i}" for i in range(16)]
        f+=[f"v_smfmac_f32_32x32x32_bf16 {v(O,16)}, {v(V+4*u,4)}, {v(S+8*u,8)}, v{vA}" for u in range(2)]
        f+=nxt(L2)+sc+[f"s_branch {Lb}"]
        s.ool+=f
        return o
    def kv_dma(s, L, t):
        lb = LR if t==0 else LP
        out=[]
        for r in range(4): out+=s.dmas(4, vL16, pKVd, (2*L+t)*KVH+r*16384, sKVd, lb+r*16384, P1, f"kv{t}_{r}_", KVS)
        out+=s.dmas(1, vL16, pKVl, (2*L+t)*KVH+65536, sKVl, lb+65536, P1, f"kv{t}_4_", KVS)
        return out
    def att(s, L):
        a=s.a
        S=[32,48]; O=[64,80]; KR=[96,100]; VR=[104,112]; IDX=vA; vK=vA+1; vV=vA+2
        jobs=[(t,k) for k in range(32) for t in range(2)]+[(0,k) for k in range(32,32+STAG)]+[(t,k) for k in range(32+STAG,64) for t in range(2)]+[(1,k) for k in range(32,32+STAG)]
        N=len(jobs)
        kap=[0]
        for i in range(1,N): kap.append(kap[-1]+(jobs[i][1]!=jobs[i-1][1]))
        first={}
        for i in range(N): first.setdefault(kap[i], i)
        NK=kap[-1]+1
        def laddr(k): return (LR+k*KVT) if k<32 else (LP+(k-32)*KVT)
        base={"K":LR,"V":LR}
        def rd(kind, kp, u=0):
            kt=jobs[first[kp]][1]
            ad=laddr(kt)+(0 if kind=="K" else 1024+u*544); o=[]
            reg=vK if kind=="K" else vV
            if not (0<=ad-base[kind]<65536):
                nb=laddr(kt); o.append(f"v_add_u32 v{reg}, {(nb-base[kind])&0xffffffff:#x}, v{reg}"); base[kind]=nb
            dst=KR[kp%2] if kind=="K" else VR[kp%2]+4*u
            return o+[f"ds_read_b128 {v(dst,4)}, v{reg} offset:{ad-base[kind]} ;@{kind}{kp}_{u}"]
        def smf(i,u): return [f"@wlg V{kap[i]}_{u}", f"v_smfmac_f32_32x32x32_bf16 {v(O[jobs[i][0]],16)}, {v(VR[kap[i]%2]+4*u,4)}, {v(S[i%2]+8*u,8)}, v{IDX}"]
        def qk(i): return [f"@wlg K{kap[i]}_0", mf(S[i%2], KR[kap[i]%2], Q[jobs[i][0]], "0")]
        def ex(r0,r1): return [f"v_exp_f32 v{r}, v{r}" for r in range(r0,r1)]
        d0=s.kv_dma(L,0); d1=s.kv_dma(L,1)
        if L==0:
            a(s.job1()); a(s.stamp(L,"job"))
            for p,q in ((pKVd,sKVd),(pKVl,sKVl)): a(f"s_add_u32 s{p}, s{q}, {KVI}\ns_add_u32 s{p}, s4, s{p}\ns_addc_u32 s{p+1}, s5, 0")
        a(s.kvpoll_c()); a(s.stamp(L,"kvp"))
        a(d0[:4])
        if L==0: s.setup2()
        a(d0[4:6])
        a(f"""v_mov_b32 v{IDX}, 0xdddddddd
        v_add_u32 v{vK}, {LR}, v{vL16}
        v_and_b32 v{vV}, 31, v0
        v_min_u32 v{vV}, 16, v{vV}
        v_lshlrev_b32 v{vV}, 4, v{vV}
        v_lshrrev_b32 v{vA+3}, 5, v0
        v_mul_u32_u24 v{vA+3}, 272, v{vA+3}
        v_add_u32 v{vV}, v{vV}, v{vA+3}
        v_add_u32 v{vV}, {LR}, v{vV}""")
        if ZR: a(f"s_mov_b32 s{t1_}, 0xffee0000\ns_mov_b32 exec_lo, s{t1_}\ns_mov_b32 exec_hi, s{t1_}\nv_add_u32 v{vV}, {ZR:#x}, v{vV}\ns_mov_b64 exec, -1")
        for i in range(32): a(f"v_mov_b32 v{O[0]+i}, 0")
        a(f"v_lshlrev_b32 v{OB+8}, 7, v0\nv_lshlrev_b32 v{OB+9}, 10, v0")
        for i in range(4): a(f"v_mov_b32 v{OB+i}, -1")
        if L==1: a(f"v_add_u32 v{OB+10}, s{sXcc}, v{vL16}")
        touch=[]
        def pst(sb, c, n=1, dw=False):
            for k in range(n): touch.append(([f"s_add_u32 s{t1_}, s{sb}, {c}"] if k==0 else [])+[(f"buffer_store_dword v{OB}" if dw else f"buffer_store_dwordx4 {v(OB,4)}")+f", v{OB+10 if sb==sHs[1] else vL16}, {WSR}, s{t1_} offen offset:{k*1024} {('','nt','sc1','sc0 sc1','sc0')[PM]} ;@pois"])
        assert LOFF==0 and SA_==S1_+16*KB
        touch.append([f"s_and_b32 s{t1_}, s{sStS}, 0xffffff00", f"s_and_b32 s{t2_}, s{sW8}, {0x6000 if L==0 else 0x2000}", f"s_add_u32 s{t1_}, s{t1_}, s{t2_}", f"s_add_u32 s{t1_}, s{t1_}, {S1_}", f"buffer_store_dwordx4 {v(OB,4)}, v{vL16}, {WSR}, s{t1_} offen"])
        for t in range(2):
            pst(sOwn, O_+t*32*KB)
            if L==0 or t==0: pst(sOwn, X1_+t*32*KB)
            for c in range(2): pst(sHs[c], t*112*KB, 2)
            if L==0: pst(sOwn, XA_+t*32*KB)
        if L==1: touch.append([f"s_lshl_b32 s{t1_}, s{sG}, 16", f"s_lshl_b32 s{t2_}, s{sJ}, 7", f"s_add_u32 s{t1_}, s{t1_}, s{t2_}", f"buffer_load_dword v{OB+6}, v{OB+9}, s[8:11], s{t1_} offen"])
        warm=[[f"s_bitcmp1_b32 s{sG}, 4", f"s_cselect_b64 s[{P2}:{P2+1}], s[{pW2[1]}:{pW2[1]+1}], s[{pW2[0]}:{pW2[0]+1}]", f"s_and_b32 s{t1_}, s{sG}, 8", f"s_lshl_b32 s{t1_}, s{t1_}, 10", f"s_add_u32 s{t1_}, s{t1_}, {12*KB}",
               f"s_add_u32 s{P2}, s{P2}, s{t1_}", f"s_addc_u32 s{P2+1}, s{P2+1}, 0", f"global_load_dword v{OB+6}, v{OB+8}, s[{P2}:{P2+1}] ;@warm"]]
        if L==0: warm.append([f"s_bitcmp1_b32 s{sG}, 3", f"s_cselect_b64 s[{P2}:{P2+1}], s[{pWQ[1]}:{pWQ[1]+1}], s[{pWQ[0]}:{pWQ[0]+1}]", f"global_load_dword v{OB+6}, v{OB+8}, s[{P2}:{P2+1}]"])
        wp=[]
        for x in warm:
            for q in range(4): wp.append((x[:-1] if q==0 else [])+[f"s_bfm_b64 exec, 16, {16*q}", x[-1], "s_mov_b64 exec, -1"])
        if NOW: warm=[]
        if NOW<2: wp=[]
        if L==1: warm.append(touch.pop())
        a(d0[6:8])
        a("@wvm kv0_0_3\ns_barrier"); a(s.stamp(L,"kv0"))
        if L==0: a(s.job2())
        elif EARLYF: a(s.kf2)
        a(rd("K",0)+rd("V",0,0)+rd("V",0,1)+rd("K",1)+qk(0))
        A=[[] for _ in range(N)]; B=[[] for _ in range(N)]; C=[[] for _ in range(N)]
        fr=[]
        for i in range(N):
            kp=kap[i]; isf=first[kp]==i; last=(i+1==N or kap[i+1]!=kp)
            if isf and last:
                if kp+1<NK: A[i]+=[f"@wlg K{kp+1}_0"]+rd("V",kp+1,0); B[i]+=rd("V",kp+1,1)
                if kp+2<NK: C[i]+=rd("K",kp+2)
            elif isf:
                A[i]+=rd("V",kp+1,0); B[i]+=rd("V",kp+1,1); fr.append((i,C[i]))
            else:
                A[i]+=[f"@wlg V{kp+1}_1"]; fr.append((i,B[i])); C[i]+=rd("K",kp+2)
        def put(items, j0, j1):
            sl=[l for (j,l) in fr if j0<=j<j1]
            if items: weave(sl, items)
        def at(j): return [l for (jj,l) in fr if jj>=j][0]
        put(d0[8:], 0, 5)
        at(9).extend(["@wvm kv0_4_0","s_barrier"])
        if L==0:
            Lx=a.label("nx")
            at(9).append(f"""s_cmp_lg_u32 s{sW}, 0
            s_cbranch_scc1 {Lx}
            @optb
            v_mov_b32 v{vP}, s{sXcc}
            s_lshl_b32 s{t1_}, s2, 7
            s_add_u32 s{t1_}, s{t1_}, {XIDG}
            s_mov_b64 exec, 1
            buffer_store_dword v{vP}, off, {WSR}, s{t1_} sc1
            s_mov_b64 exec, -1
            @opte
            {Lx}:""")
        if L==1 or PF0: at(10).extend(s.pfc(OB+6, 2*KB))
        at(12).extend(s.kvpoll_i(L,1))
        at(20).extend(s.kvpoll_c())
        ldx=f"buffer_load_dword v{vP}, v{vP+1}, {WSR}, s{t3_} offen sc1 ;@poll"
        put(d1, 21, 30)
        if L==0:
            at(GS-9).extend([f"s_add_u32 s{t3_}, s{sW8}, {XIDG}", ldx])
            at(GS).extend(s.retry(ldx, [f"v_xor_b32 v{vP}, s{sNon}, v{vP}", f"v_cmp_lt_u32 vcc, 15, v{vP}"], ("s_cbranch_vccz","s_cbranch_vccnz"))+["s_barrier"])
            at(GS).extend([f"v_and_b32 v{vP+1}, 7, v0", f"v_lshlrev_b32 v{vP+1}, 12, v{vP+1}", f"s_lshl_b32 s{t3_}, s{sG}, 7", f"s_add_u32 s{t3_}, s{t3_}, {XIDG}", ldx])
            at(44).extend(["@wvm poll", f"v_cmp_ne_u32 vcc, s{sXcc}, v{vP}", "s_cmp_eq_u64 vcc, 0", f"s_cselect_b32 s{sPure}, 1, 0",
                f"s_cmp_eq_u32 s{sW}, {W3}", f"s_cselect_b32 s{sXcc}, {WS_SIZE}, 0", f"v_add_u32 v{OB+10}, s{sXcc}, v{vL16}"])
            warm.append([f"s_mul_i32 s{t1_}, s{sJ}, {7*512}", f"s_lshl_b32 s{t2_}, s{sW}, 10", f"s_add_u32 s{t1_}, s{t1_}, s{t2_}", f"s_add_u32 s{t1_}, s{t1_}, {CS1}", f"v_lshrrev_b32 v{vA+3}, 1, v{vL16}",
                f"buffer_load_dwordx2 {v(CS1R,2)}, v{vA+3}, {WSR}, s{t1_} offen", f"s_cmp_eq_u32 s{sW}, 3", f"s_cselect_b32 s{t2_}, 0, 512", f"s_add_u32 s{t1_}, s{t1_}, s{t2_}", f"v_add_u32 v{vA+3}, s{sXcc}, v{vA+3}",
                f"buffer_load_dwordx2 {v(CS1R+2,2)}, v{vA+3}, {WSR}, s{t1_} offen"])
        w1=[]
        w1+=s.loads([W1R(0,k) for k in range(32)], vL16, pW1[0], 0, P0, "w10_")
        w1+=[([f"s_add_u32 s{P0}, s{pW1[1]}, {k*1024}"] if k%4==0 else [])+[f"buffer_load_dwordx4 {R(W1R(1,k))}, v{OB+10}, {WSR}, s{P0} offen offset:{(k%4)*1024} ;@w11_{k}"] for k in range(32)]
        assert 2*(PJ-GS-1)<=32
        at(44).extend(["@wvm kv1_4_0","s_barrier"])
        j2=64+STAG
        at(j2).append("s_barrier")
        wo=[]; w2=[]
        for c in range(2): wo+=s.dmas(8, vL16x, pWQ[c], WOF, s16, LR+c*8192, P1, f"wo{c}_", "nt" if NT else "")
        for c in range(2): w2+=s.loads([W2R(2*k+c) for k in range(12)], vL16x, pW2[c], 0, P0, f"w2{c}_")
        warm.append(s.pfc(OB+6, 2*KB))
        def mix(x,y):
            o=[[] for _ in range(max(len(x),len(y)))]; weave(o,x); weave(o,y); return o
        JE=JE0 if L==0 else JE1
        pe=PJ+len(touch)
        if L==0:
            put(w1[:2*(PJ-GS-1)], GS+1, PJ); put(touch, PJ, pe); put(w1[2*(PJ-GS-1):NB0], pe, 64); put(wo+w1[NB0:]+w2, j2+1, JE); put(wp, WP0, JE)
        else:
            put(w1[:8], 4, 12); put(w1[8:16], 13, 21); put(w1[16:NA1], 30, PJ); put(touch, PJ, pe); put(w1[NA1:NB1], pe, 64); put(wo+w1[NB1:]+w2, j2+1, JE); put(wp, WP0, JE)
        if WJ==0:
            at(JE-FD).extend(s.flag(2,L,"pois"))
            at(JE).extend(s.poll_i(2,L))
            put(warm, JE+1, JE+1+len(warm))
            at(JE+10).extend(s.poll_c(2,L))
        else:
            put(warm, WJ, 64)
            at(PI-FD).extend(s.flag(2,L,"pois")); at(PI).extend(s.poll_i(2,L)); at(PI+5).extend(s.poll_c(2,L))
        e0=N-STAG
        if ATS==1:
            for j in (10,20,32,44,60,72,88,100,110): A[j]+=s.stamp(L,f"j{j}")
        C[e0-1]+=s.stamp(L,"a0")+s.att_fin(L,0,O[0],OB)
        C[e0+3]+=s.flag(L,0,"ost0")
        ob=s.loads([OB+4*i for i in range(8)], vL16, pQtr, L*LOFF+O_, P0, "ob", "sc1")
        C[N-2]+=s.gate(L,0)+flat(ob[:2]); A[N-1]+=flat(ob[2:4]); B[N-1]+=flat(ob[4:6]); C[N-1]+=flat(ob[6:])
        for i in range(N):
            Sa=S[i%2]
            a(ex(Sa,Sa+2)+(smf(i-1,1) if i>0 else [])+A[i]+ex(Sa+2,Sa+5)+(qk(i+1) if i+1<N else [])+B[i]+ex(Sa+5,Sa+10)+smf(i,0)+C[i]+ex(Sa+10,Sa+16))
        a(f"s_add_u32 s{t1_}, s{s16}, {LR}\nv_add_u32 v6, s{t1_}, v{vL16}")
        a(smf(N-1,1)); a(s.stamp(L,"a1"))
        a("@wvm wo1_7"); a(s.op_rd(0,6))
        a(s.att_fin(L,1,O[1],32))

    def op_rd(s, i0, i1):
        return [f"ds_read_b128 {v(T+4*(i%6),4)}, v6 offset:{(1-i//8)*8192+(i%8)*1024} ;@oa{i}" for i in range(i0,i1)]
    def x_fetch(s, L, t):
        return s.loads([SX,SX+4], vL16, pStL, L*LOFF+S1_+t*8*KB, P1, "s1_", "sc1") + s.dmas(8, vL16, pQtr, L*LOFF+X1_+t*32*KB, sW8, LP+t*32*KB, P1, f"xd{t}_", "sc1")
    def op(s, L, t):
        a=s.a; acc=ACC[t]
        Ls=a.label("opst"); obl=lambda tt: s.loads([OB+4*i for i in range(8)], vL16, pQtr, L*LOFF+O_+tt*32*KB, P0, "ob", "sc1")
        sl=s.ksplit(acc, lambda c,k:T+4*(((1-c)*8+k)%6), lambda k:OB+4*k, "ob", False,
                    pre=lambda i:[f"@wlg oa{i}"], post=lambda i:(s.op_rd(i+6,i+7) if i+6<16 else []), c0init=None,
                    chk=s.check(L,t,acc+16,obl(t)+s.op_rd(0,6),Ls))
        ini=flat([[f"v_lshlrev_b32 v{acc+2*i}, 16, v{XR[t]+i}", f"v_and_b32 v{acc+2*i+1}, 0xffff0000, v{XR[t]+i}"] for i in range(4)])+[f"v_mov_b32 v{acc+8+i}, 0" for i in range(8)]
        weave(sl, ini+s.red_addr("C" if t==0 else "R"), 0, 7)
        nx = obl(1) if t==0 else s.x_fetch(L,0)
        if t==1 and XE:
            sl[XE]+=s.gate(L,2); weave(sl, nx[:XN], XE, 16); sl[-2]+=flat(nx[XN:XN+3])+s.flag(L,2,"xst"); nx=[[]]*3+nx[XN+3:]
        else:
            sl[-2]+=(s.flag(L,1,"ost1")+s.gate(L,1) if t==0 else s.flag(L,2,"xst")+s.gate(L,2))+flat(nx[:3])
        a(f"{Ls}:"); a(sl); a(s.stamp(L,f"o{t}b"))
        a(s.red_read())
        e=s.red_add(acc)+(s.op_rd(0,6) if t==0 else [])+s.emit_x(acc, t, L*LOFF+X1_, L*LOFF+S1_, acc+8)
        k=e.index(f"s_cmp_eq_u32 s{sPure}, 0")
        sl=[[x] for x in e[:k]]+[e[k:]]
        a(nx[3:5])
        if nx[5:]: weave(sl, nx[5:], 2, k if t==0 or not XE else 8)
        a(sl); a(s.stamp(L,f"o{t}e"))

    def silu(s, L, t, c, pk):
        acc=ACC[t]; E=T+16; sc=vA+2*t; out=[]
        for h in range(2):
            b=acc+16*c+8*h
            if pk:
                out+=[f"v_pk_mul_f32 {v(E+2*i,2)}, {v(b+2*i,2)}, {v(sc,2)}" for i in range(4)]
                out+=[f"v_exp_f32 v{E+i}, v{E+i}" for i in range(8)]
                out+=[f"v_pk_add_f32 {v(E+2*i,2)}, {v(E+2*i,2)}, s[{sONE}:{sONE+1}]" for i in range(4)]
                out+=[f"v_rcp_f32 v{E+i}, v{E+i}" for i in range(8)]
                out+=[f"v_pk_mul_f32 {v(E+2*i,2)}, {v(b+2*i,2)}, {v(E+2*i,2)}" for i in range(4)]
                out+=[f"v_cvt_pk_bf16_f32 v{b+i}, v{E+2*i}, v{E+2*i+1}" for i in range(4)]
            else:
                mu=[f"v_mul_f32 v{E+i}, v{sc}, v{b+i}" for i in range(8)]; exx=[f"v_exp_f32 v{E+i}, v{E+i}" for i in range(8)]
                ad=[f"v_add_f32 v{E+i}, 1.0, v{E+i}" for i in range(8)]; rc=[f"v_rcp_f32 v{E+i}, v{E+i}" for i in range(8)]
                m2=[f"v_mul_f32 v{E+i}, v{b+i}, v{E+i}" for i in range(8)]; cv=[f"v_cvt_pk_bf16_f32 v{b+i}, v{E+2*i}, v{E+2*i+1}" for i in range(4)]
                out+=[mu[0:5],[mu[5],exx[0],exx[1]],[mu[6],exx[2],exx[3]],[mu[7],exx[4],exx[5]],[ad[0],exx[6],exx[7]],
                      [ad[1],ad[2],ad[3],rc[0]],[ad[4],rc[1],rc[2]],[ad[5],rc[3],rc[4]],[ad[6],ad[7],m2[0],rc[5]],[m2[1],rc[6],rc[7]],
                      m2[2:7],[m2[7]]+cv]
            out.append([f"s_add_u32 s{t1_}, s{sHs[c]}, {L*LOFF+t*112*KB+h*1024}"]+([f"v_add_u32 v{b+4}, s{sXcc}, v{vL16}"] if c else [])+s.pub([f"buffer_store_dwordx4 {v(b,4)}, v{b+4 if c else vL16}, {WSR}, s{t1_} offen {{F}} ;@hst{t}"]))
        return out
    def f1_sync(s, L, t):
        c=([],[]); Ls=s.a.label("f1sy")
        if t==0: c=s.check(L,2,SX,s.x_fetch(L,0),Ls)
        return [f"{Ls}:","@wvm s1_1"]+s.sum8(SX)+c[0]+s.stat_wr(SX,SX+1,t)+[f"@wvm xd{t}_7","@wlg rw"]+c[1]+["s_barrier"]
    def f1(s, L):
        a=s.a
        def rd(n):
            q,ks=n//32,n%32
            return [f"ds_read_b128 {v(T+4*(n%4),4)}, v{vL16} offset:{LP+(q//2)*32*KB+ks*1024} ;@xb{n}"]
        a(s.f1_sync(L,0)); a(s.stamp(L,"f1s"))
        Ls=a.label("f1st"); a(f"{Ls}:")
        a(rd(0)+rd(1)+rd(2)+["@wlg xb0", "@wvm w11_31"])
        sl=[];
        for n in range(128):
            q,ks=n//32,n%32; t,c=q//2,q%2
            p=[mf(ACC[t]+16*c, W1R(c,ks), T+4*(n%4), "0" if ks==0 else None)]
            if n+3<128: p+=rd(n+3)
            if n+1<128: p+=[f"@wlg xb{n+1}"]
            sl.append(p)
        for q in range(4):
            sl[32*q+31]+=[mf(ACC[q//2]+16*(q%2), CS1R, vBX+2-2*(q%2))]+s.stamp(L,f"f1q{q}")
        def stat(t,X):
            r=s.rstd(X,vRs[t])
            return [s.stat_rd(X,t,"st"), [], ["@wlg st"]+r[:4], r[4:8], r[8:], s.bext(X,X+1), [f"v_mul_f32 v{vA+2*t}, {f2u(-LOG2E):#x}, v{vRs[t]}", f"v_mov_b32 v{vA+2*t+1}, v{vA+2*t}"]]
        weave(sl, stat(0,SX+4), 0, 8)
        allx=[[f"s_sub_u32 s{P2}, s{pQtr}, s{sW8}", f"s_subb_u32 s{P2+1}, s{pQtr+1}, 0", f"s_mov_b32 s{t1_}, 0"]]+s.dmas(32, vL16, P2, L*LOFF+X1_, t1_, LP, P1, "z", "sc1")
        c=s.check(L,2,ACC[0],allx,Ls,allcu=True,idn=20+L)
        sl[34]+=c[0]; sl[35]+=c[1]
        w2=[]
        for c in range(2): w2+=s.loads([W2R(2*k+c) for k in range(12,16)], vL16x, pW2[c], 12*KB, P0, f"w2b{c}_")
        sl[3]+=s.flag(L,3,"xst")
        weave(sl, w2[:4], 4, 12)
        sl[12]+=s.poll_i(L,3)
        weave(sl, w2[4:], 13, 22)
        sl[23]+=s.poll_c(L,3)
        weave(sl, s.x_fetch(L,1), 24, 42)
        wq=[]
        if L==0:
            for c in range(2): wq+=s.dmas(8, vL16x, pWQ[c], WQF, s16, LR+c*8192, P1, f"wq{c}_", "nt" if NT else "")
            weave(sl, wq[:12], 42, 66)
        weave(sl, s.silu(L,0,0,False), 36, 60)
        sl[60]+=s.f1_sync(L,1)
        weave(sl, stat(1,SX+4)[:5], 61, 65)
        sl[65]+=flat(stat(1,SX+4)[5:])
        weave(sl, s.silu(L,0,1,False), 66, 92)
        wc=[s.loads([W2R(32+2*kk+c) for kk in range(12)], vL16x, pW2[c], 16*KB, P0+4*c, f"w2c{c}_") for c in range(2)]
        wcl=[wc[i%2][i//2] for i in range(24)]
        s.wcr=wcl[24-NWR:]
        weave(sl, wq[12:]+wcl[:24-NWR], 66, HS)
        weave(sl, s.silu(L,1,0,False), 98, 124)
        s.hl=[s.loadp([HWR(28*t+k) for k in range(28)], vL16, pHl, t*112*KB, P1, f"h{t}_", "sc1", 0) for t in range(2)]
        sl[HS]+=s.gate(L,4); weave(sl, s.hl[0][:NH], HS, 128)
        a(sl)
    def f2(s, L):
        a=s.a
        hl=s.hl
        for t in range(2):
            acc=ACC[t]; sl=[]
            order=[(ks,c) for ks in range(22) for c in (1,0)]+[(ks,1) for ks in range(22,28)]+[(ks,0) for ks in range(22,28)]
            for (ks,c) in order:
                p=[]
                if c==1:
                    w=[f"h{t}_{ks}"]
                    if t==0: w+= [f"w2{cc}_{ks}" if ks<12 else (f"w2b{cc}_{ks-12}" if ks<16 else f"w2c{cc}_{ks-16}") for cc in range(2)]
                    p=[f"@wvm {' '.join(w)}"]
                p.append(mf(acc+16*c, W2R(2*ks+c), HWR(28*t+ks), "0" if ks==0 else None))
                if t==1 and c==0 and ks+16<28: p+=hl[t][ks+16]
                sl.append(p)
            Ls=a.label("f2st")
            if t==0:
                mm=[[x for x in p if "mfma" in x] for p in sl]
                for i,k in enumerate(range(NH,28)): sl[max(i*24//(28-NH), 2*(k-16)+1)]+=hl[0][k]
                weave(sl, s.silu(L,1,1,False), 1, SE)
                sl[SE+2]+=s.flag(L,4,"hst0")
                if L==0:
                    cp=[[f"s_add_u32 s{t1_}, s{s16}, {LR}", f"v_add_u32 v{vA}, s{t1_}, v{vL16}", "@wvm wq1_7"]]+[f"ds_read_b128 {R(WQR(c,k))}, v{vA} offset:{c*8192+k*1024} ;@wqr" for c in range(2) for k in range(8)]
                    weave(sl, cp, SE-4, 48)
                for k in range(10): sl[25+2*k]+=hl[1][k]
                sl[44]+=s.gate(L,5,hl[1][:10])
            else: sl[2]+=s.flag(L,5,"hst1")
            if t==1 and L==0:
                sl[24]+=s.wkv_loads(); sl[QS]+=s.gate(L,6); weave(sl, s.qkv_loads(1,0), QS, QS+20); sl[54]+=[y.replace(f"v{vA+3},",f"v{T},") for y in s.cs_loads()[0]]
                sl[34]+=s.flag(L,6,"xst")
            if ATS==2:
                for q in (7,15,23,31,39,47,55): sl[q]+=s.stamp(L,f"s{q}")
            sl[48]+=flat(s.red_addr("C" if t==0 else "P"))
            w=s.red_write(acc)
            if t==0:
                c=s.check(L,4,acc+16,hl[0][:16]+["s_waitcnt vmcnt(0)"]+mm[:32]+hl[0][16:]+["s_waitcnt vmcnt(0)"]+mm[32:54]+hl[1][:10],Ls)
                c=(c[0],c[1]+[f"{Ls}:"])
            else:
                c=s.check(L,5,acc+16,hl[1][:16],Ls); a(f"{Ls}:")
            sl[52]+=c[0]; sl[53]+=c[1]+[w[2]]; sl[54]+=[w[3]]; sl[55]+=w[4:6]
            a(sl)
            if t==0: a(hl[1][10:12])
            a(w[:2]); a("@wlg rw\ns_barrier"); a(s.stamp(L,f"f2{t}b")); a(s.red_read())
            if t==0: a(hl[1][12:16])
            for i in range(4): a(f"v_lshlrev_b32 v{acc+8+2*i}, 16, v{XR[t]+i}\nv_and_b32 v{acc+8+2*i+1}, 0xffff0000, v{XR[t]+i}")
            a(s.red_add(acc))
            for i in range(8): a(f"v_fma_f32 v{acc+i}, v{vRs[t]}, v{acc+i}, v{acc+8+i}")
            if L==0:
                a(s.emit_x(acc, t, LOFF+XA_, LOFF+SA_, acc+8))
                if t==1 and not WKU: a(s.cs_loads())
            else:
                x=XR[t]
                for i in range(4): a(f"v_cvt_pk_bf16_f32 v{x+i}, v{acc+2*i}, v{acc+2*i+1}")
                a(f"""v_and_b32 v{acc}, 31, v0
                v_lshlrev_b32 v{acc}, 10, v{acc}
                v_lshrrev_b32 v{acc+1}, 5, v0
                v_lshl_add_u32 v{acc}, v{acc+1}, 4, v{acc}
                v_permlane32_swap_b32 v{x}, v{x+2}
                v_permlane32_swap_b32 v{x+1}, v{x+3}
                s_lshl_b32 s{t1_}, s{sJ}, 2
                s_add_u32 s{t1_}, s{t1_}, s{sW}
                s_lshl_b32 s{t1_}, s{t1_}, 5
                s_lshl_b32 s{t2_}, s{sG}, 16
                s_add_u32 s{t1_}, s{t1_}, s{t2_}
                s_add_u32 s{t1_}, s{t1_}, {t*32*KB}
                buffer_store_dwordx4 {v(x,4)}, v{acc}, s[8:11], s{t1_} offen""")
            a(s.stamp(L,f"f2{t}e"))

    def pfc(s, r, skip):
        if not PFC: return []
        Lp=s.a.label("pc")
        return [f"s_getpc_b64 s[{P2}:{P2+1}]", f"{Lp}:", f"s_lshr_b32 s{t1_}, s2, 3", f"s_lshl_b32 s{t1_}, s{t1_}, 2", f"s_add_u32 s{t1_}, s{t1_}, s{sW}", f"s_lshl_b32 s{t1_}, s{t1_}, 8", f"s_add_u32 s{t1_}, s{t1_}, {skip}",
                f"s_min_u32 s{t1_}, s{t1_}, {s.a.endl}-{Lp}-256", f"s_add_u32 s{P2}, s{P2}, s{t1_}", f"s_addc_u32 s{P2+1}, s{P2+1}, 0", f"global_load_dword v{r}, v{vL4}, s[{P2}:{P2+1}]"]
    def stats0(s, t):
        sq=SQ[t]; o=[]
        for i in range(32):
            if i%4==0: o+=[f"@wlg xl{t}_{i//4}"]
            o+=[f"v_dot2_f32_bf16 v{sq}, v{BQ[t]+i}, v{vOnes}, {'0' if i==0 else v(sq)}", f"v_dot2_f32_bf16 v{sq+1}, v{BQ[t]+i}, v{BQ[t]+i}, {'0' if i==0 else v(sq+1)}"]
        return o+[f"v_permlane32_swap_b32 v{sq}, v{sq+1}", f"v_add_f32 v{sq}, v{sq}, v{sq+1}"]
    def pro1(s, GR):
        a=s.a; pX,pQ,pK,pV,pD=42,48,50,52,66; X=144; Y=148
        Lk=a.label("nokv"); Ln=a.label("nn"); Lm=a.label("nm")
        if PFC:
            a(f"""s_getpc_b64 s[56:57]
            Lpc0:
            s_mov_b32 s58, {a.endl}-Lpc0
            s_mov_b32 s59, 0x20000
            s_lshl_b32 s60, s2, 9
            s_and_b32 s60, s60, 0x1f000
            v_lshlrev_b32 v1, 4, v0
            buffer_load_dwordx4 {v(OB,4)}, v1, s[56:59], s60 offen""")
        a(f"""s_load_dwordx2 s[{pX}:{pX+1}], s[0:1], 0
        s_load_dwordx4 s[{pQ}:{pQ+3}], s[0:1], 8
        s_load_dwordx2 s[{pV}:{pV+1}], s[0:1], 24
        s_load_dwordx2 s[{pD}:{pD+1}], s[0:1], 72
        s_load_dwordx2 s[4:5], s[0:1], 80
        s_load_dwordx2 s[8:9], s[0:1], 64
        s_cmp_lt_u32 s2, 80
        s_cselect_b32 s60, 32, 56
        s_cmp_ge_u32 s2, 136
        s_cselect_b32 s60, 48, s60
        s_load_dwordx2 s[{pJ}:{pJ+1}], s[0:1], s60
        s_memrealtime s[62:63]
        v_lshrrev_b32 v1, 6, v0
        v_readfirstlane_b32 s{sW}, v1
        v_and_b32 v0, 63, v0
        s_and_b32 s{sG}, s2, 31
        s_lshr_b32 s{sJ}, s2, 5
        v_lshlrev_b32 v{vL16}, 4, v0
        v_lshrrev_b32 v{Y}, 4, v0
        v_xor_b32 v{X}, v0, v{Y}
        v_and_b32 v{X}, 15, v{X}
        v_lshlrev_b32 v{X}, 4, v{X}
        v_lshl_add_u32 v{X}, v{Y}, 10, v{X}""")
        for q in range(1,4): a(f"v_xor_b32 v{X+q}, {q<<6}, v{X}\nv_add_u32 v{X+q}, {q*3072}, v{X+q}")
        a(f"""v_lshrrev_b32 v{Y+1}, 3, v0
        v_and_b32 v{Y}, 3, v{Y+1}
        v_lshlrev_b32 v{Y}, 1, v{Y}
        v_xor_b32 v{Y}, v0, v{Y}
        v_and_b32 v{Y}, 7, v{Y}
        v_lshlrev_b32 v{Y}, 4, v{Y}
        v_lshl_add_u32 v{Y}, v{Y+1}, 10, v{Y}""")
        for q in range(1,4): a(f"v_add_u32 v{Y+q}, {q*7168}, v{Y}")
        a(f"""s_lshl_b32 s{sW8}, s{sW}, 13
        s_lshl_b32 s{s16}, s{sW}, 14
        s_lshl_b32 s{sKVd}, s{sW}, 12
        s_lshl_b32 s60, s{sG}, 16
        s_lshl_b32 s61, s{sW}, 8
        s_add_u32 s61, s61, s60
        s_lshl_b32 s54, s{sW}, 17
        s_lshl_b32 s55, s{sJ}, 7
        s_add_u32 s54, s54, s55
        s_add_u32 s55, s{sW8}, {KVL}
        s_waitcnt lgkmcnt(0)
        s_or_b32 s56, s2, s{sW}
        s_cmp_lg_u32 s56, 0
        s_cbranch_scc1 {Ln}
        @optb
        s_lshl_b32 s62, s62, 4
        s_bitset1_b32 s62, 31
        v_mov_b32 v{vP}, s62
        v_mov_b32 v{vP+1}, 0
        s_mov_b64 exec, 1
        global_store_dword v{vP+1}, v{vP}, s[{pD}:{pD+1}] sc1
        s_mov_b64 exec, -1
        @opte
        {Ln}:
        s_mov_b32 s6, {WS_SIZE}
        s_mov_b32 s7, 0x20000""")
        Lt=a.label("nt")
        a(f"""s_cmp_lt_u32 s{sJ}, 6
        s_cbranch_scc1 {Lt}
        @optb
        s_mul_i32 s44, s{sJ}, {KVH}
        s_mul_i32 s45, s{sG}, {KVT}
        s_add_u32 s44, s44, s45
        s_add_u32 s44, s44, {KVI-6*KVH}
        s_lshl_b32 s45, s{sJ}, 13
        s_lshl_b32 s46, s{sG}, 8
        s_add_u32 s45, s45, s46
        s_add_u32 s45, s45, {KVF-6*8192}
        s_cmp_eq_u32 s{sW}, 1
        s_cselect_b32 s44, s45, s44
        s_cselect_b32 s45, 2, 5
        v_lshlrev_b32 v{T+2}, s45, v0
        s_cmp_ge_u32 s{sW}, 2
        s_cbranch_scc1 {Lt}
        buffer_load_dword v{T+3}, v{T+2}, {WSR}, s44 offen sc1
        @opte
        {Lt}:""")
        a(f"""s_lshl_b32 s56, s{sJ}, 13
        s_add_u32 s56, s56, s60
        s_lshr_b32 s57, s{sG}, 3
        s_lshl_b32 s57, s57, 1
        s_and_b32 s58, s{sW}, 1
        s_add_u32 s57, s57, s58
        s_lshl_b32 s57, s57, 16
        s_lshl_b32 s58, s{sJ}, 7
        s_add_u32 s57, s57, s58
        s_cmp_lt_u32 s{sW}, 2
        s_cselect_b32 s56, s57, s56
        s_cselect_b32 s57, 10, 7
        s_cselect_b64 s[{P0}:{P0+1}], s[{pQ}:{pQ+1}], s[{pX}:{pX+1}]
        s_bitcmp1_b32 s2, 4
        s_cselect_b64 s[58:59], s[{pV}:{pV+1}], s[{pK}:{pK+1}]
        s_and_b32 s62, s2, 8
        s_lshl_b32 s62, s62, 10
        s_cmp_eq_u32 s{sW}, 3
        s_cselect_b32 s56, s62, s56
        s_cselect_b64 s[{P0}:{P0+1}], s[58:59], s[{P0}:{P0+1}]
        v_lshlrev_b32 v{T}, s57, v0
        v_add_u32 v{T}, s56, v{T}
        global_load_dword v{T+1}, v{T}, s[{P0}:{P0+1}]
        s_add_u32 s{P2}, s{pX}, s61
        s_addc_u32 s{P2+1}, s{pX+1}, 0
        s_add_u32 s{pQ2}, s{pQ}, s54
        s_addc_u32 s{pQ2+1}, s{pQ+1}, 0""")
        def xd(t):
            o=[]
            for i in range(8):
                o.append(([f"s_add_u32 m0, s{s16}, {t*8192+i*1024}"]+s.base(P0,P2,t*32768+i*4096) if i%4==0 else [])+[f"global_load_lds_dwordx4 v{X+i%4}, s[{P0}:{P0+1}] offset:{(i%4)*1024} ;@x{t}_{i}"])
            return o
        s.xd0=xd(0); s.xd1=xd(1); a(s.xd0)
        s.wqd=[([f"s_add_u32 m0, s{s16}, {WQL+i*1024}"]+s.base(P0,pQ2,i*8192) if i%4==0 else [])+[f"global_load_lds_dwordx4 v{Y+i%4}, s[{P0}:{P0+1}] offset:{(i%4)*1024} ;@wq{i}"] for i in range(16)]
        a(f"""
        s_mov_b32 s6, {WS_SIZE}
        s_mov_b32 s7, 0x20000
        v_lshlrev_b32 v{vL4}, 2, v0
        s_and_b32 s60, s{sW}, 1
        s_lshl_b32 s{sKVl}, s60, 10
        s_lshl_b32 s60, s60, 8
        v_xor_b32 v{vL16x}, s60, v{vL16}
        """)
    def setup2(s):
        a=s.a; GR=3
        a(f"""s_mov_b32 s10, {2*MB}
        s_mov_b32 s11, 0x20000
        s_lshl_b32 s{GR}, s{sG}, 20
        s_add_u32 s{GR}, s{GR}, {GBASE}
        s_add_u32 s{pQtr}, s{sW8}, s{GR}
        s_lshl_b32 s{pStL}, s{sW}, 11
        s_add_u32 s{pStL}, s{pStL}, s{GR}
        s_lshr_b32 s63, s{sW}, 1
        s_lshl_b32 s62, s{sJ}, 1
        s_add_u32 s63, s63, s62
        s_lshl_b32 s{pWQ[0]}, s63, 15
        s_add_u32 s{pWQ[0]}, s{pWQ[0]}, s{sW8}
        s_xor_b32 s{pWQ[1]}, s{pWQ[0]}, {32*KB}""")
        for p in (pQtr,pStL,pWQ[0],pWQ[1]): a(f"s_add_u32 s{p}, s4, s{p}\ns_addc_u32 s{p+1}, s5, 0")
        a(f"""s_lshl_b32 s60, s{sJ}, 2
        s_add_u32 s60, s60, s{sW}               ; 4j+w
        s_lshl_b32 s{sOwn}, s60, 10
        s_add_u32 s{sOwn}, s{sOwn}, s{GR}
        s_add_u32 s{sFlS}, s60, s{GR}
        s_add_u32 s{sFlS}, s{sFlS}, {FL_}
        s_lshl_b32 s{sFlP}, s{sW}, 3
        s_add_u32 s{sFlP}, s{sFlP}, s{GR}
        s_add_u32 s{sFlP}, s{sFlP}, {FL_}
        s_lshl_b32 s{sStS}, s{sJ}, 10
        s_lshl_b32 s60, s{sW}, 2
        s_add_u32 s{sStS}, s{sStS}, s60
        s_add_u32 s{sStS}, s{sStS}, s{GR}
        s_mul_i32 s60, s{sJ}, 7
        s_lshl_b32 s61, s{sW}, 1
        s_add_u32 s60, s60, s61                 ; F1 cb0 = 7j+2w
        s_lshl_b32 s{sHs[0]}, s60, 11
        s_add_u32 s{sHs[0]}, s{sHs[0]}, s{GR}
        s_add_u32 s{sHs[0]}, s{sHs[0]}, {H_}
        s_add_u32 s{sHs[1]}, s{sHs[0]}, 2048
        s_lshl_b32 s{pW1[0]}, s60, 15
        s_add_u32 s{pW1[0]}, s{pW1[0]}, {W1F}
        s_add_u32 s{pW1[1]}, s{pW1[0]}, {32*KB}
        s_cmp_eq_u32 s{sW}, 3
        s_cselect_b32 s{sHs[1]}, s{sHs[0]}, s{sHs[1]}
        s_cselect_b32 s{pW1[1]}, s{pW1[0]}, s{pW1[1]}
        s_mul_i32 s{pHl}, s{sW}, {28*KB}
        s_mul_i32 s{pW2[0]}, s63, {112*KB}
        s_xor_b32 s63, s63, 1
        s_mul_i32 s{pW2[1]}, s63, {112*KB}
        s_add_u32 s60, s{pHl}, {W2F}
        s_add_u32 s{pW2[0]}, s{pW2[0]}, s60
        s_add_u32 s{pW2[1]}, s{pW2[1]}, s60
        s_add_u32 s{pHl}, s{pHl}, s{GR}
        s_add_u32 s{pHl}, s{pHl}, {H_}
""")
        for p in (pHl,pW2[0],pW2[1],pW1[0]): a(f"s_add_u32 s{p}, s4, s{p}\ns_addc_u32 s{p+1}, s5, 0")
        a(f"s_mov_b32 s{sLast}, 0")
    def tra(s, r, sh):
        return f"""v_lshrrev_b32 v{r}, 5, v0
        v_bfe_u32 v{r+2}, v0, 2, 2
        v_lshl_add_u32 v{r}, v{r}, 2, v{r+2}
        v_lshlrev_b32 v{r}, {sh}, v{r}
        v_and_b32 v{r+1}, 3, v0
        v_lshl_add_u32 v{r}, v{r+1}, 3, v{r}
        v_bfe_u32 v{r+1}, v0, 4, 1"""
    def hilo(s, r, d):
        return [f"v_cvt_pk_bf16_f32 v{r+1}, v{r}, v{r}", f"v_and_b32 v{r+1}, 0xffff0000, v{r+1}", f"v_sub_f32 v{r+1}, v{r}, v{r+1}", f"v_cvt_pk_bf16_f32 v{r}, v{r}, v{r+1}",
                f"v_cndmask_b32 v{d}, 0, v{r}, vcc", f"v_cndmask_b32 v{d+1}, 0, v{r}, vcc"]
    def sw(s,r): return [f"v_permlane32_swap_b32 v{r}, v{r+2}", f"v_permlane32_swap_b32 v{r+1}, v{r+3}"]
    def xr(s,t): return [f"ds_read_b64 {v(BQ[t]+4*k+2*h,2)}, v{(152,216)[h]+k} offset:{t*8192} ;@xl{t}_{k}" for k in range(8) for h in range(2)]
    def pro2(s, GR):
        a=s.a; X=152; Y=192; ON=T+16; Z=T+20; U=214
        Lk=a.label("nokv"); Lm=a.label("m")
        a(f"""v_and_b32 v{X}, 31, v0
        v_lshrrev_b32 v{X+1}, 5, v0
        v_lshlrev_b32 v{U}, 10, v{X}
        v_lshl_add_u32 v{U}, v{X+1}, 4, v{U}
        s_lshl_b32 s60, s{sJ}, 7
        s_mul_i32 s61, s{sW}, {32-256}
        s_add_u32 s60, s60, s61
        s_add_u32 s60, s60, 1024
        v_add_u32 v{U}, s60, v{U}
        v_and_b32 v{X+2}, 15, v{X}
        v_lshl_add_u32 v{X+1}, v{X+2}, 1, v{X+1}
        v_lshlrev_b32 v{X+1}, 3, v{X+1}
        v_lshl_add_u32 v{X}, v{X}, 8, v{X+1}
        v_add_u32 v{X}, s{s16}, v{X}""")
        for k in range(1,8): a(f"v_xor_b32 v{X+k}, {k<<5}, v{X}")
        for k in range(8): a(f"v_xor_b32 v{216+k}, {(k<<5)+16}, v{X}")
        a(s.tra(Y,7))
        a(f"""v_xor_b32 v{Y+3}, s{sW}, v{Y+1}
        v_xor_b32 v{Y+3}, v{Y+3}, v{Y+2}
        v_lshl_add_u32 v{Y+3}, v{Y+3}, 5, v{Y}
        s_add_u32 s60, s{s16}, {WQL}
        v_add_u32 v{Y+3}, s60, v{Y+3}
        v_xor_b32 v{Y+4}, 64, v{Y+3}
        v_and_b32 v{Y+7}, 124, v{vL4}
        s_lshl_b32 s61, s{sW}, 6
        v_xor_b32 v{Y+5}, s61, v{Y+7}
        v_add_u32 v{Y+5}, {WQL}, v{Y+5}
        v_xor_b32 v{Y+6}, 128, v{Y+5}
        v_add_u32 v{Y+7}, {KVL}, v{Y+7}
        v_add_u32 v{Y}, s{s16}, v{Y+5}
        v_add_u32 v{Y+1}, s{s16}, v{Y+6}
        s_lshl_b32 s61, s{sW}, 7
        v_add_u32 v{Y+2}, s61, v{Y+7}
        s_add_u32 s61, s{sW8}, {KVL}""")
        for i in range(4): a(f"v_mov_b32 v{ON+i}, v{vOnes}")
        a(s.tra(Z,5)); a(f"v_lshl_add_u32 v{Z}, v{Z+1}, 12, v{Z}\nv_add_u32 v{Z}, s61, v{Z}")
        a(f"""s_cmp_lt_u32 s2, 80
        s_cselect_b32 s60, 64, 80
        s_sub_u32 s60, s2, s60
        s_lshl_b32 s60, s60, 15
        s_lshr_b32 s61, s{sW}, 1
        s_lshl_b32 s61, s61, 14
        s_add_u32 s60, s60, s61
        s_lshr_b32 s61, s{sKVl}, 1
        s_add_u32 s60, s60, s61
        s_sub_u32 s61, s2, 136
        s_lshl_b32 s61, s61, 6
        s_mul_i32 s62, s{sW}, {128*3584}
        s_add_u32 s61, s61, s62
        s_cmp_ge_u32 s2, 136
        s_cselect_b32 s60, s61, s60
        s_cselect_b32 s3, {16*3584}, 64
        s_movk_i32 s62, 1024
        s_cmovk_i32 s62, 3584
        s_sub_u32 s61, s2, 64
        s_cmp_ge_u32 s61, 128
        s_cmov_b32 s60, 0
        s_cmov_b32 s3, 0
        s_cmov_b32 s62, 0
        v_lshrrev_b32 v{U+1}, 2, v0
        v_mul_lo_u32 v{U+1}, v{U+1}, s62
        v_and_b32 v{T}, 48, v{vL16}
        v_add_u32 v{U+1}, v{U+1}, v{T}
        s_add_u32 s{pJ}, s{pJ}, s60
        s_addc_u32 s{pJ+1}, s{pJ+1}, 0
        v_mov_b32 v{vP+1}, 0
        global_load_dword v{vP}, v{vP+1}, s[66:67] sc1 ;@non""")
        a(s.stamp(0,"set"))
        st=lambda: [[x] for x in ["@wvm x0_7"]+s.xr(0)+s.stats0(0)]
        a(f"s_cmp_ge_u32 s{sJ}, 2\ns_cbranch_scc1 {Lk}\n@optb")
        for u in range(2):
            a(f"s_add_u32 m0, s{sW8}, {KVL+u*4096}\ns_add_u32 s{P0}, s{50+2*u}, s{sKVd}\ns_addc_u32 s{P0+1}, s{51+2*u}, 0")
            for i in range(4): a(f"global_load_lds_dwordx4 v{vL16}, s[{P0}:{P0+1}] offset:{i*1024} ;@wkd")
        o=st()+[["@wvm wkd"]]
        o+=[[f"ds_read_b64_tr_b16 {R(WKR(k)+2*h,2)}, v{Z} offset:{k*512+h*256} ;@wk{k}"] for k in range(8) for h in range(2)]
        weave(o, s.wqd[:8], 17)
        for k in range(8): o+=[[f"@wlg wk{k}", mf(KACC, ON, WKR(k), "0" if k==0 else None)]+(s.wqd[8+k//2] if k%2 else [])]
        a(o); a(f"s_barrier\nds_write_b32 v{Y+2}, v{KACC} ;@cw"); a(s.wqd[12:14]); a("@wlg cw\ns_barrier")
        for k in range(4): a(f"ds_read_b32 v{64+k}, v{Y+7} offset:{k*128} ;@cr")
        a(s.wqd[14:])
        a(f"v_cmp_gt_u32 vcc, 32, v0\n@wlg cr\nv_add_f32 v64, v64, v65\nv_add_f32 v66, v66, v67\nv_add_f32 v64, v64, v66"); a(s.hilo(64,CSK))
        a(f"s_branch {Lm}\n@opte\n{Lk}:"); a(s.wqd[:NW0])
        o=st(); weave(o, s.wqd[NW0:], 17); a(o)
        Lw=a.label("nw"); Lr=a.label("nr")
        a(f"""{Lm}:
        s_waitcnt lgkmcnt(0)
        s_mov_b32 s0, 0
        s_mov_b32 s{sPure}, 0
        s_mov_b32 s{sBud}, 100000""")
        a(["@wvm non", f"v_readfirstlane_b32 s{sNon}, v{vP}", f"s_cmp_lg_u32 s{sNon}, 0", f"s_cbranch_scc0 {Lr}", f"{Lw}:", f"s_or_b32 s{sXcc}, s{sXcc}, s{sNon}"])
        s.ool+=[f"{Lr}:", f"s_sub_u32 s{sBud}, s{sBud}, 1", f"s_cmp_lt_i32 s{sBud}, 0", f"s_cbranch_scc1 {Lw}", f"global_load_dword v{vP}, v{vP+1}, s[66:67] sc1", "s_waitcnt vmcnt(0)",
                f"v_readfirstlane_b32 s{sNon}, v{vP}", f"s_cmp_lg_u32 s{sNon}, 0", f"s_cbranch_scc1 {Lw}", f"s_branch {Lr}"]
        a(s.stamp(0,"st0"))
    def pro3a(s):
        Y=192; ON=T+16; acc=QACC[0]; U=214; o=[]
        ld=s.xd1+[[f"global_load_dwordx4 {v(XR[0],4)}, v{U}, s[{P2}:{P2+1}] offset:-1024"], [f"v_add_u32 v{U}, 32768, v{U}", f"global_load_dwordx4 {v(XR[1],4)}, v{U}, s[{P2}:{P2+1}] offset:-1024 ;@xr"]]
        ld+=[[f"s_add_u32 m0, s{s16}, {WQL+1024+i*1024}", f"global_load_lds_dwordx4 v{U+1}, s[{pJ}:{pJ+1}]", f"s_add_u32 s{pJ}, s{pJ}, s3", f"s_addc_u32 s{pJ+1}, s{pJ+1}, 0"] for i in range(8)]
        for k in range(9):
            p=[]
            if k<8: p=[f"@wvm wq{2*k+1}"]+[f"ds_read_b64_tr_b16 {R(WQR(c,k)+2*h,2)}, v{Y+3+c} offset:{k*2048+h*1024} ;@wt{k}" for c in range(2) for h in range(2)]
            if k==0: o+=[p+ld[0]+ld[1]]; continue
            m=[mf(OB+16*c, ON, WQR(c,k-1), "0" if k==1 else None) for c in range(2)]+[mf(acc+16*c, WQR(c,k-1), BQ[0]+4*(k-1), "0" if k==1 else None) for c in range(2)]
            o+=[p+[f"@wlg wt{k-1}", m[0]], [m[1]]+ld[2*k], [m[2]], [m[3]]+ld[2*k+1]]
        return o
    def pro3(s, kf):
        a=s.a; Y=192; acc=QACC[0]; o=[]
        o+=s.stamp(0,"wq")
        o+=[f"s_mov_b32 s{sONE}, 1.0", f"s_mov_b32 s{sONE+1}, 1.0"]
        o+=[f"ds_write_b32 v{Y+c}, v{OB+16*c} ;@cw" for c in range(2)]+["@wvm xr"]+s.xr(1)+["@wlg cw", "s_barrier"]+s.stamp(0,"bB")
        o+=[f"ds_read_b32 v{OB+4*i+k}, v{Y+5+i} offset:{k*16384} ;@cr{i}" for i in range(2) for k in range(4)]
        o+=s.sw(XR[0])+s.sw(XR[1])+["v_cmp_gt_u32 vcc, 32, v0"]
        for i in range(2):
            r=OB+4*i
            o+=[f"@wlg cr{i}", f"v_add_f32 v{r}, v{r}, v{r+1}", f"v_add_f32 v{r+2}, v{r+2}, v{r+3}", f"v_add_f32 v{r}, v{r}, v{r+2}"]+s.hilo(r,CSQR+2*i)
        w=s.red_write(acc)
        o+=[mf(acc+16,CSQR,vBX), mf(acc,CSQR,vBX+2)]+s.stamp(0,"ext")+w[2:]+w[:2]+[kf]+s.stamp(0,"rw")+s.stats0(1)+["@wlg rw","s_barrier"]
        return o
    def job1(s):
        a=s.a; Lj=a.label("nj"); ON=148; Z=152
        o=[f"""s_sub_u32 s60, s2, 64
        s_cmp_ge_u32 s60, 128
        s_cbranch_scc1 {Lj}
        @optb
        {s.tra(Z,6)}
        v_lshl_add_u32 v{Z}, v{Z+1}, 5, v{Z}
        s_add_u32 s60, s{s16}, {WQL}
        v_add_u32 v{Z}, s60, v{Z}
        s_waitcnt vmcnt(1)"""]+[f"ds_read_b64_tr_b16 {R(WKR(k)+2*h,2)}, v{Z} offset:{1024+k*1024+h*512}" for k in range(8) for h in range(2)]
        o+=["s_waitcnt lgkmcnt(0)", "s_cmp_lt_u32 s2, 136", f"s_cbranch_scc1 {Lj}"]+[f"v_mov_b32 v{ON+i}, v{vOnes}" for i in range(4)]
        o+=[mf(KACC, ON, WKR(k), "0" if k==0 else None) for k in range(8)]
        o+=[f"v_add_u32 v{Z}, s60, v{vL4}", f"v_add_u32 v{Z+1}, {WQL}, v{vL4}", f"ds_write_b32 v{Z}, v{KACC}", "s_waitcnt lgkmcnt(0)", "s_barrier"]
        o+=[f"ds_read_b32 v{Z+2+k}, v{Z+1} offset:{k*16384}" for k in range(4)]+["v_cmp_gt_u32 vcc, 32, v0", "s_waitcnt lgkmcnt(0)",
            f"v_add_f32 v{Z+2}, v{Z+2}, v{Z+3}", f"v_add_f32 v{Z+4}, v{Z+4}, v{Z+5}", f"v_add_f32 v{Z+2}, v{Z+2}, v{Z+4}"]+s.hilo(Z+2,CSK)
        return o+["@opte", f"{Lj}:"]
    def job2(s):
        a=s.a; Lj=a.label("nj"); Lg=a.label("ng"); Lz=a.label("nz"); L1=a.label("j1"); ON=148; T=144; o=[]
        cs=[y.replace("buffer_load","buffer_store").replace(f"v{vA+3},",f"v{T},").split(";@")[0]+(" sc1" if "_load" in y else "") for y in flat(s.cs_loads())]
        Lp=a.label("np")
        o+=[f"""s_cmp_ge_u32 s{sJ}, 2
        s_cbranch_scc1 {Lp}
        @optb
        s_mul_i32 s60, s{sJ}, {KVH}
        s_mul_i32 s61, s{sG}, {KVT}
        s_add_u32 s60, s60, s61
        s_lshl_b32 s61, s{sW}, 10
        s_add_u32 s60, s60, s61
        s_add_u32 s60, s60, {KVI+2*KVH}
        s_lshl_b32 s61, s{sJ}, 13
        s_lshl_b32 s62, s{sG}, 8
        s_add_u32 s61, s61, s62
        s_add_u32 s61, s61, {KVF+2*8192}
        s_cmp_eq_u32 s{sW}, 2
        s_cselect_b64 exec, 15, -1
        s_cmp_eq_u32 s{sW}, 3
        s_cselect_b32 s60, s61, s60
        s_cselect_b64 exec, 0xffff, exec
        buffer_store_dwordx4 {v(OB,4)}, v{vL16}, {WSR}, s60 offen sc1
        s_mov_b64 exec, -1
        @opte
        {Lp}:"""]
        o+=[f"s_cmp_gt_u32 s{sG}, 8", f"s_cbranch_scc1 {Lg}", "@optb", f"s_lshl_b32 s60, s{sG}, 10", f"v_add_u32 v{T}, s60, v{vL16x}", f"s_add_u32 s60, s60, s{sW8}", f"s_add_u32 s60, s60, {WKVF}"]
        for k in range(8):
            Ln=a.label("nk")
            o+=[f"s_cmp_lg_u32 s{sG}, {k}", f"s_cbranch_scc1 {Ln}"]+[f"global_store_dwordx4 v{T}, {R(WQR(c,k))}, s[{pWQ[c]}:{pWQ[c]+1}] sc1" for c in range(2)]
            o+=[f"s_cmp_lg_u32 s{sJ}, 0", f"s_cbranch_scc1 {Lg}", f"buffer_store_dwordx4 {R(WKR(k))}, v{vL16}, {WSR}, s60 offen sc1", f"s_branch {Lg}", f"{Ln}:"]
        assert WQF==0
        o+=cs[:-3]+[f"s_cmp_lg_u32 s{sJ}, 0", f"s_cbranch_scc1 {Lg}"]+cs[-3:]+["@opte", f"{Lg}:", f"s_cmp_lg_u32 s{sJ}, 6", f"s_cbranch_scc1 {Lz}", "@optb",
            f"s_lshl_b32 s61, s{sW}, 10", f"s_and_b32 s60, s{sFlP}, 0xffffff00", "s_add_u32 s61, s61, s60"]+[f"v_mov_b32 v{ON+i}, 0" for i in range(4)]
        o+=[f"""buffer_store_dwordx4 {v(ON,4)}, v{vL16}, {WSR}, s61 offen sc1
        @opte
        {Lz}:
        @optb
        s_movk_i32 s62, 1024
        s_sub_u32 s60, s2, 64
        s_cmp_ge_u32 s60, 128
        s_cbranch_scc1 {Lj}
        s_lshl_b32 s61, s2, 15
        s_add_u32 s61, s61, s{sW8}
        s_add_u32 s61, s61, {(W1F-136*32*KB)&0xffffffff:#x}
        s_lshl_b32 s63, s2, 9
        s_add_u32 s63, s63, {CS1-136*512}
        s_cmp_ge_u32 s2, 136
        s_cbranch_scc1 {L1}
        s_sub_u32 s60, s2, 80
        s_mul_i32 s61, s60, 37
        s_lshr_b32 s61, s61, 8
        s_mul_i32 s62, s61, 7
        s_sub_u32 s60, s60, s62
        s_and_b32 s62, s61, 1
        s_lshr_b32 s61, s61, 1
        s_mul_i32 s61, s61, 28
        s_add_u32 s61, s61, s60
        s_mul_i32 s63, s62, 6
        s_add_u32 s63, s63, 15
        s_lshl_b32 s62, s62, 3
        s_bitcmp1_b32 s60, 0
        s_cselect_b32 s62, s63, s62
        s_add_u32 s61, s61, s62
        s_lshl_b32 s61, s61, 10
        s_add_u32 s61, s61, {W2F}
        s_lshl_b32 s63, s2, 11
        s_add_u32 s63, s63, {WOF-64*2048}
        s_mov_b32 s62, {112*KB}
        s_cmp_lt_u32 s2, 80
        s_cmov_b32 s62, {32*KB}
        s_cmov_b32 s61, s63
        s_lshr_b32 s63, s{sW}, 1
        s_lshl_b32 s63, s63, 10
        s_add_u32 s61, s61, s63
        s_and_b32 s63, s{sW}, 1
        s_lshl_b32 s63, s63, 3
        s_mul_i32 s63, s63, s62
        s_add_u32 s61, s61, s63
        {L1}:
        v_lshrrev_b32 v{T}, 1, v{vL16}"""]
        for k in range(8): o+=[f"buffer_store_dwordx4 {R(WKR(k))}, v{vL16}, {WSR}, s61 offen sc1", "s_add_u32 s61, s61, s62"]
        o+=["s_cmp_eq_u32 s62, 1024", f"s_cbranch_scc0 {Lj}", f"buffer_store_dwordx2 {v(CSK,2)}, v{T}, {WSR}, s63 offen sc1", "@opte", f"{Lj}:"]
        return o

def k_main(a):
    s=M(a)
    def p64(p, src): a(f"s_add_u32 s{p}, s4, s{src}\ns_addc_u32 s{p+1}, s5, 0")
    a(f"s_cmp_ge_u32 s2, 256\ns_cbranch_scc1 {a.endl}")
    if STAMP:
        for j in range(1,13): a(f"s_mov_b32 s{72+2*j}, 0")
        a("s_memrealtime s[70:71]\n"+("s_memrealtime" if STL==9 else "s_memtime")+" s[72:73]")
    GR=3
    s.pro1(GR)
    a(f"""    s_getreg_b32 s{sXcc}, hwreg(HW_REG_XCC_ID)
    s_and_b32 s{sXcc}, s{sXcc}, 15
    v_mov_b32 v{vOnes}, {ONES:#x}
    v_mov_b32 v{vOne}, 1""")
    for i in (0,1,4,5): a(f"v_mov_b32 v{vBX+i}, 0")
    for i in range(4): a(f"s_xor_b32 s60, s{sW}, {i}\ns_lshl_b32 s{s16+i}, s60, 14\ns_mul_i32 s60, s60, {CST}\ns_add_u32 s{s7+i}, s60, {LC}")
    s.pro2(GR)
    for L in range(2):
        if L==1: a("@wlg wqr")
        s.qkv(L,0); s.qkv(L,1); s.att(L); s.op(L,0); s.op(L,1); s.f1(L); s.f2(L)
    if STAMP:
        a("s_memtime s[98:99]\ns_memrealtime s[100:101]\ns_waitcnt lgkmcnt(0)\nv_mov_b32 v4, 0x57a3")
        for j in range(14): a(f"v_writelane_b32 v4, s{70+2*j}, {j}")
        a(f"""v_writelane_b32 v4, s98, 19
        v_writelane_b32 v4, s100, 20
        v_writelane_b32 v4, s{sBud}, 21
        v_writelane_b32 v4, s{sPure}, 22
        v_writelane_b32 v4, s0, 23
        s_lshl_b32 s60, s2, 2
        s_add_u32 s60, s60, s{sW}
        s_lshl_b32 s60, s60, 7
        s_add_u32 s60, s60, {TS}
        s_mov_b64 exec, 0xffffffff
        buffer_store_dword v4, v{vL4}, {WSR}, s60 offen""")
    a(f"s_endpgm\n@optb"); a(s.ool); a("@opte")

gen2.KERNELS=[("main_kernel",k_main,256,LDS_TOTAL,512)]
if __name__=="__main__":
    for x in sys.argv[2:]:
        if x.startswith("stamp"): STAMP=True; STL=int(x[5]); STO=int(x[7:] or 0)
        elif "=" in x:
            k,val=x.split("="); globals()[k]=int(val)
    p = sys.argv[1] if len(sys.argv)>1 and sys.argv[1]!="-" else "cdna_kernels/"+NAME+".s"
    o=gen2.build()
    if SINGLE: o=o.replace("kernel=main_kernel ","").replace("main_kernel",NAME+"_kernel")
    open(p,"w").write(o)
```
